```python
import torch

def _softmax(x, axis=-1):
    return torch.softmax(x, dim=axis)
def _gelu(x):
    return torch.nn.functional.gelu(x, approximate="tanh")
def _silu(x):
    return torch.nn.functional.silu(x)
def _sigmoid(x):
    return torch.sigmoid(x)
def _layernorm(x, axis=-1, eps=1e-5):
    m = x.mean(dim=axis, keepdim=True)
    v = x.var(dim=axis, keepdim=True, unbiased=False)
    return (x - m) / torch.sqrt(v + eps)
def _scatter_add(tgt, idx, src, axis=0):
    return tgt.clone().index_add_(axis, idx, src)
def _segment_sum(src, seg, n):
    out = torch.zeros((n,) + src.shape[1:], dtype=src.dtype)
    return out.index_add_(0, seg, src)
def _pad(x, pw):
    flat = tuple(v for pair in reversed(pw) for v in pair)
    return torch.nn.functional.pad(x, flat)

kernel_name = 'standalone__detection_seg_dino__vision'

def setup_inputs():

    _w = (lambda a: (lambda t: t.to(torch.bfloat16) if t.is_floating_point() else t)(torch.as_tensor(a)))
    H = W = (512 // 2) * 2
    C = 192
    Nq = 16
    sc = C ** -0.5
    return {
        "q": _w((lambda *s: torch.randn(*s, dtype=torch.bfloat16) * 0.2)(1, Nq, C)),
        "f0": _w((lambda *s: torch.randn(*s, dtype=torch.bfloat16) * 3.2)(1, H, W, C)),
        "f1": _w((lambda *s: torch.randn(*s, dtype=torch.bfloat16) * 3.2)(1, H // 2, W // 2, C)),
        "wq": _w((lambda *s: torch.randn(*s, dtype=torch.bfloat16) * 1.6)(C, C) * sc),
        "wk": _w((lambda *s: torch.randn(*s, dtype=torch.bfloat16) * 1.6)(C, C) * sc),
        "wv": _w((lambda *s: torch.randn(*s, dtype=torch.bfloat16) * 3.2)(C, C) * sc),
        "wo": _w((lambda *s: torch.randn(*s, dtype=torch.bfloat16) * 3.2)(C, C) * sc),
    }

def reference(q, f0, f1, wq, wk, wv, wo):
    B, H, W, C = f0.shape
    f1u = (lambda x, n, axis: torch.repeat_interleave(x, n, dim=axis))((lambda x, n, axis: torch.repeat_interleave(x, n, dim=axis))(f1, 2, axis=1), 2, axis=2)
    fused = f0 + f1u
    feats = _layernorm(fused.reshape(B, H * W, C), axis=-1)
    qn = _layernorm(q, axis=-1)
    Q = torch.einsum("bnc,cd->bnd", qn, wq)
    K = torch.einsum("bmc,cd->bmd", feats, wk)
    V = torch.einsum("bmc,cd->bmd", feats, wv)
    scale = C ** -0.5
    logits = torch.einsum("bnd,bmd->bnm", Q, K) * scale
    attn = _softmax(logits, axis=-1)
    ctx = torch.einsum("bnm,bmd->bnd", attn, V)
    return q + torch.einsum("bnd,dc->bnc", ctx, wo)
```

```python
import re


class Emit:
    def __init__(self):
        self.lines = []
        self.vm = []
        self.vm_done = 0
        self.ds = []
        self.ds_done = 0

    def __call__(self, s):
        self.lines.append(s)

    def raw(self, s):
        self.lines.append(s)

    def vmem(self, tag, s):
        self.lines.append(s)
        self.vm.append(tag)

    def lds(self, tag, s):
        self.lines.append(s)
        self.ds.append(tag)

    def _need(self, lst, done, tags):
        if isinstance(tags, (str, tuple)):
            tags = [tags]
        idx = [i for i, t in enumerate(lst) if t in tags]
        assert idx, "no such tag %r" % (tags,)
        last = max(idx)
        if last < done:
            return None
        return len(lst) - 1 - last

    def wait_vm(self, tags):
        n = self._need(self.vm, self.vm_done, tags)
        if n is None:
            return
        n = min(n, 63)
        self.lines.append("s_waitcnt vmcnt(%d)" % n)
        self.vm_done = max(self.vm_done, len(self.vm) - n)

    def wait_ds(self, tags):
        n = self._need(self.ds, self.ds_done, tags)
        if n is None:
            return
        n = min(n, 15)
        self.lines.append("s_waitcnt lgkmcnt(%d)" % n)
        self.ds_done = max(self.ds_done, len(self.ds) - n)

    def wait_ds_all(self):
        if self.ds_done < len(self.ds):
            self.lines.append("s_waitcnt lgkmcnt(0)")
            self.ds_done = len(self.ds)

    def wait_vm_all(self):
        self.lines.append("s_waitcnt vmcnt(0)")
        self.vm_done = len(self.vm)

    def text(self):
        return "\n".join(self.lines) + "\n"


def v(a, n=1):
    return "v%d" % a if n == 1 else "v[%d:%d]" % (a, a + n - 1)


def acc(a, n=1):
    return "a%d" % a if n == 1 else "a[%d:%d]" % (a, a + n - 1)


def s(a, n=1):
    return "s%d" % a if n == 1 else "s[%d:%d]" % (a, a + n - 1)


_REG = re.compile(r"^-?(?:abs\()?\|?([vas])(?:(\d+)|\[(\d+):(\d+)\])\)?\|?$")
TRANS = ("v_exp_f32", "v_log_f32", "v_rcp_f32", "v_rsq_f32", "v_sqrt_f32", "v_sin_f32", "v_cos_f32")


def regs(op):
    op = op.strip()
    if op == "vcc":
        return {("s", "vcc")}
    if op == "m0":
        return {("s", "m0")}
    if op == "exec":
        return {("s", "exec")}
    m = _REG.match(op)
    if not m:
        return set()
    k = m.group(1)
    if m.group(2) is not None:
        return {(k, int(m.group(2)))}
    return {(k, i) for i in range(int(m.group(3)), int(m.group(4)) + 1)}


class Ins:
    def __init__(self, text):
        self.text = text
        t = text.split(";")[0].strip()
        parts = t.split(None, 1)
        self.op = parts[0]
        rest = parts[1] if len(parts) > 1 else ""
        ops = [x.strip() for x in rest.split(",")] if rest else []
        if ops:
            tail = ops[-1].split()
            ops[-1] = tail[0] if tail else ""
            self.mods = " ".join(tail[1:])
        else:
            self.mods = ""
        self.ops = ops
        op = self.op
        self.kind = "other"
        self.w, self.r = set(), set()
        self.a = self.b = self.c = set()
        R = [regs(x) for x in ops]
        if op.startswith("v_mfma"):
            self.kind = "mfma"
            self.w = R[0]
            self.a, self.b, self.c = R[1], R[2], R[3]
            self.r = self.a | self.b | self.c
            self.sgemm = op.endswith("_f32") and "bf16" not in op
            self.passes = 8 if (self.sgemm or "32x32" in op) else 4
        elif op.startswith("v_"):
            self.kind = "valu"
            self.w = set(R[0])
            self.r = set().union(*R[1:]) if len(R) > 1 else set()
            if op.startswith(("v_fmac", "v_permlane", "v_dot2c", "v_writelane")) or "dpp" in op:
                self.r |= R[0]
            if op.startswith("v_permlane"):
                self.w |= R[1]
            if op.startswith(("v_add_co", "v_addc_co", "v_sub_co")):
                self.w |= R[1]
            if op.startswith("v_cndmask") and len(ops) == 3:
                self.r |= {("s", "vcc")}
            self.trans = op.split("_e32")[0].split("_e64")[0] in TRANS
            self.dpp = "dpp" in op or "row_" in self.mods or "quad_perm" in self.mods
        elif op.startswith("ds_"):
            self.kind = "ds"
            if op.startswith("ds_read"):
                self.w, self.r = R[0], R[1]
            else:
                self.r = set().union(*R)
        elif op.startswith(("buffer_", "global_")):
            self.kind = "vmem"
            self.ldsdma = " lds" in (" " + self.mods) or "load_lds" in op
            if op in ("buffer_inv", "buffer_wbl2"):
                pass
            elif "load" in op and not self.ldsdma:
                self.w = R[0]
                self.r = set().union(*R[1:])
            elif "atomic" in op and "sc0" in self.mods:
                self.w = R[0]
                self.r = set().union(*R)
            else:
                self.r = set().union(*R)
            if self.ldsdma:
                self.r |= {("s", "m0")}
            self.widestore = "store" in op and ("x3" in op or "x4" in op)
            self.data = set()
            if "store" in op:
                self.data = R[0] if op.startswith("buffer") else R[1]
        elif op.startswith("s_"):
            self.kind = "salu"
            if op.startswith(("s_cmp", "s_cbranch", "s_branch", "s_waitcnt", "s_barrier", "s_nop", "s_endpgm",
                              "s_sleep", "s_setprio", "s_setpc")):
                self.r = set().union(*R) if R else set()
            else:
                self.w = R[0] if R else set()
                self.r = set().union(*R[1:]) if len(R) > 1 else set()
        self.states = 1
        if op == "s_nop":
            self.states = int(ops[0], 0) + 1


def lint(lines, name="", short=None):
    ins = []
    where = []
    for k, ln in enumerate(lines):
        t = ln.split(";")[0].strip()
        if not t or t.endswith(":") or t.startswith("."):
            continue
        ins.append(Ins(t))
        where.append(k)
    probs = []

    def bad(i, j, need, have, why):
        if short is not None:
            short[where[i]] = max(short.get(where[i], 0), need - have)
            return
        probs.append("%s: need %d have %d [%s]\n    %s\n    %s" % (name, need, have, why, ins[j].text, ins[i].text))
    vmq, dsq, smq = [], [], set()
    for i, x in enumerate(ins):
        touched = x.r | x.w
        if x.op == "s_waitcnt":
            m = re.search(r"vmcnt\((\d+)\)", x.text)
            if m:
                n = int(m.group(1))
                vmq = vmq[len(vmq) - n:] if n < len(vmq) else vmq
                if n == 0:
                    vmq = []
            m = re.search(r"lgkmcnt\((\d+)\)", x.text)
            if m:
                n = int(m.group(1))
                dsq = dsq[len(dsq) - n:] if n < len(dsq) else dsq
                if n == 0:
                    dsq = []
                    smq = set()
        else:
            for q, nm in ((vmq, "vm"), (dsq, "ds")):
                for (j, w) in q:
                    if w & touched:
                        probs.append("%s: pending %s load\n    %s\n    %s" % (name, nm, ins[j].text, x.text))
            if smq & touched:
                probs.append("%s: pending smem load\n    %s" % (name, x.text))
        if x.kind == "vmem" and x.op not in ("buffer_inv", "buffer_wbl2"):
            vmq.append((i, x.w))
        if x.kind == "ds":
            dsq.append((i, x.w))
        if x.op.startswith(("s_load", "s_memrealtime", "s_memtime")):
            smq |= x.w
            dsq.append((i, set()))
            dsq.append((i, set()))
        have = 0
        j = i - 1
        while j >= 0 and have < 24:
            p = ins[j]
            vw = {r for r in p.w if r[0] in "va"}
            sw = {r for r in p.w if r[0] == "s"}
            if p.kind == "valu":
                if x.kind == "mfma" and vw & x.r and have < 2:
                    bad(i, j, 2, have, "valu->mfma")
                if x.kind == "valu":
                    if p.trans and not x.trans and vw & x.r and have < 1:
                        bad(i, j, 1, have, "trans->valu")
                    if (x.dpp or x.op.startswith("v_permlane")) and vw & x.r and have < 2:
                        bad(i, j, 2, have, "valu->dpp/permlane")
                    if x.op.startswith(("v_readfirstlane", "v_readlane")) and vw & x.r and have < 1:
                        bad(i, j, 1, have, "valu->readlane")
                    if sw & x.r and have < 2:
                        bad(i, j, 2, have, "valu sgpr->valu const")
                if x.kind == "vmem" and sw & x.r and have < 5:
                    bad(i, j, 5, have, "valu sgpr->vmem")
                if p.trans and x.kind in ("mfma", "ds", "vmem") and vw & x.r and have < 1:
                    bad(i, j, 1, have, "trans->use")
            if p.kind == "mfma":
                need_v = {(False, 4): 8, (False, 8): 12, (True, 8): 10}[(p.sgemm, p.passes)]
                if x.kind in ("valu", "ds", "vmem") and p.w & (x.r | x.w) and have < need_v:
                    bad(i, j, need_v, have, "mfma D->valu/mem")
                if x.kind == "mfma":
                    if p.w & (x.a | x.b) and have < need_v:
                        bad(i, j, need_v, have, "mfma D->A/B")
                    if p.w & x.c:
                        exact = p.w == x.c and p.op == x.op
                        if not exact:
                            need = 0 if (p.sgemm and not x.sgemm) else (8 if p.sgemm else {4: 6, 8: 10}[p.passes])
                            if have < need:
                                bad(i, j, need, have, "mfma D->C overlap")
                    if p.w & x.w and not (p.w & x.c) and p.op != x.op and have < need_v:
                        bad(i, j, need_v, have, "mfma WAW")
                if x.kind == "valu" and not p.sgemm and p.c & x.w and have < {4: 3, 8: 7}[p.passes]:
                    bad(i, j, {4: 3, 8: 7}[p.passes], have, "mfma C WAR")
            if p.kind == "salu" and ("s", "m0") in p.w and x.kind == "vmem" and x.ldsdma and have < 1:
                bad(i, j, 1, have, "m0->ldsdma")
            if p.kind == "vmem" and getattr(p, "widestore", False) and p.data & x.w and have < 2:
                bad(i, j, 2, have, "store data WAR")
            have += p.states
            j -= 1
    return probs


def fix_hazards(lines, name="", verbose=False):
    lines = list(lines)
    total = 0
    while True:
        short = {}
        probs = lint(lines, name, short)
        if probs:
            raise SystemExit("\n".join(probs))
        if not short:
            break
        k = min(short)
        n = short[k]
        if verbose:
            print("%s: nop %d before: %s" % (name, n, lines[k]))
        total += n
        lines.insert(k, "s_nop %d" % (n - 1))
    assert not lint(lines, name)
    if verbose:
        print("%s: %d wait states inserted" % (name, total))
    return lines
```

```python
import sys, argparse, struct
sys.path.insert(0, "tools")
from asmlib import Emit, v, acc, s, fix_hazards

NAME = "standalone__detection_seg_dino__vision"
HDR = open("/code/%s.s.ref" % NAME).read().split("; Override launch")[0].rstrip()


def f2u(x):
    return struct.unpack("<I", struct.pack("<f", x))[0]


def fl(x):
    return "0x%08x" % f2u(x)


LOG2E = 1.4426950408889634
QSCALE = 192 ** -0.5 * LOG2E * 192.0
EPSQ_VAL = 1e-5 * 192 * 192
THR = 24.0

WS_QK, WS_WVO, WS_PART, WS_STAMP, WS_SIZE = 0, 8192, 131072, 4 << 20, 8 << 20
L_F, L_R0, L_R1, L_SP, L_XA, L_XB, L_ST, L_END = 0, 24576, 73728, 122880, 147456, 153600, 159744, 163840

S_WAVE = 3
S_Q, S_F0, S_F1, S_WQ, S_WK, S_WV, S_WO, S_OUT, S_DBG, S_WS = 4, 6, 8, 10, 12, 14, 16, 18, 20, 22
R_F0, R_F1, R_WS, R_A, R_B, R_C = 24, 28, 32, 64, 68, 72
S_OF, S_OR, S_LF, S_LR0, S_LR1 = 36, 37, 40, 41, 42
S_MASK = 44
S_THR, S_RET, S_T0, S_T1, S_T2, S_T3 = 52, 54, 56, 57, 58, 59
S_STAMP = 76

T = 1
V_DF, V_DR = 16, 22
V_FA, V_FT, V_XA, V_XT = 34, 36, 40, 44
V_ONES, V_EPS = 52, 56
V_C192, V_CQ, V_NEGM, V_L, V_PM, V_LANE16 = 60, 61, 62, 63, 64, 65
V_PFB, V_PF, V_P = 66, 68, 72
V_S1, V_M1, V_G1 = 76, 80, 84
V_TILE = [88, 104]
V_SS = [120, 124]
V_RS = [128, 132]
V_QK, V_W = 136, 160
V_JUNK = 232
V_E = 236
A_O, A_FA, A_FT, A_XA, A_XT = 0, 48, 72, 96, 144


def srd(e, r, base, size, add=None):
    if add is None:
        e("s_mov_b32 %s, %s" % (s(r), s(base)))
        e("s_mov_b32 %s, %s" % (s(r + 1), s(base + 1)))
    else:
        e("s_add_u32 %s, %s, %s" % (s(r), s(base), add))
        e("s_addc_u32 %s, %s, 0" % (s(r + 1), s(base + 1)))
    e("s_mov_b32 %s, %d" % (s(r + 2), size))
    e("s_mov_b32 %s, 0x20000" % s(r + 3))


def weave(e, mfmas, fillers, start=0, per_gap=2):
    fillers = list(fillers)
    for i, m in enumerate(mfmas):
        m()
        if i >= start:
            budget = per_gap
            while fillers and fillers[0][1] <= budget:
                fn, c = fillers.pop(0)
                fn()
                budget -= c
    return fillers


def flush(fillers):
    for fn, _ in fillers:
        fn()


def I(e, text, cost=1):
    return (lambda: e(text), cost)


class Gen:
    def __init__(self, args):
        self.a = args
        self.pol = args.pol
        self.nstamp = 0

    def stamp(self, e, idx):
        if self.a.stamps:
            e("s_memrealtime %s" % s(S_STAMP + 2 * idx, 2))
            e("s_waitcnt lgkmcnt(0)")
            e.ds_done = len(e.ds)
            self.nstamp = max(self.nstamp, idx + 1)

    def mfma(self, e, d, a, b, c):
        e("v_mfma_f32_16x16x32_bf16 %s, %s, %s, %s" % (d, a, b, c))

    def lane_ids(self, e):
        e("v_lshrrev_b32 %s, 6, v0" % v(T))
        e("v_and_b32 v0, 63, v0")
        e("v_readfirstlane_b32 %s, %s" % (s(S_WAVE), v(T)))
        e("v_lshlrev_b32 %s, 4, v0" % v(V_LANE16))

    def dma_f_offsets(self, e):
        e("v_lshrrev_b32 %s, 2, v0" % v(T))
        e("v_and_b32 %s, 14, %s" % (v(T), v(T)))
        for e0 in range(3):
            k = sum((((8 * e0 + h) // 3) >> 1) << (2 * h) for h in range(8))
            e("s_mov_b32 %s, 0x%x" % (s(S_T0), k))
            e("v_bfe_u32 %s, %s, %s, 2" % (v(T + 1), s(S_T0), v(T)))
            e("v_lshlrev_b32 %s, 5, %s" % (v(T + 1), v(T + 1)))
            e("v_xor_b32 %s, %s, %s" % (v(V_DF + e0), v(V_LANE16), v(T + 1)))
        e("v_xor_b32 %s, 16, %s" % (v(V_DF + 3), v(V_DF)))
        e("v_xor_b32 %s, 0x1010, %s" % (v(V_DF + 4), v(V_DF + 1)))
        e("v_xor_b32 %s, 0x1010, %s" % (v(V_DF + 5), v(V_DF + 2)))

    def dma_r_offsets(self, e):
        e("v_lshrrev_b32 %s, 3, v0" % v(T))
        e("v_and_b32 %s, 6, %s" % (v(T), v(T)))
        for e0 in range(3):
            k = sum(((4 * e0 + g) // 3) << (2 * g) for g in range(4))
            e("s_mov_b32 %s, 0x%x" % (s(S_T0), k))
            e("v_bfe_u32 %s, %s, %s, 2" % (v(T + 1), s(S_T0), v(T)))
            e("v_lshlrev_b32 %s, 5, %s" % (v(T + 1), v(T + 1)))
            e("v_xor_b32 %s, %s, %s" % (v(V_DR + e0), v(V_LANE16), v(T + 1)))
        for ee in range(3, 12):
            c = [0, 128, 16, 144][ee // 3] | ((ee - ee % 4) * 1024)
            e("v_xor_b32 %s, 0x%x, %s" % (v(V_DR + ee), c, v(V_DR + ee % 3)))

    def lds_read_addrs(self, e):
        i_, g_, pg, rho, lo, t0, t1 = T, T + 1, T + 2, T + 3, T + 4, T + 5, T + 6
        e("v_and_b32 %s, 15, v0" % v(i_))
        e("v_lshrrev_b32 %s, 4, v0" % v(g_))
        e("v_lshrrev_b32 %s, 1, %s" % (v(t0), v(g_)))
        e("v_and_b32 %s, 1, %s" % (v(pg), v(g_)))
        e("v_lshl_or_b32 %s, %s, 1, %s" % (v(pg), v(pg), v(t0)))
        e("v_lshrrev_b32 %s, 2, v0" % v(rho))
        e("v_bfe_u32 %s, v0, 1, 1" % v(lo))
        e("v_lshrrev_b32 %s, 3, %s" % (v(t0), v(i_)))
        e("v_and_or_b32 %s, %s, 6, %s" % (v(t0), v(i_), v(t0)))
        e("v_xor_b32 %s, %s, %s" % (v(t0), v(t0), v(pg)))
        e("v_mul_u32_u24 %s, 384, %s" % (v(t1), v(i_)))
        e("v_lshl_add_u32 %s, %s, 4, %s" % (v(t0), v(t0), v(t1)))
        e("v_add_u32 %s, %s, %s" % (v(V_FA), s(S_LF), v(t0)))
        e("v_xor_b32 %s, 64, %s" % (v(V_FA + 1), v(V_FA)))
        e("v_lshrrev_b32 %s, 3, %s" % (v(t0), v(i_)))
        e("v_and_b32 %s, 7, %s" % (v(t1), v(i_)))
        e("v_lshl_or_b32 %s, %s, 1, %s" % (v(t0), v(t1), v(t0)))
        e("v_xor_b32 %s, %s, %s" % (v(t0), v(t0), v(pg)))
        e("v_mul_u32_u24 %s, 768, %s" % (v(t1), v(i_)))
        e("v_lshl_add_u32 %s, %s, 4, %s" % (v(t0), v(t0), v(t1)))
        e("v_add_u32 %s, %s, %s" % (v(V_XA), s(S_LR0), v(t0)))
        for x in range(1, 4):
            e("v_xor_b32 %s, 0x%x, %s" % (v(V_XA + x), x * 64, v(V_XA)))
        e("v_and_b32 %s, 1, v0" % v(g_))
        e("v_lshlrev_b32 %s, 3, %s" % (v(g_), v(g_)))
        e("v_lshrrev_b32 %s, 3, %s" % (v(t0), v(rho)))
        e("v_and_or_b32 %s, %s, 6, %s" % (v(t0), v(rho), v(t0)))
        e("v_xor_b32 %s, %s, %s" % (v(t0), v(t0), v(lo)))
        e("v_mul_u32_u24 %s, 384, %s" % (v(t1), v(rho)))
        e("v_lshl_add_u32 %s, %s, 4, %s" % (v(t0), v(t0), v(t1)))
        e("v_add3_u32 %s, %s, %s, %s" % (v(V_FT), s(S_LF), v(t0), v(g_)))
        for x in range(1, 4):
            e("v_xor_b32 %s, 0x%x, %s" % (v(V_FT + x), x * 32, v(V_FT)))
        e("v_lshrrev_b32 %s, 3, %s" % (v(t0), v(rho)))
        e("v_and_b32 %s, 7, %s" % (v(t1), v(rho)))
        e("v_lshl_or_b32 %s, %s, 1, %s" % (v(t0), v(t1), v(t0)))
        e("v_xor_b32 %s, %s, %s" % (v(t0), v(t0), v(lo)))
        e("v_mul_u32_u24 %s, 768, %s" % (v(t1), v(rho)))
        e("v_lshl_add_u32 %s, %s, 4, %s" % (v(t0), v(t0), v(t1)))
        e("v_add3_u32 %s, %s, %s, %s" % (v(V_XT), s(S_LR0), v(t0), v(g_)))
        for x in range(1, 8):
            e("v_xor_b32 %s, 0x%x, %s" % (v(V_XT + x), x * 32, v(V_XT)))

    def consts(self, e):
        for r in range(4):
            e("v_mov_b32 %s, 0x3f803f80" % v(V_ONES + r))
            e("v_mov_b32 %s, %s" % (v(V_EPS + r), fl(EPSQ_VAL)))
            e("s_mov_b32 %s, 0x%x" % (s(S_MASK + 2 * r), (1 + (1 << 20)) << r))
            e("s_mov_b32 %s, 0x%x" % (s(S_MASK + 2 * r + 1), ((1 << 8) + (1 << 28)) << r))
        e("v_mov_b32 %s, %s" % (v(V_C192), fl(192.0)))

    def xch_write_addr(self, e, dst, base):
        e("v_lshrrev_b32 %s, 5, v0" % v(T))
        e("v_lshlrev_b32 %s, 8, %s" % (v(T), v(T)))
        e("v_and_b32 %s, 15, v0" % v(T + 1))
        e("v_lshl_add_u32 %s, %s, 4, %s" % (v(T), v(T + 1), v(T)))
        e("v_bfe_u32 %s, v0, 4, 1" % v(T + 1))
        e("v_lshl_add_u32 %s, %s, 3, %s" % (v(T), v(T + 1), v(T)))
        e("s_mul_i32 %s, %s, 1536" % (s(S_T0), s(S_WAVE)))
        e("s_add_u32 %s, %s, %d" % (s(S_T0), s(S_T0), base))
        e("v_add_u32 %s, %s, %s" % (v(dst), s(S_T0), v(T)))

    def diag(self, e, g, h, out):
        f = []
        for r in range(4):
            if h is not None:
                f.append(I(e, "v_fma_f32 %s, %s, 2.0, %s" % (v(g + r), v(h + r), v(g + r))))
        f.append(I(e, "v_cndmask_b32 %s, 0, %s, %s" % (v(out), v(g), s(S_MASK, 2))))
        for r in range(1, 4):
            f.append(I(e, "v_cndmask_b32 %s, %s, %s, %s" % (v(out), v(out), v(g + r), s(S_MASK + 2 * r, 2))))
        return f

    def dma_list(self, e, kind, k):
        out = []
        if kind == "F":
            n, voff, rs, lb, so, add = 6, V_DF, R_F1, S_LF, S_OF, k * 24576
        else:
            rho = int(kind[1])
            n, voff, rs, lb, so, add = 12, V_DR, R_F0, (S_LR0, S_LR1)[rho], S_OR, k * 49152 + rho * 196608
        sreg = {"F": S_T1, "R0": S_T2, "R1": S_T3}[kind]

        def one(ee):
            def fn():
                if ee % 4 == 0:
                    e("s_add_u32 m0, %s, %d" % (s(lb), ee * 1024))
                if ee == 0:
                    e("s_add_u32 %s, %s, %d" % (s(sreg), s(so), add))
                e.vmem((kind, k), "buffer_load_dwordx4 %s, %s, %s offen offset:%d %s lds" % (
                    v(voff + ee), s(rs, 4), s(sreg), (ee % 4) * 1024, self.pol))
            return fn
        for ee in range(n):
            out.append(one(ee))
        return out

    def issue(self, e, kind, k, extra):
        for j, fn in enumerate(self.dma_list(e, kind, k)):
            fn()
            if j % 2 == 1 and extra:
                extra.pop(0)()

    def phase_f(self, e, k, extra):
        e.wait_vm(("F", k))
        for st in range(6):
            e.lds(("fa", st), "ds_read_b128 %s, %s offset:%d" % (acc(A_FA + 4 * st, 4), v(V_FA + (st & 1)), (st >> 1) * 128))
        tr = []
        for n in range(12):
            tr.append((lambda n=n: e.lds("ft", "ds_read_b64_tr_b16 %s, %s offset:%d" % (
                acc(A_FT + 2 * n, 2), v(V_FT + (n & 3)), (n >> 2) * 128)), 1))
        ms = []
        for st in range(6):
            fa = acc(A_FA + 4 * st, 4)

            def g(st=st, fa=fa):
                e.wait_ds(("fa", st))
                self.mfma(e, v(V_G1, 4), fa, fa, v(V_G1, 4) if st else "0")
            ms.append(g)
            ms.append(lambda st=st, fa=fa: self.mfma(e, v(V_M1, 4), fa, v(V_ONES, 4), v(V_M1, 4) if st else "0"))
        flush(weave(e, ms, tr, 0, 2))
        e.wait_ds_all()
        if k < 3:
            self.issue(e, "F", k + 1, extra)
        if k == 0:
            self.finish_qk(e)
        for st in range(6):
            self.mfma(e, v(V_S1, 4), acc(A_FA + 4 * st, 4), v(V_QK + 4 * st, 4), v(V_S1, 4) if st else "0")

    def soft_a(self, e, t):
        S_, M_ = V_TILE[t], V_TILE[t] + 4
        f = []
        for r in range(4):
            f.append(I(e, "v_fma_f32 %s, -%s, %s, %s" % (v(V_RS[t] + r), v(M_ + r), v(M_ + r), v(V_SS[t] + r))))
        for r in range(4):
            f.append(I(e, "v_max_f32 %s, %s, %s" % (v(V_RS[t] + r), v(V_RS[t] + r), v(V_EPS))))
        for r in range(4):
            f.append(I(e, "v_rsq_f32 %s, %s" % (v(V_RS[t] + r), v(V_RS[t] + r)), 2))
        return f

    def soft_b(self, e, t, first):
        S_, M_ = V_TILE[t], V_TILE[t] + 4
        f = []
        for r in range(4):
            f.append(I(e, "v_fma_f32 %s, -%s, %s, %s" % (v(S_ + r), v(M_ + r), v(V_CQ), v(S_ + r))))
        for r in range(4):
            if first:
                f.append(I(e, "v_mul_f32 %s, %s, %s" % (v(S_ + r), v(S_ + r), v(V_RS[t] + r))))
            else:
                f.append(I(e, "v_fma_f32 %s, %s, %s, %s" % (v(S_ + r), v(S_ + r), v(V_RS[t] + r), v(V_NEGM))))
        f.append(I(e, "v_max3_f32 %s, %s, %s, %s" % (v(T), v(S_), v(S_ + 1), v(S_ + 2))))
        f.append(I(e, "v_max_f32 %s, %s, %s" % (v(T), v(T), v(S_ + 3))))
        if first:
            for sw in ("32", "16"):
                f.append(I(e, "v_mov_b32 %s, %s" % (v(T + 1), v(T))))
                f.append(I(e, "v_permlane%s_swap_b32 %s, %s" % (sw, v(T), v(T + 1))))
                f.append(I(e, "v_max_f32 %s, %s, %s" % (v(T), v(T), v(T + 1))))
            f.append(I(e, "v_sub_f32 %s, 0, %s" % (v(V_NEGM), v(T))))
            for r in range(4):
                f.append(I(e, "v_sub_f32 %s, %s, %s" % (v(S_ + r), v(S_ + r), v(T))))
        else:
            site = len(self.sites)
            self.sites.append(t)

            def chk():
                e("v_cmp_lt_f32 vcc, %s, %s" % (s(S_THR), v(T)))
                e("s_cbranch_vccnz L_site%d" % site)
                e("L_back%d:" % site)
            f.append((chk, 2))
        return f

    def soft_c(self, e, t, first, rho):
        S_, M_ = V_TILE[t], V_TILE[t] + 4
        P_ = V_TILE[t] + 8
        crit, late = [], []
        for r in range(4):
            crit.append(I(e, "v_exp_f32 %s, %s" % (v(P_ + r), v(S_ + r)), 2))
        for r in range(4):
            crit.append(I(e, "v_mul_f32 %s, %s, %s" % (v(S_ + r), v(P_ + r), v(V_RS[t] + r))))
        for r in range(4):
            if first and r == 0:
                late.append(I(e, "v_mov_b32 %s, %s" % (v(V_L), v(P_))))
                late.append(I(e, "v_mul_f32 %s, %s, %s" % (v(V_PM), v(S_), v(M_))))
            else:
                late.append(I(e, "v_add_f32 %s, %s, %s" % (v(V_L), v(V_L), v(P_ + r))))
                late.append(I(e, "v_fmac_f32 %s, %s, %s" % (v(V_PM), v(S_ + r), v(M_ + r))))
        for r in range(4):
            if rho == 0 and t == 0:
                late.append(I(e, "v_mov_b32 %s, %s" % (v(V_PF + r), v(S_ + r))))
            else:
                late.append(I(e, "v_add_f32 %s, %s, %s" % (v(V_PF + r), v(V_PF + r), v(S_ + r))))
        return crit, late

    def phase_r(self, e, k, rho, extra):
        kind = "R%d" % rho
        base = rho * (L_R1 - L_R0)
        first = (k == 0 and rho == 0)
        e.wait_vm((kind, k))
        for t in range(2):
            for st in range(6):
                v0 = 24 * t + 4 * st
                e.lds(("xa", t, st), "ds_read_b128 %s, %s offset:%d" % (
                    acc(A_XA + 24 * t + 4 * st, 4), v(V_XA + ((v0 & 12) >> 2)), (v0 & ~15) * 16 + base))
        tr = []
        for n in range(12):
            for t in range(2):
                vv = 24 * t + 2 * n
                tr.append((lambda n=n, t=t, vv=vv: e.lds("xt", "ds_read_b64_tr_b16 %s, %s offset:%d" % (
                    acc(A_XT + 4 * n + 2 * t, 2), v(V_XT + ((vv & 14) >> 1)), (vv & ~15) * 16 + base)), 1))

        def gh(t):
            ms = []
            G_, H_ = V_TILE[t] + 8, V_TILE[t] + 12
            for st in range(6):
                xa = acc(A_XA + 24 * t + 4 * st, 4)

                def g(st=st, xa=xa):
                    e.wait_ds(("xa", t, st))
                    self.mfma(e, v(G_, 4), xa, xa, v(G_ if st else V_G1, 4))
                ms.append(g)
                ms.append(lambda st=st, xa=xa: self.mfma(e, v(H_, 4), xa, acc(A_FA + 4 * st, 4), v(H_, 4) if st else "0"))
            return ms

        def msq(t):
            S_, M_ = V_TILE[t], V_TILE[t] + 4
            ms = []
            for st in range(6):
                ms.append(lambda st=st: self.mfma(e, v(M_, 4), acc(A_XA + 24 * t + 4 * st, 4), v(V_ONES, 4), v(M_ if st else V_M1, 4)))
            for st in range(6):
                ms.append(lambda st=st: self.mfma(e, v(S_, 4), acc(A_XA + 24 * t + 4 * st, 4), v(V_QK + 4 * st, 4), v(S_ if st else V_S1, 4)))
            return ms

        def ssm(t):
            return (lambda: e("v_mfma_f32_16x16x4_f32 %s, %s, %s, %s" % (v(V_SS[t], 4), v(T + 2 + t), v(V_C192), v(V_EPS, 4))), 2)

        def dg(t):
            return self.diag(e, V_TILE[t] + 8, V_TILE[t] + 12, T + 2 + t)

        left = weave(e, gh(0), tr, 0, 2)
        left = weave(e, msq(0), left + [(lambda: None, 0)] + dg(0) + [I(e, "s_nop 0"), I(e, "s_nop 0"), ssm(0)], 3 if not left else 0, 2)
        flush(left)
        e.wait_ds_all()
        if k < 3:
            self.issue(e, kind, k + 1, extra)
        c0, l0 = self.soft_c(e, 0, first, rho)
        q0 = self.soft_a(e, 0) + self.soft_b(e, 0, first) + c0
        left = weave(e, gh(1), q0, 3, 2)
        nl = sum(c for _, c in left)
        pad = l0[:max(0, 8 - nl)]
        rest = l0[len(pad):]
        left = weave(e, msq(1), left + pad + dg(1) + rest[:2] + [ssm(1)] + rest[2:], 0, 2)
        flush(left)
        c1, l1 = self.soft_c(e, 1, False, rho)
        flush(self.soft_a(e, 1) + self.soft_b(e, 1, False) + c1)
        for t in range(2):
            S_ = V_TILE[t]
            e("v_cvt_pk_bf16_f32 %s, %s, %s" % (v(V_P + 2 * t), v(S_), v(S_ + 1)))
            e("v_cvt_pk_bf16_f32 %s, %s, %s" % (v(V_P + 2 * t + 1), v(S_ + 2), v(S_ + 3)))
        if rho == 1:
            l1 = l1[8:] + [I(e, "v_cvt_pk_bf16_f32 %s, %s, %s" % (v(V_PFB), v(V_PF), v(V_PF + 1))),
                           I(e, "v_cvt_pk_bf16_f32 %s, %s, %s" % (v(V_PFB + 1), v(V_PF + 2), v(V_PF + 3)))] + l1[:8]
        ms = [(lambda n=n: self.mfma(e, acc(A_O + 4 * n, 4), acc(A_XT + 4 * n, 4), v(V_P, 4),
                                     "0" if first else acc(A_O + 4 * n, 4))) for n in range(12)]
        flush(weave(e, ms, l1, 0, 2))
        if rho == 1:
            for n in range(12):
                e("v_mfma_f32_16x16x16_bf16 %s, %s, %s, %s" % (
                    acc(A_O + 4 * n, 4), acc(A_FT + 2 * n, 2), v(V_PFB, 2), acc(A_O + 4 * n, 4)))

    def rare(self, e):
        for site, t in enumerate(self.sites):
            e("L_site%d:" % site)
            e("s_call_b64 %s, L_rare%d" % (s(S_RET, 2), t))
            e("s_branch L_back%d" % site)
        for t in range(2):
            r_ = Emit()
            r_("L_rare%d:" % t)
            r_("s_nop 7")
            r_("s_nop 7")
            for sw in ("32", "16"):
                r_("v_mov_b32 %s, %s" % (v(T + 1), v(T)))
                r_("v_permlane%s_swap_b32 %s, %s" % (sw, v(T), v(T + 1)))
                r_("v_max_f32 %s, %s, %s" % (v(T), v(T), v(T + 1)))
            r_("v_max_f32 %s, 0, %s" % (v(T), v(T)))
            r_("v_sub_f32 %s, %s, %s" % (v(V_NEGM), v(V_NEGM), v(T)))
            for r in range(4):
                r_("v_sub_f32 %s, %s, %s" % (v(V_TILE[t] + r), v(V_TILE[t] + r), v(T)))
            r_("v_sub_f32 %s, 0, %s" % (v(T), v(T)))
            r_("v_exp_f32 %s, %s" % (v(T), v(T)))
            tgt = [V_L, V_PM] + [V_PF + r for r in range(4)]
            if t == 1:
                tgt += [V_TILE[0] + r for r in range(4)]
            for x in tgt:
                r_("v_mul_f32 %s, %s, %s" % (v(x), v(x), v(T)))
            for n in range(48):
                r_("v_accvgpr_read_b32 %s, %s" % (v(T + 1), acc(A_O + n)))
                r_("v_mul_f32 %s, %s, %s" % (v(T + 1), v(T + 1), v(T)))
                r_("v_accvgpr_write_b32 %s, %s" % (acc(A_O + n), v(T + 1)))
            r_("s_nop 3")
            r_("s_setpc_b64 %s" % s(S_RET, 2))
            for ln in fix_hazards(r_.lines, "rare"):
                e(ln)

    def finish_qk(self, e):
        e.wait_vm("qk")
        for st in range(6):
            self.mfma(e, v(V_SS[0], 4), v(V_ONES, 4), v(V_QK + 4 * st, 4), v(V_SS[0], 4) if st else "0")
        e("v_mul_f32 %s, %s, %s" % (v(V_CQ), fl(1.0 / 192), v(V_SS[0])))

    def epilogue(self, e):
        XW, RD, AR = V_E, V_E + 1, V_E + 2
        ST = 16
        OT = 76
        FV, LS, PS, ONE = 32, 36, 40, 44
        for n in range(12):
            e.lds("x1", "ds_write_b128 %s, %s offset:%d" % (v(AR), acc(A_O + 4 * n, 4), n * 1024))
        e.lds("x1", "ds_write_b128 %s, %s" % (v(AR + 1), v(V_NEGM, 4)))
        e("v_mov_b32 %s, 1.0" % v(ONE))
        e.wait_ds_all()
        e("s_barrier")
        for w in range(4):
            e.lds(("st", w), "ds_read_b128 %s, %s offset:%d" % (v(ST + 4 * w, 4), v(AR + 2), w * 1024))
        for w in range(4):
            for t in range(3):
                e.lds(("o", w), "ds_read_b128 %s, %s offset:%d" % (v(OT + 12 * w + 4 * t, 4), v(RD), w * 12288 + t * 1024))
        e.wait_ds(("st", 3))
        NM = T + 8
        e("v_min3_f32 %s, %s, %s, %s" % (v(NM), v(ST), v(ST + 4), v(ST + 8)))
        e("v_min_f32 %s, %s, %s" % (v(NM), v(NM), v(ST + 12)))
        for w in range(4):
            e("v_sub_f32 %s, %s, %s" % (v(FV + w), v(NM), v(ST + 4 * w)))
        for w in range(4):
            e("v_exp_f32 %s, %s" % (v(FV + w), v(FV + w)))
        e("v_mul_f32 %s, %s, %s" % (v(T), v(FV), v(ST + 1)))
        e("v_mul_f32 %s, %s, %s" % (v(T + 1), v(FV), v(ST + 2)))
        for w in range(1, 4):
            e("v_fmac_f32 %s, %s, %s" % (v(T), v(FV + w), v(ST + 4 * w + 1)))
            e("v_fmac_f32 %s, %s, %s" % (v(T + 1), v(FV + w), v(ST + 4 * w + 2)))
        e.wait_ds(("o", 0))
        for j in range(2):
            e("v_mul_f32 %s, %s, %s" % (v(OT + j), v(OT + j), v(FV)))
        e("v_mfma_f32_16x16x4_f32 %s, %s, %s, 0" % (v(LS, 4), v(ONE), v(T)))
        e("v_mfma_f32_16x16x4_f32 %s, %s, %s, 0" % (v(PS, 4), v(ONE), v(T + 1)))
        for j in range(2, 12):
            e("v_mul_f32 %s, %s, %s" % (v(OT + j), v(OT + j), v(FV)))
        for w in range(1, 4):
            e.wait_ds(("o", w))
            for j in range(12):
                e("v_fmac_f32 %s, %s, %s" % (v(OT + j), v(OT + 12 * w + j), v(FV + w)))
            if w == 1:
                e("v_rcp_f32 %s, %s" % (v(T + 2), v(LS)))
                e("v_log_f32 %s, %s" % (v(T + 3), v(LS)))
            if w == 2:
                e("v_mul_f32 %s, %s, %s" % (v(T + 4), v(V_C192), v(T + 2)))
                e("v_mul_f32 %s, %s, %s" % (v(T + 5), v(PS), v(T + 2)))
                e("v_sub_f32 %s, %s, %s" % (v(T + 3), v(T + 3), v(NM)))
        for j in range(12):
            e("v_fma_f32 %s, %s, %s, -%s" % (v(OT + j), v(OT + j), v(T + 4), v(T + 5)))
        for t in range(3):
            e("v_cvt_pk_bf16_f32 %s, %s, %s" % (v(OT + 12 + 2 * t), v(OT + 4 * t), v(OT + 4 * t + 1)))
            e("v_cvt_pk_bf16_f32 %s, %s, %s" % (v(OT + 13 + 2 * t), v(OT + 4 * t + 2), v(OT + 4 * t + 3)))
            e.lds("x2", "ds_write_b64 %s, %s offset:%d" % (v(XW), v(OT + 12 + 2 * t, 2), t * 512))
        e.wait_vm("wvo")
        e.wait_ds_all()
        e("s_barrier")
        B = V_QK
        for st in range(6):
            e.lds(("b", st), "ds_read_b128 %s, %s offset:%d" % (v(B + 4 * st, 4), v(AR + 3), st * 1024))
        D = 16
        for st in range(6):
            e.wait_ds(("b", st))
            for t in range(3):
                self.mfma(e, v(D + 4 * t, 4), v(V_W + (t * 6 + st) * 4, 4), v(B + 4 * st, 4), v(D + 4 * t, 4) if st else "0")
        O_ = 32
        e("v_mov_b32 %s, %s" % (v(O_ + 3), v(T + 3)))
        e("v_mov_b32 %s, %s" % (v(O_ + 7), v(T + 3)))
        for j in range(6):
            e("v_cvt_pk_bf16_f32 %s, %s, %s" % (v(O_ + j + j // 3), v(D + 2 * j), v(D + 2 * j + 1)))
        e.vmem("out", "buffer_store_dwordx4 %s, %s, %s, %s offen" % (v(O_, 4), v(AR + 4), s(R_WS, 4), s(S_T0)))
        e.vmem("out", "buffer_store_dwordx4 %s, %s, %s, %s offen offset:64" % (v(O_ + 4, 4), v(AR + 4), s(R_WS, 4), s(S_T0)))

    def epilogue_addrs(self, e):
        XW, RD, AR = V_E, V_E + 1, V_E + 2
        self.xch_write_addr(e, XW, L_XA)
        e("s_mul_i32 %s, %s, 3072" % (s(S_T0), s(S_WAVE)))
        e("s_add_u32 %s, %s, %d" % (s(S_T0), s(S_T0), L_R0))
        e("v_add_u32 %s, %s, %s" % (v(RD), s(S_T0), v(V_LANE16)))
        e("v_add_u32 %s, %s, %s" % (v(AR), s(S_LR0), v(V_LANE16)))
        e("s_lshl_b32 %s, %s, 10" % (s(S_T0), s(S_WAVE)))
        e("v_add_u32 %s, %d, %s" % (v(AR + 2), L_ST, v(V_LANE16)))
        e("v_add_u32 %s, %s, %s" % (v(AR + 1), s(S_T0), v(AR + 2)))
        e("v_add_u32 %s, %d, %s" % (v(AR + 3), L_XA, v(V_LANE16)))
        e("v_and_b32 %s, 15, v0" % v(T))
        e("v_lshlrev_b32 %s, 17, %s" % (v(T), v(T)))
        e("v_and_b32 %s, 48, v0" % v(T + 1))
        e("v_add_u32 %s, %s, %s" % (v(AR + 4), v(T), v(T + 1)))

    def code_prefetch(self, e, start, end):
        e("s_getpc_b64 %s" % s(S_RET, 2))
        e("L_pc_%s:" % start)
        e("v_lshlrev_b32 %s, 7, v0" % v(V_JUNK + 1))
        e("v_min_u32 %s, %s - L_pc_%s - 4, %s" % (v(V_JUNK + 1), end, start, v(V_JUNK + 1)))
        e.vmem("pf", "global_load_dword %s, %s, %s" % (v(V_JUNK), v(V_JUNK + 1), s(S_RET, 2)))

    def write_stamps(self, e):
        if not self.a.stamps:
            return
        n = 12
        e("s_getreg_b32 %s, hwreg(HW_REG_XCC_ID)" % s(S_T1))
        for j in range(n):
            src = s(S_STAMP + 2 * j) if j < self.nstamp else "0"
            if j == n - 1:
                src = s(S_T1)
            e("v_mov_b32 %s, %s" % (v(200 + j), src))
        e("s_lshl_b32 %s, s2, 2" % s(S_T1))
        e("s_add_u32 %s, %s, %s" % (s(S_T1), s(S_T1), s(S_WAVE)))
        e("s_mul_i32 %s, %s, %d" % (s(S_T1), s(S_T1), n * 4))
        e("s_add_u32 %s, %s, %d" % (s(S_T1), s(S_T1), WS_STAMP))
        e("v_mov_b32 %s, 0" % v(T))
        e("v_cmp_eq_u32 vcc, 0, v0")
        e("s_and_saveexec_b64 %s, vcc" % s(S_RET, 2))
        for j in range(n // 4):
            e("buffer_store_dwordx4 %s, %s, %s, %s offen offset:%d" % (v(200 + 4 * j, 4), v(T), s(R_WS, 4), s(S_T1), 16 * j))

    def k_main(self):
        e = Emit()
        self.sites = []
        self.nstamp = 0
        e("s_cmp_ge_u32 s2, 256")
        e("s_cbranch_scc1 L_main_end")
        e("s_load_dwordx16 s[4:19], s[0:1], 0")
        e("s_load_dwordx4 s[20:23], s[0:1], 64")
        self.code_prefetch(e, "main", "L_main_codeend")
        self.lane_ids(e)
        self.dma_f_offsets(e)
        self.dma_r_offsets(e)
        e("s_mul_i32 %s, %s, 6144" % (s(S_OF), s(S_WAVE)))
        e("s_mul_i32 %s, %s, 12288" % (s(S_OR), s(S_WAVE)))
        e("s_add_u32 %s, %s, %d" % (s(S_LF), s(S_OF), L_F))
        e("s_add_u32 %s, %s, %d" % (s(S_LR0), s(S_OR), L_R0))
        e("s_add_u32 %s, %s, %d" % (s(S_LR1), s(S_OR), L_R1))
        e("s_mul_i32 %s, s2, 393216" % s(S_T0))
        e("s_mul_i32 %s, s2, 98304" % s(S_T1))
        e("s_waitcnt lgkmcnt(0)")
        srd(e, R_F1, S_F1, 98304, s(S_T1))
        srd(e, R_F0, S_F0, 393216, s(S_T0))
        srd(e, R_WS, S_WS, WS_SIZE)
        self.stamp(e, 0)
        self.issue(e, "F", 0, [])
        e("s_movk_i32 %s, 0x1000" % s(S_T0))
        for st in range(6):
            e.vmem("qk", "buffer_load_dwordx4 %s, %s, %s, %s offen offset:%d" % (
                v(V_QK + 4 * st, 4), v(V_LANE16), s(R_WS, 4), s(S_T0) if st >= 4 else "0", WS_QK + (st % 4) * 1024))
        self.issue(e, "R0", 0, [])
        self.lds_read_addrs(e)
        self.consts(e)
        self.epilogue_addrs(e)
        e("s_mov_b32 %s, %s" % (s(S_THR), fl(THR)))
        self.issue(e, "R1", 0, [])
        self.stamp(e, 1)
        e("s_mul_i32 %s, %s, 18432" % (s(60), s(S_WAVE)))
        extra = []
        for j in range(18):
            def ld(j=j):
                if j % 4 == 0:
                    e("s_add_u32 %s, %s, %d" % (s(61), s(60), WS_WVO + j * 1024))
                e.vmem("wvo", "buffer_load_dwordx4 %s, %s, %s, %s offen offset:%d" % (
                    v(V_W + 4 * j, 4), v(V_LANE16), s(R_WS, 4), s(61), (j % 4) * 1024))
            extra.append(ld)
        for k in range(4):
            self.phase_f(e, k, extra if k > 0 else [])
            if k == 0:
                self.stamp(e, 2)
            self.phase_r(e, k, 0, extra)
            if k == 3:
                self.stamp(e, 5)
                e.wait_vm(("R1", 3))
                self.stamp(e, 6)
            self.phase_r(e, k, 1, extra)
            if k in (0, 1):
                self.stamp(e, 3 + k)
        assert not extra
        self.stamp(e, 7)
        e("s_lshl_b32 %s, %s, 15" % (s(S_T0), s(S_WAVE)))
        e("s_lshl_b32 %s, s2, 7" % s(S_T1))
        e("s_add_u32 %s, %s, %s" % (s(S_T0), s(S_T0), s(S_T1)))
        e("s_add_u32 %s, %s, %d" % (s(S_T0), s(S_T0), WS_PART))
        self.epilogue(e)
        self.stamp(e, 8)
        if self.a.stamps:
            e("s_waitcnt vmcnt(0)")
            self.stamp(e, 9)
        self.write_stamps(e)
        e("L_main_end:")
        e("s_endpgm")
        e.lines = fix_hazards(e.lines, "main", self.a.verbose)
        self.rare(e)
        e("L_main_codeend:")
        return e.lines

    def k_prep(self):
        e = Emit()
        e("s_cmp_ge_u32 s2, 25")
        e("s_cbranch_scc1 L_prep_end")
        e("s_load_dwordx16 s[4:19], s[0:1], 0")
        e("s_load_dwordx4 s[20:23], s[0:1], 64")
        self.lane_ids(e)
        e("s_waitcnt lgkmcnt(0)")
        srd(e, R_WS, S_WS, WS_SIZE)
        e("s_cmp_eq_u32 s2, 24")
        e("s_cbranch_scc1 L_prep_qk")
        e("s_cmp_lg_u32 %s, 0" % s(S_WAVE))
        e("s_cbranch_scc1 L_prep_end")
        head = e.lines
        a = Emit()
        self.wvo_role(a)
        a("s_endpgm")
        b = Emit()
        b("L_prep_qk:")
        self.qk_role(b)
        b("L_prep_end:")
        b("s_endpgm")
        return fix_hazards(head + a.lines, "prep_wvo", self.a.verbose) + fix_hazards(b.lines, "prep_qk", self.a.verbose)

    def wvo_role(self, e):
        SW, SS_ = 62, 63
        e("s_mul_i32 %s, s2, 43" % s(SW))
        e("s_lshr_b32 %s, %s, 8" % (s(SW), s(SW)))
        e("s_mul_i32 %s, %s, 6" % (s(S_T0), s(SW)))
        e("s_sub_u32 %s, s2, %s" % (s(SS_), s(S_T0)))
        srd(e, R_A, S_WV, 73728)
        srd(e, R_B, S_WO, 73728)
        DO, WA, AV, BF, D = 16, 20, 184, 76, 160
        for e0 in range(3):
            e("v_add_u32 %s, %d, v0" % (v(T), 64 * e0))
            e("v_mul_u32_u24 %s, 10923, %s" % (v(T), v(T)))
            e("v_lshrrev_b32 %s, 16, %s" % (v(T), v(T)))
            e("v_mul_u32_u24 %s, 288, %s" % (v(T), v(T)))
            e("v_add_u32 %s, %s, %s" % (v(DO + e0), v(T), v(V_LANE16)))
        e("s_mul_i32 %s, %s, 96" % (s(S_T1), s(SW)))
        for j in range(18):
            if j % 3 == 0:
                e("s_mov_b32 m0, %d" % (L_SP + j * 1024))
                if j:
                    e("s_add_u32 %s, %s, 12288" % (s(S_T1), s(S_T1)))
                else:
                    e("s_nop 0")
            e.vmem("wo", "buffer_load_dwordx4 %s, %s, %s offen offset:%d lds" % (v(DO + j % 3), s(R_B, 4), s(S_T1), (j % 3) * 1024))
        e("v_bfe_u32 %s, v0, 2, 2" % v(T))
        e("v_and_b32 %s, 3, v0" % v(T + 1))
        e("v_lshl_add_u32 %s, %s, 3, %s" % (v(T), v(T), v(T + 1)))
        e("v_mul_u32_u24 %s, 384, %s" % (v(T), v(T)))
        e("v_and_b32 %s, 48, v0" % v(T + 1))
        e("v_add_u32 %s, %s, %s" % (v(WA), v(T), v(T + 1)))
        e("s_mul_i32 %s, %s, 12288" % (s(S_T2), s(SS_)))
        for h in range(2):
            for k in range(6):
                e.vmem("wv", "buffer_load_dwordx4 %s, %s, %s, %s offen offset:%d" % (
                    v(AV + (h * 6 + k) * 4, 4), v(WA), s(R_A, 4), s(S_T2), h * 1536 + k * 64))
        e("v_lshrrev_b32 %s, 4, v0" % v(T))
        e("v_bfe_u32 %s, v0, 2, 2" % v(T + 1))
        e("v_lshl_add_u32 %s, %s, 3, %s" % (v(T), v(T), v(T + 1)))
        e("v_mul_u32_u24 %s, 96, %s" % (v(T), v(T)))
        e("v_and_b32 %s, 3, v0" % v(T + 1))
        e("v_mul_u32_u24 %s, 24, %s" % (v(T + 1), v(T + 1)))
        e("v_add_u32 %s, %s, %s" % (v(T), v(T), v(T + 1)))
        e("v_add_u32 %s, %d, %s" % (v(WA + 1), L_SP, v(T)))
        e.wait_vm("wo")
        for t in range(3):
            for k in range(6):
                for h in range(2):
                    e.lds(("b", t, k), "ds_read_b64_tr_b16 %s, %s offset:%d" % (
                        v(BF + (t * 6 + k) * 4 + 2 * h, 2), v(WA + 1), (32 * k + 4 * h) * 96 + 8 * t))
        e.wait_vm("wv")
        for t in range(3):
            for k in range(6):
                e.wait_ds(("b", t, k))
                for h in range(2):
                    d = D + (t * 2 + h) * 4
                    self.mfma(e, v(d, 4), v(AV + (h * 6 + k) * 4, 4), v(BF + (t * 6 + k) * 4, 4), v(d, 4) if k else "0")
        e("s_mul_i32 %s, %s, 18432" % (s(S_T0), s(SW)))
        e("s_lshl_b32 %s, %s, 10" % (s(S_T1), s(SS_)))
        e("s_add_u32 %s, %s, %s" % (s(S_T0), s(S_T0), s(S_T1)))
        e("s_add_u32 %s, %s, %d" % (s(S_T0), s(S_T0), WS_WVO))
        for t in range(3):
            for j in range(4):
                e("v_cvt_pk_bf16_f32 %s, %s, %s" % (v(AV + 4 * t + j), v(D + t * 8 + 2 * j), v(D + t * 8 + 2 * j + 1)))
            e.vmem("st", "buffer_store_dwordx4 %s, %s, %s, %s offen" % (v(AV + 4 * t, 4), v(V_LANE16), s(R_WS, 4), s(S_T0)))
            if t < 2:
                e("s_add_u32 %s, %s, 6144" % (s(S_T0), s(S_T0)))

    def qk_role(self, e):
        QF, AF, KF, D, CS, XW, RA = 136, 160, 76, 16, 28, 40, 44
        srd(e, R_A, S_WQ, 73728)
        srd(e, R_B, S_WK, 73728)
        srd(e, R_C, S_Q, 6144)
        self.dma_f_offsets(e)
        e("s_mul_i32 %s, %s, 18432" % (s(S_T1), s(S_WAVE)))
        for j in range(18):
            ee = j % 6
            if ee == 0 and j:
                e("s_add_u32 %s, %s, 6144" % (s(S_T1), s(S_T1)))
            if ee % 4 == 0:
                e("s_add_u32 m0, %s, %d" % (s(S_T1), L_R1 + ee * 1024))
                e("s_nop 0")
            e.vmem("wq", "buffer_load_dwordx4 %s, %s, %s offen offset:%d lds" % (v(V_DF + ee), s(R_A, 4), s(S_T1), (ee % 4) * 1024))
        e("v_and_b32 %s, 15, v0" % v(T))
        e("v_mul_u32_u24 %s, 384, %s" % (v(T), v(T)))
        e("v_and_b32 %s, 48, v0" % v(T + 1))
        e("v_add_u32 %s, %s, %s" % (v(RA), v(T), v(T + 1)))
        for k in range(6):
            e.vmem("q", "buffer_load_dwordx4 %s, %s, %s, 0 offen offset:%d" % (v(QF + 4 * k, 4), v(RA), s(R_C, 4), 64 * k))
        e("s_mul_i32 %s, %s, 18432" % (s(S_T1), s(S_WAVE)))
        for t in range(3):
            for k in range(6):
                e.vmem("wk", "buffer_load_dwordx4 %s, %s, %s, %s offen offset:%d" % (
                    acc(KF + (t * 6 + k) * 4, 4), v(RA), s(R_B, 4), s(S_T1), 64 * k))
            if t < 2:
                e("s_add_u32 %s, %s, 6144" % (s(S_T1), s(S_T1)))
        self.consts(e)
        self.xch_write_addr(e, XW, L_XA)
        TA = 46
        e("v_lshrrev_b32 %s, 4, v0" % v(T))
        e("v_bfe_u32 %s, v0, 2, 2" % v(T + 1))
        e("v_lshl_add_u32 %s, %s, 3, %s" % (v(T + 2), v(T), v(T + 1)))
        e("v_mul_u32_u24 %s, 384, %s" % (v(T + 2), v(T + 2)))
        e("v_and_b32 %s, 1, v0" % v(T + 3))
        e("v_lshl_add_u32 %s, %s, 3, %s" % (v(T + 2), v(T + 3), v(T + 2)))
        e("v_add_u32 %s, %d, %s" % (v(T + 2), L_R1, v(T + 2)))
        e("v_and_b32 %s, 2, %s" % (v(T + 1), v(T + 1)))
        e("v_and_or_b32 %s, %s, 1, %s" % (v(T + 1), v(T), v(T + 1)))
        e("v_bfe_u32 %s, v0, 1, 1" % v(T + 3))
        e("v_xor_b32 %s, %s, %s" % (v(T + 1), v(T + 1), v(T + 3)))
        e("s_mul_i32 %s, %s, 6" % (s(S_T0), s(S_WAVE)))
        for t in range(3):
            e("s_add_u32 %s, %s, %d" % (s(S_T1), s(S_T0), 2 * t))
            e("v_xor_b32 %s, %s, %s" % (v(T + 3), s(S_T1), v(T + 1)))
            e("v_lshl_add_u32 %s, %s, 4, %s" % (v(TA + 2 * t), v(T + 3), v(T + 2)))
            e("v_xor_b32 %s, 64, %s" % (v(TA + 2 * t + 1), v(TA + 2 * t)))
        e.wait_vm("q")
        G_, M_, SQ = 88, 92, 96
        for k in range(6):
            self.mfma(e, v(G_, 4), v(QF + 4 * k, 4), v(QF + 4 * k, 4), v(G_, 4) if k else "0")
            self.mfma(e, v(M_, 4), v(V_ONES, 4), v(QF + 4 * k, 4), v(M_, 4) if k else "0")
        e("s_barrier")
        for t in range(3):
            for k in range(6):
                for h in range(2):
                    e.lds(("a", t, k), "ds_read_b64_tr_b16 %s, %s offset:%d" % (
                        v(AF + (t * 6 + k) * 4 + 2 * h, 2), v(TA + 2 * t + h), 12288 * k + 1536 * h))
        flush(self.diag(e, G_, None, T + 2))
        e("v_mfma_f32_16x16x4_f32 %s, %s, %s, %s" % (v(SQ, 4), v(V_C192), v(T + 2), v(V_EPS, 4)))
        for t in range(3):
            for k in range(6):
                e.wait_ds(("a", t, k))
                af = v(AF + (t * 6 + k) * 4, 4)
                self.mfma(e, v(D + 4 * t, 4), af, v(QF + 4 * k, 4), v(D + 4 * t, 4) if k else "0")
                self.mfma(e, v(CS + 4 * t, 4), af, v(V_ONES, 4), v(CS + 4 * t, 4) if k else "0")
        e("v_fma_f32 %s, -%s, %s, %s" % (v(T + 4), v(M_), v(M_), v(SQ)))
        e("v_max_f32 %s, %s, %s" % (v(T + 4), v(T + 4), v(V_EPS)))
        e("v_rsq_f32 %s, %s" % (v(T + 4), v(T + 4)))
        e("v_mul_f32 %s, %s, %s" % (v(T + 5), fl(1.0 / 192), v(M_)))
        e("v_mul_f32 %s, %s, %s" % (v(T + 4), v(V_C192), v(T + 4)))
        for j in range(12):
            e("v_fma_f32 %s, -%s, %s, %s" % (v(D + j), v(T + 5), v(CS + j), v(D + j)))
        for j in range(12):
            e("v_mul_f32 %s, %s, %s" % (v(D + j), v(D + j), v(T + 4)))
        for t in range(3):
            e("v_cvt_pk_bf16_f32 %s, %s, %s" % (v(CS + 2 * t), v(D + 4 * t), v(D + 4 * t + 1)))
            e("v_cvt_pk_bf16_f32 %s, %s, %s" % (v(CS + 2 * t + 1), v(D + 4 * t + 2), v(D + 4 * t + 3)))
            e.lds("x", "ds_write_b64 %s, %s offset:%d" % (v(XW), v(CS + 2 * t, 2), t * 512))
        e("v_add_u32 %s, %d, %s" % (v(T + 6), L_XA, v(V_LANE16)))
        e.wait_ds_all()
        e("s_barrier")
        for k in range(6):
            e.lds(("b", k), "ds_read_b128 %s, %s offset:%d" % (v(QF + 4 * k, 4), v(T + 6), 1024 * k))
        e.wait_vm("wk")
        for k in range(6):
            e.wait_ds(("b", k))
            for t in range(3):
                self.mfma(e, v(D + 4 * t, 4), acc(KF + (t * 6 + k) * 4, 4), v(QF + 4 * k, 4), v(D + 4 * t, 4) if k else "0")
        for j in range(12):
            e("v_mul_f32 %s, %s, %s" % (v(D + j), fl(QSCALE), v(D + j)))
        for t in range(3):
            e("v_cvt_pk_bf16_f32 %s, %s, %s" % (v(CS + 2 * t), v(D + 4 * t), v(D + 4 * t + 1)))
            e("v_cvt_pk_bf16_f32 %s, %s, %s" % (v(CS + 2 * t + 1), v(D + 4 * t + 2), v(D + 4 * t + 3)))
            e.lds("x", "ds_write_b64 %s, %s offset:%d" % (v(XW), v(CS + 2 * t, 2), (L_XB - L_XA) + t * 512))
        e("v_lshrrev_b32 %s, 5, v0" % v(T))
        e("v_bfe_u32 %s, v0, 4, 1" % v(T + 1))
        e("v_lshl_or_b32 %s, %s, 1, %s" % (v(T), v(T + 1), v(T)))
        e("v_and_b32 %s, 15, v0" % v(T + 1))
        e("v_lshlrev_b32 %s, 4, %s" % (v(T + 1), v(T + 1)))
        e("v_lshl_add_u32 %s, %s, 8, %s" % (v(T), v(T), v(T + 1)))
        e("v_add_u32 %s, %d, %s" % (v(T), L_XB, v(T)))
        e.wait_ds_all()
        e("s_barrier")
        e("s_cmp_lg_u32 %s, 0" % s(S_WAVE))
        e("s_cbranch_scc1 L_prep_end")
        for k in range(6):
            e.lds("c", "ds_read_b128 %s, %s offset:%d" % (v(QF + 4 * k, 4), v(T), 1024 * k))
        e.wait_ds_all()
        e("s_movk_i32 %s, 0x1000" % s(S_T0))
        for k in range(6):
            e.vmem("st", "buffer_store_dwordx4 %s, %s, %s, %s offen offset:%d" % (
                v(QF + 4 * k, 4), v(V_LANE16), s(R_WS, 4), s(S_T0) if k >= 4 else "0", WS_QK + (k % 4) * 1024))

    def k_comb(self):
        e = Emit()
        DT, LAM, AC, X = 16, 48, 56, 64
        e("s_cmp_ge_u32 s2, 64")
        e("s_cbranch_scc1 L_comb_end")
        e("s_load_dwordx2 s[4:5], s[0:1], 0")
        e("s_load_dwordx2 s[18:19], s[0:1], 56")
        e("s_load_dwordx2 s[22:23], s[0:1], 72")
        self.lane_ids(e)
        e("s_lshl_b32 %s, s2, 15" % s(S_T0))
        e("s_lshl_b32 %s, %s, 13" % (s(S_T1), s(S_WAVE)))
        e("s_add_u32 %s, %s, %s" % (s(S_T0), s(S_T0), s(S_T1)))
        e("s_add_u32 %s, %s, %d" % (s(S_T0), s(S_T0), WS_PART))
        e("s_add_u32 %s, %s, 4096" % (s(S_T1), s(S_T0)))
        e("s_waitcnt lgkmcnt(0)")
        srd(e, R_WS, S_WS, WS_SIZE)
        for t in range(8):
            e.vmem(("d", t), "buffer_load_dwordx4 %s, %s, %s, %s offen offset:%d" % (
                v(DT + 4 * t, 4), v(V_LANE16), s(R_WS, 4), s(S_T0 + t // 4), (t % 4) * 1024))
        srd(e, R_A, S_Q, 6144)
        srd(e, R_B, S_OUT, 6144)
        e("v_mul_u32_u24 %s, 43, v0" % v(T))
        e("v_lshrrev_b32 %s, 7, %s" % (v(T), v(T)))
        e("v_mul_u32_u24 %s, 3, %s" % (v(T + 1), v(T)))
        e("v_sub_u32 %s, v0, %s" % (v(T + 1), v(T + 1)))
        e("v_and_b32 %s, 3, %s" % (v(T + 2), v(T)))
        e("v_mul_u32_u24 %s, 6, %s" % (v(T + 2), v(T + 2)))
        e("v_lshrrev_b32 %s, 2, %s" % (v(T + 3), v(T)))
        e("v_mul_u32_u24 %s, 3, %s" % (v(T + 3), v(T + 3)))
        e("v_add3_u32 %s, %s, %s, %s" % (v(T + 2), v(T + 2), v(T + 3), v(T + 1)))
        e("v_lshlrev_b32 %s, 2, %s" % (v(T + 2), v(T + 2)))
        e("v_lshlrev_b32 %s, 5, %s" % (v(T), v(T)))
        e("v_lshl_add_u32 %s, %s, 3, %s" % (v(T + 4), v(T + 1), v(T)))
        e("v_cmp_gt_u32 vcc, 24, v0")
        e("v_mov_b32 %s, 0x10000" % v(T + 3))
        e("s_mul_i32 %s, s2, 96" % s(S_T2))
        e("v_cndmask_b32 %s, %s, %s, vcc" % (v(T + 2), v(T + 3), v(T + 2)))
        e.vmem("q", "buffer_load_dword %s, %s, %s, %s offen" % (v(T + 5), v(T + 2), s(R_A, 4), s(S_T2)))
        e.wait_vm(("d", 7))
        MX = T + 6
        e("v_max3_f32 %s, %s, %s, %s" % (v(MX), v(DT + 3), v(DT + 7), v(DT + 11)))
        e("v_max3_f32 %s, %s, %s, %s" % (v(MX), v(MX), v(DT + 15), v(DT + 19)))
        e("v_max3_f32 %s, %s, %s, %s" % (v(MX), v(MX), v(DT + 23), v(DT + 27)))
        e("v_max_f32 %s, %s, %s" % (v(MX), v(MX), v(DT + 31)))
        e("v_max_f32_dpp %s, %s, %s row_ror:8 row_mask:0xf bank_mask:0xf" % (v(MX), v(MX), v(MX)))
        for sw in ("32", "16"):
            e("v_mov_b32 %s, %s" % (v(MX + 1), v(MX)))
            e("v_permlane%s_swap_b32 %s, %s" % (sw, v(MX), v(MX + 1)))
            e("v_max_f32 %s, %s, %s" % (v(MX), v(MX), v(MX + 1)))
        for t in range(8):
            e("v_sub_f32 %s, %s, %s" % (v(LAM + t), v(DT + 4 * t + 3), v(MX)))
        for t in range(8):
            e("v_exp_f32 %s, %s" % (v(LAM + t), v(LAM + t)))
        for t in range(8):
            for j in range(3):
                e("v_lshlrev_b32 %s, 16, %s" % (v(X + 2 * j), v(DT + 4 * t + j)))
                e("v_and_b32 %s, 0xffff0000, %s" % (v(X + 2 * j + 1), v(DT + 4 * t + j)))
            for j in range(6):
                e("%s %s, %s, %s" % ("v_fmac_f32" if t else "v_mul_f32", v(AC + j), v(X + j), v(LAM + t)))
            if t:
                e("v_add_f32 %s, %s, %s" % (v(LAM), v(LAM), v(LAM + t)))
        e("v_mov_b32 %s, %s" % (v(AC + 6), v(LAM)))
        e("v_mov_b32 %s, %s" % (v(AC + 7), v(MX)))
        for j in range(7):
            e("v_add_f32_dpp %s, %s, %s row_ror:8 row_mask:0xf bank_mask:0xf" % (v(AC + j), v(AC + j), v(AC + j)))
        for sw in ("16", "32"):
            for j in range(7):
                e("v_mov_b32 %s, %s" % (v(X + j), v(AC + j)))
            for j in range(7):
                e("v_permlane%s_swap_b32 %s, %s" % (sw, v(AC + j), v(X + j)))
            for j in range(7):
                e("v_add_f32 %s, %s, %s" % (v(AC + j), v(AC + j), v(X + j)))
        e("v_lshlrev_b32 %s, 5, v0" % v(X))
        e("s_lshl_b32 %s, %s, 8" % (s(S_T0), s(S_WAVE)))
        e("v_add_u32 %s, %s, %s" % (v(X), s(S_T0), v(X)))
        e("s_mov_b64 exec, 0xff")
        e.lds("w", "ds_write_b128 %s, %s" % (v(X), v(AC, 4)))
        e.lds("w", "ds_write_b128 %s, %s offset:16" % (v(X), v(AC + 4, 4)))
        e("s_mov_b64 exec, -1")
        e.wait_ds_all()
        e("s_barrier")
        e("s_cmp_lg_u32 %s, 0" % s(S_WAVE))
        e("s_cbranch_scc1 L_comb_end")
        e("v_and_b32 %s, 0xff, %s" % (v(T + 4), v(T + 4)))
        e("v_mov_b32 %s, 24" % v(T))
        for w in range(4):
            e.lds("r", "ds_read_b64 %s, %s offset:%d" % (v(DT + 2 * w, 2), v(T + 4), 256 * w))
            e.lds("r", "ds_read_b64 %s, %s offset:%d" % (v(DT + 8 + 2 * w, 2), v(T), 256 * w))
        e.wait_ds_all()
        e("v_max3_f32 %s, %s, %s, %s" % (v(MX), v(DT + 9), v(DT + 11), v(DT + 13)))
        e("v_max_f32 %s, %s, %s" % (v(MX), v(MX), v(DT + 15)))
        for w in range(4):
            e("v_sub_f32 %s, %s, %s" % (v(LAM + w), v(DT + 9 + 2 * w), v(MX)))
        for w in range(4):
            e("v_exp_f32 %s, %s" % (v(LAM + w), v(LAM + w)))
        for w in range(4):
            op = "v_fmac_f32" if w else "v_mul_f32"
            e("%s %s, %s, %s" % (op, v(AC + 2), v(DT + 8 + 2 * w), v(LAM + w)))
            e("%s %s, %s, %s" % (op, v(AC), v(DT + 2 * w), v(LAM + w)))
            e("%s %s, %s, %s" % (op, v(AC + 1), v(DT + 2 * w + 1), v(LAM + w)))
        e("v_rcp_f32 %s, %s" % (v(AC + 2), v(AC + 2)))
        e.wait_vm("q")
        e("v_lshlrev_b32 %s, 16, %s" % (v(X), v(T + 5)))
        e("v_and_b32 %s, 0xffff0000, %s" % (v(X + 1), v(T + 5)))
        e("v_fmac_f32 %s, %s, %s" % (v(X), v(AC), v(AC + 2)))
        e("v_fmac_f32 %s, %s, %s" % (v(X + 1), v(AC + 1), v(AC + 2)))
        e("v_cvt_pk_bf16_f32 %s, %s, %s" % (v(X), v(X), v(X + 1)))
        e.vmem("o", "buffer_store_dword %s, %s, %s, %s offen" % (v(X), v(T + 2), s(R_B, 4), s(S_T2)))
        e("L_comb_end:")
        e("s_endpgm")
        return fix_hazards(e.lines, "comb", self.a.verbose)

    def build(self):
        ks = [("prep_kernel", self.k_prep(), 25, L_END, 256, 512),
              ("main_kernel", self.k_main(), 256, L_END, 256, 448),
              ("comb_kernel", self.k_comb(), 64, 1024, 72, 72)]
        o = [HDR]
        for n, _, g, lds, _, _ in ks:
            o.append("; @launch kernel=%s grid=(%d,1,1) block=(256,1,1) lds=%d" % (n, g, lds))
        o.append('.amdgcn_target "amdgcn-amd-amdhsa--gfx950"')
        o.append(".text")
        for n, lines, _, _, _, _ in ks:
            o.append(".p2align 8")
            o.append("%s:" % n)
            o += [("    " + x if not x.endswith(":") else x) for x in lines]
        o.append('.section .rodata,"a"')
        for n, _, _, _, ao, nv in ks:
            o.append(".p2align 6")
            o.append(".amdhsa_kernel %s" % n)
            o.append("  .amdhsa_next_free_vgpr %d" % nv)
            o.append("  .amdhsa_next_free_sgpr 102")
            o.append("  .amdhsa_accum_offset %d" % ao)
            o.append("  .amdhsa_group_segment_fixed_size 0")
            o.append("  .amdhsa_kernarg_size 80")
            o.append("  .amdhsa_user_sgpr_count 2")
            o.append("  .amdhsa_user_sgpr_kernarg_segment_ptr 1")
            o.append("  .amdhsa_system_sgpr_workgroup_id_x 1")
            o.append("  .amdhsa_float_denorm_mode_32 3")
            o.append(".end_amdhsa_kernel")
        return "\n".join(o) + "\n"


if __name__ == "__main__":
    ap = argparse.ArgumentParser()
    ap.add_argument("-o", default="v1.s")
    ap.add_argument("--pol", default="nt")
    ap.add_argument("--stamps", action="store_true")
    ap.add_argument("--verbose", action="store_true")
    args = ap.parse_args()
    open(args.o, "w").write(Gen(args).build())
```

```python
import sys, argparse, struct
sys.path.insert(0, "tools")
from asmlib import Emit, v, acc, s, fix_hazards

NAME = "standalone__detection_seg_dino__vision"
HDR = open("/code/%s.s.ref" % NAME).read().split("; Override launch")[0].rstrip()


def f2u(x):
    return struct.unpack("<I", struct.pack("<f", x))[0]


def fl(x):
    return "0x%08x" % f2u(x)


LOG2E = 1.4426950408889634
QSCALE = 192 ** -0.5 * LOG2E * 192.0
EPSQ_VAL = 1e-5 * 192 * 192
THR = 24.0

WS_QK, WS_WVO, WS_PART, WS_STAMP, WS_SIZE = 0, 8192, 131072, 4 << 20, 8 << 20
L_F, L_R0, L_R1, L_SP, L_XA, L_XB, L_ST, L_END = 0, 24576, 73728, 122880, 147456, 153600, 159744, 163840

S_WAVE = 3
S_Q, S_F0, S_F1, S_WQ, S_WK, S_WV, S_WO, S_OUT, S_DBG, S_WS = 4, 6, 8, 10, 12, 14, 16, 18, 20, 22
R_F0, R_F1, R_WS, R_A, R_B, R_C = 24, 28, 32, 64, 68, 72
S_OF, S_OR, S_LF, S_LR0, S_LR1 = 36, 37, 40, 41, 42
S_MASK = 44
S_THR, S_RET, S_T0, S_T1, S_T2, S_T3 = 52, 54, 56, 57, 58, 59
S_STAMP = 76

T = 1
V_DF, V_DR = 16, 22
V_FA, V_FT, V_XA, V_XT = 34, 36, 40, 44
V_ONES, V_EPS = 52, 56
V_C192, V_CQ, V_NEGM, V_L, V_PM, V_LANE16 = 60, 61, 62, 63, 64, 65
V_PFB, V_PF, V_P = 66, 68, 72
V_S1, V_M1, V_G1 = 76, 80, 84
V_TILE = [88, 104]
V_SS = [120, 124]
V_RS = [128, 132]
V_QK, V_W = 136, 160
V_JUNK = 232
V_E = 236
A_O, A_FA, A_FT, A_XA, A_XT = 0, 48, 72, 96, 144


def srd(e, r, base, size, add=None):
    if add is None:
        e("s_mov_b32 %s, %s" % (s(r), s(base)))
        e("s_mov_b32 %s, %s" % (s(r + 1), s(base + 1)))
    else:
        e("s_add_u32 %s, %s, %s" % (s(r), s(base), add))
        e("s_addc_u32 %s, %s, 0" % (s(r + 1), s(base + 1)))
    e("s_mov_b32 %s, %d" % (s(r + 2), size))
    e("s_mov_b32 %s, 0x20000" % s(r + 3))


def weave(e, mfmas, fillers, start=0, per_gap=2):
    fillers = list(fillers)
    for i, m in enumerate(mfmas):
        m()
        if i >= start:
            budget = per_gap
            while fillers and fillers[0][1] <= budget:
                fn, c = fillers.pop(0)
                fn()
                budget -= c
    return fillers


def flush(fillers):
    for fn, _ in fillers:
        fn()


def I(e, text, cost=1):
    return (lambda: e(text), cost)


class Gen:
    def __init__(self, args):
        self.a = args
        self.pol = args.pol
        self.nstamp = 0

    def stamp(self, e, idx):
        if self.a.stamps:
            e("s_memrealtime %s" % s(S_STAMP + 2 * idx, 2))
            e("s_waitcnt lgkmcnt(0)")
            e.ds_done = len(e.ds)
            self.nstamp = max(self.nstamp, idx + 1)

    def mfma(self, e, d, a, b, c):
        e("v_mfma_f32_16x16x32_bf16 %s, %s, %s, %s" % (d, a, b, c))

    def lane_ids(self, e):
        e("v_lshrrev_b32 %s, 6, v0" % v(T))
        e("v_and_b32 v0, 63, v0")
        e("v_readfirstlane_b32 %s, %s" % (s(S_WAVE), v(T)))
        e("v_lshlrev_b32 %s, 4, v0" % v(V_LANE16))

    def dma_f_offsets(self, e):
        e("v_lshrrev_b32 %s, 2, v0" % v(T))
        e("v_and_b32 %s, 14, %s" % (v(T), v(T)))
        for e0 in range(3):
            k = sum((((8 * e0 + h) // 3) >> 1) << (2 * h) for h in range(8))
            e("s_mov_b32 %s, 0x%x" % (s(S_T0), k))
            e("v_bfe_u32 %s, %s, %s, 2" % (v(T + 1), s(S_T0), v(T)))
            e("v_lshlrev_b32 %s, 5, %s" % (v(T + 1), v(T + 1)))
            e("v_xor_b32 %s, %s, %s" % (v(V_DF + e0), v(V_LANE16), v(T + 1)))
        e("v_xor_b32 %s, 16, %s" % (v(V_DF + 3), v(V_DF)))
        e("v_xor_b32 %s, 0x1010, %s" % (v(V_DF + 4), v(V_DF + 1)))
        e("v_xor_b32 %s, 0x1010, %s" % (v(V_DF + 5), v(V_DF + 2)))

    def dma_r_offsets(self, e):
        e("v_lshrrev_b32 %s, 3, v0" % v(T))
        e("v_and_b32 %s, 6, %s" % (v(T), v(T)))
        for e0 in range(3):
            k = sum(((4 * e0 + g) // 3) << (2 * g) for g in range(4))
            e("s_mov_b32 %s, 0x%x" % (s(S_T0), k))
            e("v_bfe_u32 %s, %s, %s, 2" % (v(T + 1), s(S_T0), v(T)))
            e("v_lshlrev_b32 %s, 5, %s" % (v(T + 1), v(T + 1)))
            e("v_xor_b32 %s, %s, %s" % (v(V_DR + e0), v(V_LANE16), v(T + 1)))
        for ee in range(3, 12):
            c = [0, 128, 16, 144][ee // 3] | ((ee - ee % 4) * 1024)
            e("v_xor_b32 %s, 0x%x, %s" % (v(V_DR + ee), c, v(V_DR + ee % 3)))

    def lds_read_addrs(self, e):
        i_, g_, pg, rho, lo, t0, t1 = T, T + 1, T + 2, T + 3, T + 4, T + 5, T + 6
        e("v_and_b32 %s, 15, v0" % v(i_))
        e("v_lshrrev_b32 %s, 4, v0" % v(g_))
        e("v_lshrrev_b32 %s, 1, %s" % (v(t0), v(g_)))
        e("v_and_b32 %s, 1, %s" % (v(pg), v(g_)))
        e("v_lshl_or_b32 %s, %s, 1, %s" % (v(pg), v(pg), v(t0)))
        e("v_lshrrev_b32 %s, 2, v0" % v(rho))
        e("v_bfe_u32 %s, v0, 1, 1" % v(lo))
        e("v_lshrrev_b32 %s, 3, %s" % (v(t0), v(i_)))
        e("v_and_or_b32 %s, %s, 6, %s" % (v(t0), v(i_), v(t0)))
        e("v_xor_b32 %s, %s, %s" % (v(t0), v(t0), v(pg)))
        e("v_mul_u32_u24 %s, 384, %s" % (v(t1), v(i_)))
        e("v_lshl_add_u32 %s, %s, 4, %s" % (v(t0), v(t0), v(t1)))
        e("v_add_u32 %s, %s, %s" % (v(V_FA), s(S_LF), v(t0)))
        e("v_xor_b32 %s, 64, %s" % (v(V_FA + 1), v(V_FA)))
        e("v_lshrrev_b32 %s, 3, %s" % (v(t0), v(i_)))
        e("v_and_b32 %s, 7, %s" % (v(t1), v(i_)))
        e("v_lshl_or_b32 %s, %s, 1, %s" % (v(t0), v(t1), v(t0)))
        e("v_xor_b32 %s, %s, %s" % (v(t0), v(t0), v(pg)))
        e("v_mul_u32_u24 %s, 768, %s" % (v(t1), v(i_)))
        e("v_lshl_add_u32 %s, %s, 4, %s" % (v(t0), v(t0), v(t1)))
        e("v_add_u32 %s, %s, %s" % (v(V_XA), s(S_LR0), v(t0)))
        for x in range(1, 4):
            e("v_xor_b32 %s, 0x%x, %s" % (v(V_XA + x), x * 64, v(V_XA)))
        e("v_and_b32 %s, 1, v0" % v(g_))
        e("v_lshlrev_b32 %s, 3, %s" % (v(g_), v(g_)))
        e("v_lshrrev_b32 %s, 3, %s" % (v(t0), v(rho)))
        e("v_and_or_b32 %s, %s, 6, %s" % (v(t0), v(rho), v(t0)))
        e("v_xor_b32 %s, %s, %s" % (v(t0), v(t0), v(lo)))
        e("v_mul_u32_u24 %s, 384, %s" % (v(t1), v(rho)))
        e("v_lshl_add_u32 %s, %s, 4, %s" % (v(t0), v(t0), v(t1)))
        e("v_add3_u32 %s, %s, %s, %s" % (v(V_FT), s(S_LF), v(t0), v(g_)))
        for x in range(1, 4):
            e("v_xor_b32 %s, 0x%x, %s" % (v(V_FT + x), x * 32, v(V_FT)))
        e("v_lshrrev_b32 %s, 3, %s" % (v(t0), v(rho)))
        e("v_and_b32 %s, 7, %s" % (v(t1), v(rho)))
        e("v_lshl_or_b32 %s, %s, 1, %s" % (v(t0), v(t1), v(t0)))
        e("v_xor_b32 %s, %s, %s" % (v(t0), v(t0), v(lo)))
        e("v_mul_u32_u24 %s, 768, %s" % (v(t1), v(rho)))
        e("v_lshl_add_u32 %s, %s, 4, %s" % (v(t0), v(t0), v(t1)))
        e("v_add3_u32 %s, %s, %s, %s" % (v(V_XT), s(S_LR0), v(t0), v(g_)))
        for x in range(1, 8):
            e("v_xor_b32 %s, 0x%x, %s" % (v(V_XT + x), x * 32, v(V_XT)))

    def consts(self, e):
        for r in range(4):
            e("v_mov_b32 %s, 0x3f803f80" % v(V_ONES + r))
            e("v_mov_b32 %s, %s" % (v(V_EPS + r), fl(EPSQ_VAL)))
            e("s_mov_b32 %s, 0x%x" % (s(S_MASK + 2 * r), (1 + (1 << 20)) << r))
            e("s_mov_b32 %s, 0x%x" % (s(S_MASK + 2 * r + 1), ((1 << 8) + (1 << 28)) << r))
        e("v_mov_b32 %s, %s" % (v(V_C192), fl(192.0)))

    def xch_write_addr(self, e, dst, base):
        e("v_lshrrev_b32 %s, 5, v0" % v(T))
        e("v_lshlrev_b32 %s, 8, %s" % (v(T), v(T)))
        e("v_and_b32 %s, 15, v0" % v(T + 1))
        e("v_lshl_add_u32 %s, %s, 4, %s" % (v(T), v(T + 1), v(T)))
        e("v_bfe_u32 %s, v0, 4, 1" % v(T + 1))
        e("v_lshl_add_u32 %s, %s, 3, %s" % (v(T), v(T + 1), v(T)))
        e("s_mul_i32 %s, %s, 1536" % (s(S_T0), s(S_WAVE)))
        e("s_add_u32 %s, %s, %d" % (s(S_T0), s(S_T0), base))
        e("v_add_u32 %s, %s, %s" % (v(dst), s(S_T0), v(T)))

    def diag(self, e, g, h, out):
        f = []
        for r in range(4):
            if h is not None:
                f.append(I(e, "v_fma_f32 %s, %s, 2.0, %s" % (v(g + r), v(h + r), v(g + r))))
        f.append(I(e, "v_cndmask_b32 %s, 0, %s, %s" % (v(out), v(g), s(S_MASK, 2))))
        for r in range(1, 4):
            f.append(I(e, "v_cndmask_b32 %s, %s, %s, %s" % (v(out), v(out), v(g + r), s(S_MASK + 2 * r, 2))))
        return f

    def dma_list(self, e, kind, k):
        out = []
        if kind == "F":
            n, voff, rs, lb, so, add = 6, V_DF, R_F1, S_LF, S_OF, k * 24576
        else:
            rho = int(kind[1])
            n, voff, rs, lb, so, add = 12, V_DR, R_F0, (S_LR0, S_LR1)[rho], S_OR, k * 49152 + rho * 196608
        sreg = {"F": S_T1, "R0": S_T2, "R1": S_T3}[kind]

        def one(ee):
            def fn():
                if ee % 4 == 0:
                    e("s_add_u32 m0, %s, %d" % (s(lb), ee * 1024))
                if ee == 0:
                    e("s_add_u32 %s, %s, %d" % (s(sreg), s(so), add))
                e.vmem((kind, k), "buffer_load_dwordx4 %s, %s, %s offen offset:%d %s lds" % (
                    v(voff + ee), s(rs, 4), s(sreg), (ee % 4) * 1024, self.pol))
            return fn
        for ee in range(n):
            out.append(one(ee))
        return out

    def issue(self, e, kind, k, extra):
        for j, fn in enumerate(self.dma_list(e, kind, k)):
            fn()
            if j % 2 == 1 and extra:
                extra.pop(0)()

    def phase_f(self, e, k, extra):
        e.wait_vm(("F", k))
        for st in range(6):
            e.lds(("fa", st), "ds_read_b128 %s, %s offset:%d" % (acc(A_FA + 4 * st, 4), v(V_FA + (st & 1)), (st >> 1) * 128))
        tr = []
        for n in range(12):
            tr.append((lambda n=n: e.lds("ft", "ds_read_b64_tr_b16 %s, %s offset:%d" % (
                acc(A_FT + 2 * n, 2), v(V_FT + (n & 3)), (n >> 2) * 128)), 1))
        ms = []
        for st in range(6):
            fa = acc(A_FA + 4 * st, 4)

            def g(st=st, fa=fa):
                e.wait_ds(("fa", st))
                self.mfma(e, v(V_G1, 4), fa, fa, v(V_G1, 4) if st else "0")
            ms.append(g)
            ms.append(lambda st=st, fa=fa: self.mfma(e, v(V_M1, 4), fa, v(V_ONES, 4), v(V_M1, 4) if st else "0"))
        flush(weave(e, ms, tr, 0, 2))
        e.wait_ds_all()
        if k < 3:
            self.issue(e, "F", k + 1, extra)
        if k == 0:
            self.finish_qk(e)
        for st in range(6):
            self.mfma(e, v(V_S1, 4), acc(A_FA + 4 * st, 4), v(V_QK + 4 * st, 4), v(V_S1, 4) if st else "0")

    def soft_a(self, e, t):
        S_, M_ = V_TILE[t], V_TILE[t] + 4
        f = []
        for r in range(4):
            f.append(I(e, "v_fma_f32 %s, -%s, %s, %s" % (v(V_RS[t] + r), v(M_ + r), v(M_ + r), v(V_SS[t] + r))))
        for r in range(4):
            f.append(I(e, "v_max_f32 %s, %s, %s" % (v(V_RS[t] + r), v(V_RS[t] + r), v(V_EPS))))
        for r in range(4):
            f.append(I(e, "v_rsq_f32 %s, %s" % (v(V_RS[t] + r), v(V_RS[t] + r)), 2))
        return f

    def soft_b(self, e, t, first):
        S_, M_ = V_TILE[t], V_TILE[t] + 4
        f = []
        for r in range(4):
            f.append(I(e, "v_fma_f32 %s, -%s, %s, %s" % (v(S_ + r), v(M_ + r), v(V_CQ), v(S_ + r))))
        for r in range(4):
            if first:
                f.append(I(e, "v_mul_f32 %s, %s, %s" % (v(S_ + r), v(S_ + r), v(V_RS[t] + r))))
            else:
                f.append(I(e, "v_fma_f32 %s, %s, %s, %s" % (v(S_ + r), v(S_ + r), v(V_RS[t] + r), v(V_NEGM))))
        f.append(I(e, "v_max3_f32 %s, %s, %s, %s" % (v(T), v(S_), v(S_ + 1), v(S_ + 2))))
        f.append(I(e, "v_max_f32 %s, %s, %s" % (v(T), v(T), v(S_ + 3))))
        if first:
            for sw in ("32", "16"):
                f.append(I(e, "v_mov_b32 %s, %s" % (v(T + 1), v(T))))
                f.append(I(e, "v_permlane%s_swap_b32 %s, %s" % (sw, v(T), v(T + 1))))
                f.append(I(e, "v_max_f32 %s, %s, %s" % (v(T), v(T), v(T + 1))))
            f.append(I(e, "v_sub_f32 %s, 0, %s" % (v(V_NEGM), v(T))))
            for r in range(4):
                f.append(I(e, "v_sub_f32 %s, %s, %s" % (v(S_ + r), v(S_ + r), v(T))))
        else:
            site = len(self.sites)
            self.sites.append(t)

            def chk():
                e("v_cmp_lt_f32 vcc, %s, %s" % (s(S_THR), v(T)))
                e("s_cbranch_vccnz L_site%d" % site)
                e("L_back%d:" % site)
            f.append((chk, 2))
        return f

    def soft_c(self, e, t, first, rho):
        S_, M_ = V_TILE[t], V_TILE[t] + 4
        P_ = V_TILE[t] + 8
        crit, late = [], []
        for r in range(4):
            crit.append(I(e, "v_exp_f32 %s, %s" % (v(P_ + r), v(S_ + r)), 2))
        for r in range(4):
            crit.append(I(e, "v_mul_f32 %s, %s, %s" % (v(S_ + r), v(P_ + r), v(V_RS[t] + r))))
        for r in range(4):
            if first and r == 0:
                late.append(I(e, "v_mov_b32 %s, %s" % (v(V_L), v(P_))))
                late.append(I(e, "v_mul_f32 %s, %s, %s" % (v(V_PM), v(S_), v(M_))))
            else:
                late.append(I(e, "v_add_f32 %s, %s, %s" % (v(V_L), v(V_L), v(P_ + r))))
                late.append(I(e, "v_fmac_f32 %s, %s, %s" % (v(V_PM), v(S_ + r), v(M_ + r))))
        for r in range(4):
            if rho == 0 and t == 0:
                late.append(I(e, "v_mov_b32 %s, %s" % (v(V_PF + r), v(S_ + r))))
            else:
                late.append(I(e, "v_add_f32 %s, %s, %s" % (v(V_PF + r), v(V_PF + r), v(S_ + r))))
        return crit, late

    def phase_r(self, e, k, rho, extra):
        kind = "R%d" % rho
        base = rho * (L_R1 - L_R0)
        first = (k == 0 and rho == 0)
        e.wait_vm((kind, k))
        for t in range(2):
            for st in range(6):
                v0 = 24 * t + 4 * st
                e.lds(("xa", t, st), "ds_read_b128 %s, %s offset:%d" % (
                    acc(A_XA + 24 * t + 4 * st, 4), v(V_XA + ((v0 & 12) >> 2)), (v0 & ~15) * 16 + base))
        tr = []
        for n in range(12):
            for t in range(2):
                vv = 24 * t + 2 * n
                tr.append((lambda n=n, t=t, vv=vv: e.lds("xt", "ds_read_b64_tr_b16 %s, %s offset:%d" % (
                    acc(A_XT + 4 * n + 2 * t, 2), v(V_XT + ((vv & 14) >> 1)), (vv & ~15) * 16 + base)), 1))

        def gh(t):
            ms = []
            G_, H_ = V_TILE[t] + 8, V_TILE[t] + 12
            for st in range(6):
                xa = acc(A_XA + 24 * t + 4 * st, 4)

                def g(st=st, xa=xa):
                    e.wait_ds(("xa", t, st))
                    self.mfma(e, v(G_, 4), xa, xa, v(G_ if st else V_G1, 4))
                ms.append(g)
                ms.append(lambda st=st, xa=xa: self.mfma(e, v(H_, 4), xa, acc(A_FA + 4 * st, 4), v(H_, 4) if st else "0"))
            return ms

        def msq(t):
            S_, M_ = V_TILE[t], V_TILE[t] + 4
            ms = []
            for st in range(6):
                ms.append(lambda st=st: self.mfma(e, v(M_, 4), acc(A_XA + 24 * t + 4 * st, 4), v(V_ONES, 4), v(M_ if st else V_M1, 4)))
            for st in range(6):
                ms.append(lambda st=st: self.mfma(e, v(S_, 4), acc(A_XA + 24 * t + 4 * st, 4), v(V_QK + 4 * st, 4), v(S_ if st else V_S1, 4)))
            return ms

        def ssm(t):
            return (lambda: e("v_mfma_f32_16x16x4_f32 %s, %s, %s, %s" % (v(V_SS[t], 4), v(T + 2 + t), v(V_C192), v(V_EPS, 4))), 2)

        def dg(t):
            return self.diag(e, V_TILE[t] + 8, V_TILE[t] + 12, T + 2 + t)

        left = weave(e, gh(0), tr, 0, 2)
        left = weave(e, msq(0), left + [(lambda: None, 0)] + dg(0) + [I(e, "s_nop 0"), I(e, "s_nop 0"), ssm(0)], 3 if not left else 0, 2)
        flush(left)
        e.wait_ds_all()
        if k < 3:
            self.issue(e, kind, k + 1, extra)
        c0, l0 = self.soft_c(e, 0, first, rho)
        q0 = self.soft_a(e, 0) + self.soft_b(e, 0, first) + c0
        left = weave(e, gh(1), q0, 3, 2)
        nl = sum(c for _, c in left)
        pad = l0[:max(0, 8 - nl)]
        rest = l0[len(pad):]
        left = weave(e, msq(1), left + pad + dg(1) + rest[:2] + [ssm(1)] + rest[2:], 0, 2)
        flush(left)
        c1, l1 = self.soft_c(e, 1, False, rho)
        flush(self.soft_a(e, 1) + self.soft_b(e, 1, False) + c1)
        for t in range(2):
            S_ = V_TILE[t]
            e("v_cvt_pk_bf16_f32 %s, %s, %s" % (v(V_P + 2 * t), v(S_), v(S_ + 1)))
            e("v_cvt_pk_bf16_f32 %s, %s, %s" % (v(V_P + 2 * t + 1), v(S_ + 2), v(S_ + 3)))
        if rho == 1:
            l1 = l1[8:] + [I(e, "v_cvt_pk_bf16_f32 %s, %s, %s" % (v(V_PFB), v(V_PF), v(V_PF + 1))),
                           I(e, "v_cvt_pk_bf16_f32 %s, %s, %s" % (v(V_PFB + 1), v(V_PF + 2), v(V_PF + 3)))] + l1[:8]
        ms = [(lambda n=n: self.mfma(e, acc(A_O + 4 * n, 4), acc(A_XT + 4 * n, 4), v(V_P, 4),
                                     "0" if first else acc(A_O + 4 * n, 4))) for n in range(12)]
        flush(weave(e, ms, l1, 0, 2))
        if rho == 1:
            for n in range(12):
                e("v_mfma_f32_16x16x16_bf16 %s, %s, %s, %s" % (
                    acc(A_O + 4 * n, 4), acc(A_FT + 2 * n, 2), v(V_PFB, 2), acc(A_O + 4 * n, 4)))

    def rare(self, e):
        for site, t in enumerate(self.sites):
            e("L_site%d:" % site)
            e("s_call_b64 %s, L_rare%d" % (s(S_RET, 2), t))
            e("s_branch L_back%d" % site)
        for t in range(2):
            r_ = Emit()
            r_("L_rare%d:" % t)
            r_("s_nop 7")
            r_("s_nop 7")
            for sw in ("32", "16"):
                r_("v_mov_b32 %s, %s" % (v(T + 1), v(T)))
                r_("v_permlane%s_swap_b32 %s, %s" % (sw, v(T), v(T + 1)))
                r_("v_max_f32 %s, %s, %s" % (v(T), v(T), v(T + 1)))
            r_("v_max_f32 %s, 0, %s" % (v(T), v(T)))
            r_("v_sub_f32 %s, %s, %s" % (v(V_NEGM), v(V_NEGM), v(T)))
            for r in range(4):
                r_("v_sub_f32 %s, %s, %s" % (v(V_TILE[t] + r), v(V_TILE[t] + r), v(T)))
            r_("v_sub_f32 %s, 0, %s" % (v(T), v(T)))
            r_("v_exp_f32 %s, %s" % (v(T), v(T)))
            tgt = [V_L, V_PM] + [V_PF + r for r in range(4)]
            if t == 1:
                tgt += [V_TILE[0] + r for r in range(4)]
            for x in tgt:
                r_("v_mul_f32 %s, %s, %s" % (v(x), v(x), v(T)))
            for n in range(48):
                r_("v_accvgpr_read_b32 %s, %s" % (v(T + 1), acc(A_O + n)))
                r_("v_mul_f32 %s, %s, %s" % (v(T + 1), v(T + 1), v(T)))
                r_("v_accvgpr_write_b32 %s, %s" % (acc(A_O + n), v(T + 1)))
            r_("s_nop 3")
            r_("s_setpc_b64 %s" % s(S_RET, 2))
            for ln in fix_hazards(r_.lines, "rare"):
                e(ln)

    def finish_qk(self, e):
        e.wait_vm("qk")
        for st in range(6):
            self.mfma(e, v(V_SS[0], 4), v(V_ONES, 4), v(V_QK + 4 * st, 4), v(V_SS[0], 4) if st else "0")
        e("v_mul_f32 %s, %s, %s" % (v(V_CQ), fl(1.0 / 192), v(V_SS[0])))

    def epilogue(self, e):
        XW, RD, AR = V_E, V_E + 1, V_E + 2
        ST = 16
        OT = 76
        FV, LS, PS, ONE = 32, 36, 40, 44
        for n in range(12):
            e.lds("x1", "ds_write_b128 %s, %s offset:%d" % (v(AR), acc(A_O + 4 * n, 4), n * 1024))
        e.lds("x1", "ds_write_b128 %s, %s" % (v(AR + 1), v(V_NEGM, 4)))
        e("v_mov_b32 %s, 1.0" % v(ONE))
        e.wait_ds_all()
        e("s_barrier")
        for w in range(4):
            e.lds(("st", w), "ds_read_b128 %s, %s offset:%d" % (v(ST + 4 * w, 4), v(AR + 2), w * 1024))
        for w in range(4):
            for t in range(3):
                e.lds(("o", w), "ds_read_b128 %s, %s offset:%d" % (v(OT + 12 * w + 4 * t, 4), v(RD), w * 12288 + t * 1024))
        e.wait_ds(("st", 3))
        NM = T + 8
        e("v_min3_f32 %s, %s, %s, %s" % (v(NM), v(ST), v(ST + 4), v(ST + 8)))
        e("v_min_f32 %s, %s, %s" % (v(NM), v(NM), v(ST + 12)))
        for w in range(4):
            e("v_sub_f32 %s, %s, %s" % (v(FV + w), v(NM), v(ST + 4 * w)))
        for w in range(4):
            e("v_exp_f32 %s, %s" % (v(FV + w), v(FV + w)))
        e("v_mul_f32 %s, %s, %s" % (v(T), v(FV), v(ST + 1)))
        e("v_mul_f32 %s, %s, %s" % (v(T + 1), v(FV), v(ST + 2)))
        for w in range(1, 4):
            e("v_fmac_f32 %s, %s, %s" % (v(T), v(FV + w), v(ST + 4 * w + 1)))
            e("v_fmac_f32 %s, %s, %s" % (v(T + 1), v(FV + w), v(ST + 4 * w + 2)))
        e.wait_ds(("o", 0))
        for j in range(2):
            e("v_mul_f32 %s, %s, %s" % (v(OT + j), v(OT + j), v(FV)))
        e("v_mfma_f32_16x16x4_f32 %s, %s, %s, 0" % (v(LS, 4), v(ONE), v(T)))
        e("v_mfma_f32_16x16x4_f32 %s, %s, %s, 0" % (v(PS, 4), v(ONE), v(T + 1)))
        for j in range(2, 12):
            e("v_mul_f32 %s, %s, %s" % (v(OT + j), v(OT + j), v(FV)))
        for w in range(1, 4):
            e.wait_ds(("o", w))
            for j in range(12):
                e("v_fmac_f32 %s, %s, %s" % (v(OT + j), v(OT + 12 * w + j), v(FV + w)))
            if w == 1:
                e("v_rcp_f32 %s, %s" % (v(T + 2), v(LS)))
                e("v_log_f32 %s, %s" % (v(T + 3), v(LS)))
            if w == 2:
                e("v_mul_f32 %s, %s, %s" % (v(T + 4), v(V_C192), v(T + 2)))
                e("v_mul_f32 %s, %s, %s" % (v(T + 5), v(PS), v(T + 2)))
                e("v_sub_f32 %s, %s, %s" % (v(T + 3), v(T + 3), v(NM)))
        for j in range(12):
            e("v_fma_f32 %s, %s, %s, -%s" % (v(OT + j), v(OT + j), v(T + 4), v(T + 5)))
        for t in range(3):
            e("v_cvt_pk_bf16_f32 %s, %s, %s" % (v(OT + 12 + 2 * t), v(OT + 4 * t), v(OT + 4 * t + 1)))
            e("v_cvt_pk_bf16_f32 %s, %s, %s" % (v(OT + 13 + 2 * t), v(OT + 4 * t + 2), v(OT + 4 * t + 3)))
            e.lds("x2", "ds_write_b64 %s, %s offset:%d" % (v(XW), v(OT + 12 + 2 * t, 2), t * 512))
        e.wait_vm("wvo")
        e.wait_ds_all()
        e("s_barrier")
        B = V_QK
        for st in range(6):
            e.lds(("b", st), "ds_read_b128 %s, %s offset:%d" % (v(B + 4 * st, 4), v(AR + 3), st * 1024))
        D = 16
        for st in range(6):
            e.wait_ds(("b", st))
            for t in range(3):
                self.mfma(e, v(D + 4 * t, 4), v(V_W + (t * 6 + st) * 4, 4), v(B + 4 * st, 4), v(D + 4 * t, 4) if st else "0")
        O_ = 32
        e("v_mov_b32 %s, %s" % (v(O_ + 3), v(T + 3)))
        e("v_mov_b32 %s, %s" % (v(O_ + 7), v(T + 3)))
        for j in range(6):
            e("v_cvt_pk_bf16_f32 %s, %s, %s" % (v(O_ + j + j // 3), v(D + 2 * j), v(D + 2 * j + 1)))
        e.vmem("out", "buffer_store_dwordx4 %s, %s, %s, %s offen" % (v(O_, 4), v(AR + 4), s(R_WS, 4), s(S_T0)))
        e.vmem("out", "buffer_store_dwordx4 %s, %s, %s, %s offen offset:64" % (v(O_ + 4, 4), v(AR + 4), s(R_WS, 4), s(S_T0)))

    def epilogue_addrs(self, e):
        XW, RD, AR = V_E, V_E + 1, V_E + 2
        self.xch_write_addr(e, XW, L_XA)
        e("s_mul_i32 %s, %s, 3072" % (s(S_T0), s(S_WAVE)))
        e("s_add_u32 %s, %s, %d" % (s(S_T0), s(S_T0), L_R0))
        e("v_add_u32 %s, %s, %s" % (v(RD), s(S_T0), v(V_LANE16)))
        e("v_add_u32 %s, %s, %s" % (v(AR), s(S_LR0), v(V_LANE16)))
        e("s_lshl_b32 %s, %s, 10" % (s(S_T0), s(S_WAVE)))
        e("v_add_u32 %s, %d, %s" % (v(AR + 2), L_ST, v(V_LANE16)))
        e("v_add_u32 %s, %s, %s" % (v(AR + 1), s(S_T0), v(AR + 2)))
        e("v_add_u32 %s, %d, %s" % (v(AR + 3), L_XA, v(V_LANE16)))
        e("v_and_b32 %s, 15, v0" % v(T))
        e("v_lshlrev_b32 %s, 17, %s" % (v(T), v(T)))
        e("v_and_b32 %s, 48, v0" % v(T + 1))
        e("v_add_u32 %s, %s, %s" % (v(AR + 4), v(T), v(T + 1)))

    def code_prefetch(self, e, start, end):
        e("s_getpc_b64 %s" % s(S_RET, 2))
        e("L_pc_%s:" % start)
        e("v_lshlrev_b32 %s, 7, v0" % v(V_JUNK + 1))
        e("v_min_u32 %s, %s - L_pc_%s - 4, %s" % (v(V_JUNK + 1), end, start, v(V_JUNK + 1)))
        e.vmem("pf", "global_load_dword %s, %s, %s" % (v(V_JUNK), v(V_JUNK + 1), s(S_RET, 2)))

    def write_stamps(self, e):
        if not self.a.stamps:
            return
        n = 12
        e("s_getreg_b32 %s, hwreg(HW_REG_XCC_ID)" % s(S_T1))
        for j in range(n):
            src = s(S_STAMP + 2 * j) if j < self.nstamp else "0"
            if j == n - 1:
                src = s(S_T1)
            e("v_mov_b32 %s, %s" % (v(200 + j), src))
        e("s_lshl_b32 %s, s2, 2" % s(S_T1))
        e("s_add_u32 %s, %s, %s" % (s(S_T1), s(S_T1), s(S_WAVE)))
        e("s_mul_i32 %s, %s, %d" % (s(S_T1), s(S_T1), n * 4))
        e("s_add_u32 %s, %s, %d" % (s(S_T1), s(S_T1), WS_STAMP))
        e("v_mov_b32 %s, 0" % v(T))
        e("v_cmp_eq_u32 vcc, 0, v0")
        e("s_and_saveexec_b64 %s, vcc" % s(S_RET, 2))
        for j in range(n // 4):
            e("buffer_store_dwordx4 %s, %s, %s, %s offen offset:%d" % (v(200 + 4 * j, 4), v(T), s(R_WS, 4), s(S_T1), 16 * j))

    def k_main(self):
        e = Emit()
        self.sites = []
        self.nstamp = 0
        e("s_cmp_ge_u32 s2, 256")
        e("s_cbranch_scc1 L_main_end")
        e("s_load_dwordx16 s[4:19], s[0:1], 0")
        e("s_load_dwordx4 s[20:23], s[0:1], 64")
        self.code_prefetch(e, "main", "L_main_codeend")
        self.lane_ids(e)
        self.dma_f_offsets(e)
        self.dma_r_offsets(e)
        e("s_mul_i32 %s, %s, 6144" % (s(S_OF), s(S_WAVE)))
        e("s_mul_i32 %s, %s, 12288" % (s(S_OR), s(S_WAVE)))
        e("s_add_u32 %s, %s, %d" % (s(S_LF), s(S_OF), L_F))
        e("s_add_u32 %s, %s, %d" % (s(S_LR0), s(S_OR), L_R0))
        e("s_add_u32 %s, %s, %d" % (s(S_LR1), s(S_OR), L_R1))
        e("s_mul_i32 %s, s2, 393216" % s(S_T0))
        e("s_mul_i32 %s, s2, 98304" % s(S_T1))
        e("s_waitcnt lgkmcnt(0)")
        srd(e, R_F1, S_F1, 98304, s(S_T1))
        srd(e, R_F0, S_F0, 393216, s(S_T0))
        srd(e, R_WS, S_WS, WS_SIZE)
        self.stamp(e, 0)
        self.issue(e, "F", 0, [])
        e("s_movk_i32 %s, 0x1000" % s(S_T0))
        for st in range(6):
            e.vmem("qk", "buffer_load_dwordx4 %s, %s, %s, %s offen offset:%d" % (
                v(V_QK + 4 * st, 4), v(V_LANE16), s(R_WS, 4), s(S_T0) if st >= 4 else "0", WS_QK + (st % 4) * 1024))
        self.issue(e, "R0", 0, [])
        self.lds_read_addrs(e)
        self.consts(e)
        self.epilogue_addrs(e)
        e("s_mov_b32 %s, %s" % (s(S_THR), fl(THR)))
        self.issue(e, "R1", 0, [])
        self.stamp(e, 1)
        e("s_mul_i32 %s, %s, 18432" % (s(60), s(S_WAVE)))
        extra = []
        for j in range(18):
            def ld(j=j):
                if j % 4 == 0:
                    e("s_add_u32 %s, %s, %d" % (s(61), s(60), WS_WVO + j * 1024))
                e.vmem("wvo", "buffer_load_dwordx4 %s, %s, %s, %s offen offset:%d" % (
                    v(V_W + 4 * j, 4), v(V_LANE16), s(R_WS, 4), s(61), (j % 4) * 1024))
            extra.append(ld)
        for k in range(4):
            self.phase_f(e, k, extra if k > 0 else [])
            if k == 0:
                self.stamp(e, 2)
            self.phase_r(e, k, 0, extra)
            if k == 3:
                self.stamp(e, 5)
                e.wait_vm(("R1", 3))
                self.stamp(e, 6)
            self.phase_r(e, k, 1, extra)
            if k in (0, 1):
                self.stamp(e, 3 + k)
        assert not extra
        self.stamp(e, 7)
        e("s_lshl_b32 %s, %s, 15" % (s(S_T0), s(S_WAVE)))
        e("s_lshl_b32 %s, s2, 7" % s(S_T1))
        e("s_add_u32 %s, %s, %s" % (s(S_T0), s(S_T0), s(S_T1)))
        e("s_add_u32 %s, %s, %d" % (s(S_T0), s(S_T0), WS_PART))
        self.epilogue(e)
        self.stamp(e, 8)
        if self.a.stamps:
            e("s_waitcnt vmcnt(0)")
            self.stamp(e, 9)
        self.write_stamps(e)
        e("L_main_end:")
        e("s_endpgm")
        e.lines = fix_hazards(e.lines, "main", self.a.verbose)
        self.rare(e)
        e("L_main_codeend:")
        return e.lines

    def k_prep(self):
        e = Emit()
        e("s_cmp_ge_u32 s2, 25")
        e("s_cbranch_scc1 L_prep_end")
        e("s_load_dwordx16 s[4:19], s[0:1], 0")
        e("s_load_dwordx4 s[20:23], s[0:1], 64")
        self.lane_ids(e)
        e("s_waitcnt lgkmcnt(0)")
        srd(e, R_WS, S_WS, WS_SIZE)
        e("s_cmp_eq_u32 s2, 24")
        e("s_cbranch_scc1 L_prep_qk")
        e("s_cmp_lg_u32 %s, 0" % s(S_WAVE))
        e("s_cbranch_scc1 L_prep_end")
        head = e.lines
        a = Emit()
        self.wvo_role(a)
        a("s_endpgm")
        b = Emit()
        b("L_prep_qk:")
        self.qk_role(b)
        b("L_prep_end:")
        b("s_endpgm")
        return fix_hazards(head + a.lines, "prep_wvo", self.a.verbose) + fix_hazards(b.lines, "prep_qk", self.a.verbose)

    def wvo_role(self, e):
        SW, SS_ = 62, 63
        e("s_mul_i32 %s, s2, 43" % s(SW))
        e("s_lshr_b32 %s, %s, 8" % (s(SW), s(SW)))
        e("s_mul_i32 %s, %s, 6" % (s(S_T0), s(SW)))
        e("s_sub_u32 %s, s2, %s" % (s(SS_), s(S_T0)))
        srd(e, R_A, S_WV, 73728)
        srd(e, R_B, S_WO, 73728)
        DO, WA, AV, BF, D = 16, 20, 184, 76, 160
        for e0 in range(3):
            e("v_add_u32 %s, %d, v0" % (v(T), 64 * e0))
            e("v_mul_u32_u24 %s, 10923, %s" % (v(T), v(T)))
            e("v_lshrrev_b32 %s, 16, %s" % (v(T), v(T)))
            e("v_mul_u32_u24 %s, 288, %s" % (v(T), v(T)))
            e("v_add_u32 %s, %s, %s" % (v(DO + e0), v(T), v(V_LANE16)))
        e("s_mul_i32 %s, %s, 96" % (s(S_T1), s(SW)))
        for j in range(18):
            if j % 3 == 0:
                e("s_mov_b32 m0, %d" % (L_SP + j * 1024))
                if j:
                    e("s_add_u32 %s, %s, 12288" % (s(S_T1), s(S_T1)))
                else:
                    e("s_nop 0")
            e.vmem("wo", "buffer_load_dwordx4 %s, %s, %s offen offset:%d lds" % (v(DO + j % 3), s(R_B, 4), s(S_T1), (j % 3) * 1024))
        e("v_bfe_u32 %s, v0, 2, 2" % v(T))
        e("v_and_b32 %s, 3, v0" % v(T + 1))
        e("v_lshl_add_u32 %s, %s, 3, %s" % (v(T), v(T), v(T + 1)))
        e("v_mul_u32_u24 %s, 384, %s" % (v(T), v(T)))
        e("v_and_b32 %s, 48, v0" % v(T + 1))
        e("v_add_u32 %s, %s, %s" % (v(WA), v(T), v(T + 1)))
        e("s_mul_i32 %s, %s, 12288" % (s(S_T2), s(SS_)))
        for h in range(2):
            for k in range(6):
                e.vmem("wv", "buffer_load_dwordx4 %s, %s, %s, %s offen offset:%d" % (
                    v(AV + (h * 6 + k) * 4, 4), v(WA), s(R_A, 4), s(S_T2), h * 1536 + k * 64))
        e("v_lshrrev_b32 %s, 4, v0" % v(T))
        e("v_bfe_u32 %s, v0, 2, 2" % v(T + 1))
        e("v_lshl_add_u32 %s, %s, 3, %s" % (v(T), v(T), v(T + 1)))
        e("v_mul_u32_u24 %s, 96, %s" % (v(T), v(T)))
        e("v_and_b32 %s, 3, v0" % v(T + 1))
        e("v_mul_u32_u24 %s, 24, %s" % (v(T + 1), v(T + 1)))
        e("v_add_u32 %s, %s, %s" % (v(T), v(T), v(T + 1)))
        e("v_add_u32 %s, %d, %s" % (v(WA + 1), L_SP, v(T)))
        e.wait_vm("wo")
        for t in range(3):
            for k in range(6):
                for h in range(2):
                    e.lds(("b", t, k), "ds_read_b64_tr_b16 %s, %s offset:%d" % (
                        v(BF + (t * 6 + k) * 4 + 2 * h, 2), v(WA + 1), (32 * k + 4 * h) * 96 + 8 * t))
        e.wait_vm("wv")
        for t in range(3):
            for k in range(6):
                e.wait_ds(("b", t, k))
                for h in range(2):
                    d = D + (t * 2 + h) * 4
                    self.mfma(e, v(d, 4), v(AV + (h * 6 + k) * 4, 4), v(BF + (t * 6 + k) * 4, 4), v(d, 4) if k else "0")
        e("s_mul_i32 %s, %s, 18432" % (s(S_T0), s(SW)))
        e("s_lshl_b32 %s, %s, 10" % (s(S_T1), s(SS_)))
        e("s_add_u32 %s, %s, %s" % (s(S_T0), s(S_T0), s(S_T1)))
        e("s_add_u32 %s, %s, %d" % (s(S_T0), s(S_T0), WS_WVO))
        for t in range(3):
            for j in range(4):
                e("v_cvt_pk_bf16_f32 %s, %s, %s" % (v(AV + 4 * t + j), v(D + t * 8 + 2 * j), v(D + t * 8 + 2 * j + 1)))
            e.vmem("st", "buffer_store_dwordx4 %s, %s, %s, %s offen" % (v(AV + 4 * t, 4), v(V_LANE16), s(R_WS, 4), s(S_T0)))
            if t < 2:
                e("s_add_u32 %s, %s, 6144" % (s(S_T0), s(S_T0)))

    def qk_role(self, e):
        QF, AF, KF, D, CS, XW, RA = 136, 160, 76, 16, 28, 40, 44
        srd(e, R_A, S_WQ, 73728)
        srd(e, R_B, S_WK, 73728)
        srd(e, R_C, S_Q, 6144)
        self.dma_f_offsets(e)
        e("s_mul_i32 %s, %s, 18432" % (s(S_T1), s(S_WAVE)))
        for j in range(18):
            ee = j % 6
            if ee == 0 and j:
                e("s_add_u32 %s, %s, 6144" % (s(S_T1), s(S_T1)))
            if ee % 4 == 0:
                e("s_add_u32 m0, %s, %d" % (s(S_T1), L_R1 + ee * 1024))
                e("s_nop 0")
            e.vmem("wq", "buffer_load_dwordx4 %s, %s, %s offen offset:%d lds" % (v(V_DF + ee), s(R_A, 4), s(S_T1), (ee % 4) * 1024))
        e("v_and_b32 %s, 15, v0" % v(T))
        e("v_mul_u32_u24 %s, 384, %s" % (v(T), v(T)))
        e("v_and_b32 %s, 48, v0" % v(T + 1))
        e("v_add_u32 %s, %s, %s" % (v(RA), v(T), v(T + 1)))
        for k in range(6):
            e.vmem("q", "buffer_load_dwordx4 %s, %s, %s, 0 offen offset:%d" % (v(QF + 4 * k, 4), v(RA), s(R_C, 4), 64 * k))
        e("s_mul_i32 %s, %s, 18432" % (s(S_T1), s(S_WAVE)))
        for t in range(3):
            for k in range(6):
                e.vmem("wk", "buffer_load_dwordx4 %s, %s, %s, %s offen offset:%d" % (
                    acc(KF + (t * 6 + k) * 4, 4), v(RA), s(R_B, 4), s(S_T1), 64 * k))
            if t < 2:
                e("s_add_u32 %s, %s, 6144" % (s(S_T1), s(S_T1)))
        self.consts(e)
        self.xch_write_addr(e, XW, L_XA)
        TA = 46
        e("v_lshrrev_b32 %s, 4, v0" % v(T))
        e("v_bfe_u32 %s, v0, 2, 2" % v(T + 1))
        e("v_lshl_add_u32 %s, %s, 3, %s" % (v(T + 2), v(T), v(T + 1)))
        e("v_mul_u32_u24 %s, 384, %s" % (v(T + 2), v(T + 2)))
        e("v_and_b32 %s, 1, v0" % v(T + 3))
        e("v_lshl_add_u32 %s, %s, 3, %s" % (v(T + 2), v(T + 3), v(T + 2)))
        e("v_add_u32 %s, %d, %s" % (v(T + 2), L_R1, v(T + 2)))
        e("v_and_b32 %s, 2, %s" % (v(T + 1), v(T + 1)))
        e("v_and_or_b32 %s, %s, 1, %s" % (v(T + 1), v(T), v(T + 1)))
        e("v_bfe_u32 %s, v0, 1, 1" % v(T + 3))
        e("v_xor_b32 %s, %s, %s" % (v(T + 1), v(T + 1), v(T + 3)))
        e("s_mul_i32 %s, %s, 6" % (s(S_T0), s(S_WAVE)))
        for t in range(3):
            e("s_add_u32 %s, %s, %d" % (s(S_T1), s(S_T0), 2 * t))
            e("v_xor_b32 %s, %s, %s" % (v(T + 3), s(S_T1), v(T + 1)))
            e("v_lshl_add_u32 %s, %s, 4, %s" % (v(TA + 2 * t), v(T + 3), v(T + 2)))
            e("v_xor_b32 %s, 64, %s" % (v(TA + 2 * t + 1), v(TA + 2 * t)))
        e.wait_vm("q")
        G_, M_, SQ = 88, 92, 96
        for k in range(6):
            self.mfma(e, v(G_, 4), v(QF + 4 * k, 4), v(QF + 4 * k, 4), v(G_, 4) if k else "0")
            self.mfma(e, v(M_, 4), v(V_ONES, 4), v(QF + 4 * k, 4), v(M_, 4) if k else "0")
        e("s_barrier")
        for t in range(3):
            for k in range(6):
                for h in range(2):
                    e.lds(("a", t, k), "ds_read_b64_tr_b16 %s, %s offset:%d" % (
                        v(AF + (t * 6 + k) * 4 + 2 * h, 2), v(TA + 2 * t + h), 12288 * k + 1536 * h))
        flush(self.diag(e, G_, None, T + 2))
        e("v_mfma_f32_16x16x4_f32 %s, %s, %s, %s" % (v(SQ, 4), v(V_C192), v(T + 2), v(V_EPS, 4)))
        for t in range(3):
            for k in range(6):
                e.wait_ds(("a", t, k))
                af = v(AF + (t * 6 + k) * 4, 4)
                self.mfma(e, v(D + 4 * t, 4), af, v(QF + 4 * k, 4), v(D + 4 * t, 4) if k else "0")
                self.mfma(e, v(CS + 4 * t, 4), af, v(V_ONES, 4), v(CS + 4 * t, 4) if k else "0")
        e("v_fma_f32 %s, -%s, %s, %s" % (v(T + 4), v(M_), v(M_), v(SQ)))
        e("v_max_f32 %s, %s, %s" % (v(T + 4), v(T + 4), v(V_EPS)))
        e("v_rsq_f32 %s, %s" % (v(T + 4), v(T + 4)))
        e("v_mul_f32 %s, %s, %s" % (v(T + 5), fl(1.0 / 192), v(M_)))
        e("v_mul_f32 %s, %s, %s" % (v(T + 4), v(V_C192), v(T + 4)))
        for j in range(12):
            e("v_fma_f32 %s, -%s, %s, %s" % (v(D + j), v(T + 5), v(CS + j), v(D + j)))
        for j in range(12):
            e("v_mul_f32 %s, %s, %s" % (v(D + j), v(D + j), v(T + 4)))
        for t in range(3):
            e("v_cvt_pk_bf16_f32 %s, %s, %s" % (v(CS + 2 * t), v(D + 4 * t), v(D + 4 * t + 1)))
            e("v_cvt_pk_bf16_f32 %s, %s, %s" % (v(CS + 2 * t + 1), v(D + 4 * t + 2), v(D + 4 * t + 3)))
            e.lds("x", "ds_write_b64 %s, %s offset:%d" % (v(XW), v(CS + 2 * t, 2), t * 512))
        e("v_add_u32 %s, %d, %s" % (v(T + 6), L_XA, v(V_LANE16)))
        e.wait_ds_all()
        e("s_barrier")
        for k in range(6):
            e.lds(("b", k), "ds_read_b128 %s, %s offset:%d" % (v(QF + 4 * k, 4), v(T + 6), 1024 * k))
        e.wait_vm("wk")
        for k in range(6):
            e.wait_ds(("b", k))
            for t in range(3):
                self.mfma(e, v(D + 4 * t, 4), acc(KF + (t * 6 + k) * 4, 4), v(QF + 4 * k, 4), v(D + 4 * t, 4) if k else "0")
        for j in range(12):
            e("v_mul_f32 %s, %s, %s" % (v(D + j), fl(QSCALE), v(D + j)))
        for t in range(3):
            e("v_cvt_pk_bf16_f32 %s, %s, %s" % (v(CS + 2 * t), v(D + 4 * t), v(D + 4 * t + 1)))
            e("v_cvt_pk_bf16_f32 %s, %s, %s" % (v(CS + 2 * t + 1), v(D + 4 * t + 2), v(D + 4 * t + 3)))
            e.lds("x", "ds_write_b64 %s, %s offset:%d" % (v(XW), v(CS + 2 * t, 2), (L_XB - L_XA) + t * 512))
        e("v_lshrrev_b32 %s, 5, v0" % v(T))
        e("v_bfe_u32 %s, v0, 4, 1" % v(T + 1))
        e("v_lshl_or_b32 %s, %s, 1, %s" % (v(T), v(T + 1), v(T)))
        e("v_and_b32 %s, 15, v0" % v(T + 1))
        e("v_lshlrev_b32 %s, 4, %s" % (v(T + 1), v(T + 1)))
        e("v_lshl_add_u32 %s, %s, 8, %s" % (v(T), v(T), v(T + 1)))
        e("v_add_u32 %s, %d, %s" % (v(T), L_XB, v(T)))
        e.wait_ds_all()
        e("s_barrier")
        e("s_cmp_lg_u32 %s, 0" % s(S_WAVE))
        e("s_cbranch_scc1 L_prep_end")
        for k in range(6):
            e.lds("c", "ds_read_b128 %s, %s offset:%d" % (v(QF + 4 * k, 4), v(T), 1024 * k))
        e.wait_ds_all()
        e("s_movk_i32 %s, 0x1000" % s(S_T0))
        for k in range(6):
            e.vmem("st", "buffer_store_dwordx4 %s, %s, %s, %s offen offset:%d" % (
                v(QF + 4 * k, 4), v(V_LANE16), s(R_WS, 4), s(S_T0) if k >= 4 else "0", WS_QK + (k % 4) * 1024))

    def k_comb(self):
        e = Emit()
        DT, LAM, AC, X = 16, 48, 56, 64
        e("s_cmp_ge_u32 s2, 64")
        e("s_cbranch_scc1 L_comb_end")
        e("s_load_dwordx2 s[4:5], s[0:1], 0")
        e("s_load_dwordx2 s[18:19], s[0:1], 56")
        e("s_load_dwordx2 s[22:23], s[0:1], 72")
        self.lane_ids(e)
        e("s_lshl_b32 %s, s2, 15" % s(S_T0))
        e("s_lshl_b32 %s, %s, 13" % (s(S_T1), s(S_WAVE)))
        e("s_add_u32 %s, %s, %s" % (s(S_T0), s(S_T0), s(S_T1)))
        e("s_add_u32 %s, %s, %d" % (s(S_T0), s(S_T0), WS_PART))
        e("s_add_u32 %s, %s, 4096" % (s(S_T1), s(S_T0)))
        e("s_waitcnt lgkmcnt(0)")
        srd(e, R_WS, S_WS, WS_SIZE)
        for t in range(8):
            e.vmem(("d", t), "buffer_load_dwordx4 %s, %s, %s, %s offen offset:%d" % (
                v(DT + 4 * t, 4), v(V_LANE16), s(R_WS, 4), s(S_T0 + t // 4), (t % 4) * 1024))
        srd(e, R_A, S_Q, 6144)
        srd(e, R_B, S_OUT, 6144)
        e("v_mul_u32_u24 %s, 43, v0" % v(T))
        e("v_lshrrev_b32 %s, 7, %s" % (v(T), v(T)))
        e("v_mul_u32_u24 %s, 3, %s" % (v(T + 1), v(T)))
        e("v_sub_u32 %s, v0, %s" % (v(T + 1), v(T + 1)))
        e("v_and_b32 %s, 3, %s" % (v(T + 2), v(T)))
        e("v_mul_u32_u24 %s, 6, %s" % (v(T + 2), v(T + 2)))
        e("v_lshrrev_b32 %s, 2, %s" % (v(T + 3), v(T)))
        e("v_mul_u32_u24 %s, 3, %s" % (v(T + 3), v(T + 3)))
        e("v_add3_u32 %s, %s, %s, %s" % (v(T + 2), v(T + 2), v(T + 3), v(T + 1)))
        e("v_lshlrev_b32 %s, 2, %s" % (v(T + 2), v(T + 2)))
        e("v_lshlrev_b32 %s, 5, %s" % (v(T), v(T)))
        e("v_lshl_add_u32 %s, %s, 3, %s" % (v(T + 4), v(T + 1), v(T)))
        e("v_cmp_gt_u32 vcc, 24, v0")
        e("v_mov_b32 %s, 0x10000" % v(T + 3))
        e("s_mul_i32 %s, s2, 96" % s(S_T2))
        e("v_cndmask_b32 %s, %s, %s, vcc" % (v(T + 2), v(T + 3), v(T + 2)))
        e.vmem("q", "buffer_load_dword %s, %s, %s, %s offen" % (v(T + 5), v(T + 2), s(R_A, 4), s(S_T2)))
        e.wait_vm(("d", 7))
        MX = T + 6
        e("v_max3_f32 %s, %s, %s, %s" % (v(MX), v(DT + 3), v(DT + 7), v(DT + 11)))
        e("v_max3_f32 %s, %s, %s, %s" % (v(MX), v(MX), v(DT + 15), v(DT + 19)))
        e("v_max3_f32 %s, %s, %s, %s" % (v(MX), v(MX), v(DT + 23), v(DT + 27)))
        e("v_max_f32 %s, %s, %s" % (v(MX), v(MX), v(DT + 31)))
        e("v_max_f32_dpp %s, %s, %s row_ror:8 row_mask:0xf bank_mask:0xf" % (v(MX), v(MX), v(MX)))
        for sw in ("32", "16"):
            e("v_mov_b32 %s, %s" % (v(MX + 1), v(MX)))
            e("v_permlane%s_swap_b32 %s, %s" % (sw, v(MX), v(MX + 1)))
            e("v_max_f32 %s, %s, %s" % (v(MX), v(MX), v(MX + 1)))
        for t in range(8):
            e("v_sub_f32 %s, %s, %s" % (v(LAM + t), v(DT + 4 * t + 3), v(MX)))
        for t in range(8):
            e("v_exp_f32 %s, %s" % (v(LAM + t), v(LAM + t)))
        for t in range(8):
            for j in range(3):
                e("v_lshlrev_b32 %s, 16, %s" % (v(X + 2 * j), v(DT + 4 * t + j)))
                e("v_and_b32 %s, 0xffff0000, %s" % (v(X + 2 * j + 1), v(DT + 4 * t + j)))
            for j in range(6):
                e("%s %s, %s, %s" % ("v_fmac_f32" if t else "v_mul_f32", v(AC + j), v(X + j), v(LAM + t)))
            if t:
                e("v_add_f32 %s, %s, %s" % (v(LAM), v(LAM), v(LAM + t)))
        e("v_mov_b32 %s, %s" % (v(AC + 6), v(LAM)))
        e("v_mov_b32 %s, %s" % (v(AC + 7), v(MX)))
        for j in range(7):
            e("v_add_f32_dpp %s, %s, %s row_ror:8 row_mask:0xf bank_mask:0xf" % (v(AC + j), v(AC + j), v(AC + j)))
        for sw in ("16", "32"):
            for j in range(7):
                e("v_mov_b32 %s, %s" % (v(X + j), v(AC + j)))
            for j in range(7):
                e("v_permlane%s_swap_b32 %s, %s" % (sw, v(AC + j), v(X + j)))
            for j in range(7):
                e("v_add_f32 %s, %s, %s" % (v(AC + j), v(AC + j), v(X + j)))
        e("v_lshlrev_b32 %s, 5, v0" % v(X))
        e("s_lshl_b32 %s, %s, 8" % (s(S_T0), s(S_WAVE)))
        e("v_add_u32 %s, %s, %s" % (v(X), s(S_T0), v(X)))
        e("s_mov_b64 exec, 0xff")
        e.lds("w", "ds_write_b128 %s, %s" % (v(X), v(AC, 4)))
        e.lds("w", "ds_write_b128 %s, %s offset:16" % (v(X), v(AC + 4, 4)))
        e("s_mov_b64 exec, -1")
        e.wait_ds_all()
        e("s_barrier")
        e("s_cmp_lg_u32 %s, 0" % s(S_WAVE))
        e("s_cbranch_scc1 L_comb_end")
        e("v_and_b32 %s, 0xff, %s" % (v(T + 4), v(T + 4)))
        e("v_mov_b32 %s, 24" % v(T))
        for w in range(4):
            e.lds("r", "ds_read_b64 %s, %s offset:%d" % (v(DT + 2 * w, 2), v(T + 4), 256 * w))
            e.lds("r", "ds_read_b64 %s, %s offset:%d" % (v(DT + 8 + 2 * w, 2), v(T), 256 * w))
        e.wait_ds_all()
        e("v_max3_f32 %s, %s, %s, %s" % (v(MX), v(DT + 9), v(DT + 11), v(DT + 13)))
        e("v_max_f32 %s, %s, %s" % (v(MX), v(MX), v(DT + 15)))
        for w in range(4):
            e("v_sub_f32 %s, %s, %s" % (v(LAM + w), v(DT + 9 + 2 * w), v(MX)))
        for w in range(4):
            e("v_exp_f32 %s, %s" % (v(LAM + w), v(LAM + w)))
        for w in range(4):
            op = "v_fmac_f32" if w else "v_mul_f32"
            e("%s %s, %s, %s" % (op, v(AC + 2), v(DT + 8 + 2 * w), v(LAM + w)))
            e("%s %s, %s, %s" % (op, v(AC), v(DT + 2 * w), v(LAM + w)))
            e("%s %s, %s, %s" % (op, v(AC + 1), v(DT + 2 * w + 1), v(LAM + w)))
        e("v_rcp_f32 %s, %s" % (v(AC + 2), v(AC + 2)))
        e.wait_vm("q")
        e("v_lshlrev_b32 %s, 16, %s" % (v(X), v(T + 5)))
        e("v_and_b32 %s, 0xffff0000, %s" % (v(X + 1), v(T + 5)))
        e("v_fmac_f32 %s, %s, %s" % (v(X), v(AC), v(AC + 2)))
        e("v_fmac_f32 %s, %s, %s" % (v(X + 1), v(AC + 1), v(AC + 2)))
        e("v_cvt_pk_bf16_f32 %s, %s, %s" % (v(X), v(X), v(X + 1)))
        e.vmem("o", "buffer_store_dword %s, %s, %s, %s offen" % (v(X), v(T + 2), s(R_B, 4), s(S_T2)))
        e("L_comb_end:")
        e("s_endpgm")
        return fix_hazards(e.lines, "comb", self.a.verbose)

    def build(self):
        ks = [("prep_kernel", self.k_prep(), 25, L_END, 256, 512),
              ("main_kernel", self.k_main(), 256, L_END, 256, 448),
              ("comb_kernel", self.k_comb(), 64, 1024, 72, 72)]
        o = [HDR]
        if self.a.empty_first:
            ks = [("nil0_kernel", ["s_endpgm"], 1, 0, 8, 8)] + ks
        if self.a.empty_last:
            ks = ks + [("nil1_kernel", ["s_endpgm"], 1, 0, 8, 8)]
        for n, _, g, lds, _, _ in ks:
            for _ in range(2 if n.startswith(self.a.repeat or "-") else 1):
                o.append("; @launch kernel=%s grid=(%d,1,1) block=(256,1,1) lds=%d" % (n, g, lds))
        o.append('.amdgcn_target "amdgcn-amd-amdhsa--gfx950"')
        o.append(".text")
        for n, lines, _, _, _, _ in ks:
            o.append(".p2align 8")
            o.append("%s:" % n)
            o += [("    " + x if not x.endswith(":") else x) for x in lines]
        o.append('.section .rodata,"a"')
        for n, _, _, _, ao, nv in ks:
            o.append(".p2align 6")
            o.append(".amdhsa_kernel %s" % n)
            o.append("  .amdhsa_next_free_vgpr %d" % nv)
            o.append("  .amdhsa_next_free_sgpr 102")
            o.append("  .amdhsa_accum_offset %d" % ao)
            o.append("  .amdhsa_group_segment_fixed_size 0")
            o.append("  .amdhsa_kernarg_size 80")
            o.append("  .amdhsa_user_sgpr_count 2")
            o.append("  .amdhsa_user_sgpr_kernarg_segment_ptr 1")
            o.append("  .amdhsa_system_sgpr_workgroup_id_x 1")
            o.append("  .amdhsa_float_denorm_mode_32 3")
            o.append(".end_amdhsa_kernel")
        return "\n".join(o) + "\n"


if __name__ == "__main__":
    ap = argparse.ArgumentParser()
    ap.add_argument("-o", default="v1.s")
    ap.add_argument("--pol", default="nt")
    ap.add_argument("--stamps", action="store_true")
    ap.add_argument("--verbose", action="store_true")
    ap.add_argument("--repeat", default=None)
    ap.add_argument("--empty_first", action="store_true")
    ap.add_argument("--empty_last", action="store_true")
    args = ap.parse_args()
    open(args.o, "w").write(Gen(args).build())
```

```python
import sys, argparse, struct
sys.path.insert(0, "tools")
from asmlib import Emit, v, acc, s, fix_hazards

NAME = "standalone__detection_seg_dino__vision"
HDR = open("/code/%s.s.ref" % NAME).read().split("; Override launch")[0].rstrip()


def f2u(x):
    return struct.unpack("<I", struct.pack("<f", x))[0]


def fl(x):
    return "0x%08x" % f2u(x)


LOG2E = 1.4426950408889634
QSCALE = 192 ** -0.5 * LOG2E * 192.0
EPSQ_VAL = 1e-5 * 192 * 192
THR = 24.0

WS_QK, WS_WVO, WS_PART, WS_STAMP, WS_SIZE = 0, 8192, 131072, 4 << 20, 8 << 20
L_F, L_R0, L_R1, L_SP, L_XA, L_XB, L_ST, L_END = 0, 24576, 73728, 122880, 147456, 153600, 159744, 163840

S_WAVE = 3
S_Q, S_F0, S_F1, S_WQ, S_WK, S_WV, S_WO, S_OUT, S_DBG, S_WS = 4, 6, 8, 10, 12, 14, 16, 18, 20, 22
R_F0, R_F1, R_WS, R_A, R_B, R_C = 24, 28, 32, 64, 68, 72
S_OF, S_OR, S_LF, S_LR0, S_LR1 = 36, 37, 40, 41, 42
S_MASK = 44
S_THR, S_RET, S_T0, S_T1, S_T2, S_T3 = 52, 54, 56, 57, 58, 59
S_STAMP = 76

T = 1
V_DF, V_DR = 16, 22
V_FA, V_FT, V_XA, V_XT = 34, 36, 40, 44
V_ONES, V_EPS = 52, 56
V_C192, V_CQ, V_NEGM, V_L, V_PM, V_LANE16 = 60, 61, 62, 63, 64, 65
V_PFB, V_PF, V_P = 66, 68, 72
V_S1, V_M1, V_G1 = 76, 80, 84
V_TILE = [88, 104]
V_SS = [120, 124]
V_RS = [128, 132]
V_QK, V_W = 136, 160
V_JUNK = 232
V_E = 236
A_O, A_FA, A_FT, A_XA, A_XT = 0, 48, 72, 96, 144


def srd(e, r, base, size, add=None):
    if add is None:
        e("s_mov_b32 %s, %s" % (s(r), s(base)))
        e("s_mov_b32 %s, %s" % (s(r + 1), s(base + 1)))
    else:
        e("s_add_u32 %s, %s, %s" % (s(r), s(base), add))
        e("s_addc_u32 %s, %s, 0" % (s(r + 1), s(base + 1)))
    e("s_mov_b32 %s, %d" % (s(r + 2), size))
    e("s_mov_b32 %s, 0x20000" % s(r + 3))


def weave(e, mfmas, fillers, start=0, per_gap=2):
    fillers = list(fillers)
    for i, m in enumerate(mfmas):
        m()
        if i >= start:
            budget = per_gap
            while fillers and fillers[0][1] <= budget:
                fn, c = fillers.pop(0)
                fn()
                budget -= c
    return fillers


def flush(fillers):
    for fn, _ in fillers:
        fn()


def I(e, text, cost=1):
    return (lambda: e(text), cost)


class Gen:
    def __init__(self, args):
        self.a = args
        self.pol = args.pol
        self.nstamp = 0

    def stamp(self, e, idx):
        if self.a.stamps:
            e("s_memrealtime %s" % s(S_STAMP + 2 * idx, 2))
            e("s_waitcnt lgkmcnt(0)")
            e.ds_done = len(e.ds)
            self.nstamp = max(self.nstamp, idx + 1)

    def mfma(self, e, d, a, b, c):
        e("v_mfma_f32_16x16x32_bf16 %s, %s, %s, %s" % (d, a, b, c))

    def lane_ids(self, e):
        e("v_lshrrev_b32 %s, 6, v0" % v(T))
        e("v_and_b32 v0, 63, v0")
        e("v_readfirstlane_b32 %s, %s" % (s(S_WAVE), v(T)))
        e("v_lshlrev_b32 %s, 4, v0" % v(V_LANE16))

    def dma_f_offsets(self, e):
        e("v_lshrrev_b32 %s, 2, v0" % v(T))
        e("v_and_b32 %s, 14, %s" % (v(T), v(T)))
        for e0 in range(3):
            k = sum((((8 * e0 + h) // 3) >> 1) << (2 * h) for h in range(8))
            e("s_mov_b32 %s, 0x%x" % (s(S_T0), k))
            e("v_bfe_u32 %s, %s, %s, 2" % (v(T + 1), s(S_T0), v(T)))
            e("v_lshlrev_b32 %s, 5, %s" % (v(T + 1), v(T + 1)))
            e("v_xor_b32 %s, %s, %s" % (v(V_DF + e0), v(V_LANE16), v(T + 1)))
        e("v_xor_b32 %s, 16, %s" % (v(V_DF + 3), v(V_DF)))
        e("v_xor_b32 %s, 0x1010, %s" % (v(V_DF + 4), v(V_DF + 1)))
        e("v_xor_b32 %s, 0x1010, %s" % (v(V_DF + 5), v(V_DF + 2)))

    def dma_r_offsets(self, e):
        e("v_lshrrev_b32 %s, 3, v0" % v(T))
        e("v_and_b32 %s, 6, %s" % (v(T), v(T)))
        for e0 in range(3):
            k = sum(((4 * e0 + g) // 3) << (2 * g) for g in range(4))
            e("s_mov_b32 %s, 0x%x" % (s(S_T0), k))
            e("v_bfe_u32 %s, %s, %s, 2" % (v(T + 1), s(S_T0), v(T)))
            e("v_lshlrev_b32 %s, 5, %s" % (v(T + 1), v(T + 1)))
            e("v_xor_b32 %s, %s, %s" % (v(V_DR + e0), v(V_LANE16), v(T + 1)))
        for ee in range(3, 12):
            c = [0, 128, 16, 144][ee // 3] | ((ee - ee % 4) * 1024)
            e("v_xor_b32 %s, 0x%x, %s" % (v(V_DR + ee), c, v(V_DR + ee % 3)))

    def lds_read_addrs(self, e):
        i_, g_, pg, rho, lo, t0, t1 = T, T + 1, T + 2, T + 3, T + 4, T + 5, T + 6
        e("v_and_b32 %s, 15, v0" % v(i_))
        e("v_lshrrev_b32 %s, 4, v0" % v(g_))
        e("v_lshrrev_b32 %s, 1, %s" % (v(t0), v(g_)))
        e("v_and_b32 %s, 1, %s" % (v(pg), v(g_)))
        e("v_lshl_or_b32 %s, %s, 1, %s" % (v(pg), v(pg), v(t0)))
        e("v_lshrrev_b32 %s, 2, v0" % v(rho))
        e("v_bfe_u32 %s, v0, 1, 1" % v(lo))
        e("v_lshrrev_b32 %s, 3, %s" % (v(t0), v(i_)))
        e("v_and_or_b32 %s, %s, 6, %s" % (v(t0), v(i_), v(t0)))
        e("v_xor_b32 %s, %s, %s" % (v(t0), v(t0), v(pg)))
        e("v_mul_u32_u24 %s, 384, %s" % (v(t1), v(i_)))
        e("v_lshl_add_u32 %s, %s, 4, %s" % (v(t0), v(t0), v(t1)))
        e("v_add_u32 %s, %s, %s" % (v(V_FA), s(S_LF), v(t0)))
        e("v_xor_b32 %s, 64, %s" % (v(V_FA + 1), v(V_FA)))
        e("v_lshrrev_b32 %s, 3, %s" % (v(t0), v(i_)))
        e("v_and_b32 %s, 7, %s" % (v(t1), v(i_)))
        e("v_lshl_or_b32 %s, %s, 1, %s" % (v(t0), v(t1), v(t0)))
        e("v_xor_b32 %s, %s, %s" % (v(t0), v(t0), v(pg)))
        e("v_mul_u32_u24 %s, 768, %s" % (v(t1), v(i_)))
        e("v_lshl_add_u32 %s, %s, 4, %s" % (v(t0), v(t0), v(t1)))
        e("v_add_u32 %s, %s, %s" % (v(V_XA), s(S_LR0), v(t0)))
        for x in range(1, 4):
            e("v_xor_b32 %s, 0x%x, %s" % (v(V_XA + x), x * 64, v(V_XA)))
        e("v_and_b32 %s, 1, v0" % v(g_))
        e("v_lshlrev_b32 %s, 3, %s" % (v(g_), v(g_)))
        e("v_lshrrev_b32 %s, 3, %s" % (v(t0), v(rho)))
        e("v_and_or_b32 %s, %s, 6, %s" % (v(t0), v(rho), v(t0)))
        e("v_xor_b32 %s, %s, %s" % (v(t0), v(t0), v(lo)))
        e("v_mul_u32_u24 %s, 384, %s" % (v(t1), v(rho)))
        e("v_lshl_add_u32 %s, %s, 4, %s" % (v(t0), v(t0), v(t1)))
        e("v_add3_u32 %s, %s, %s, %s" % (v(V_FT), s(S_LF), v(t0), v(g_)))
        for x in range(1, 4):
            e("v_xor_b32 %s, 0x%x, %s" % (v(V_FT + x), x * 32, v(V_FT)))
        e("v_lshrrev_b32 %s, 3, %s" % (v(t0), v(rho)))
        e("v_and_b32 %s, 7, %s" % (v(t1), v(rho)))
        e("v_lshl_or_b32 %s, %s, 1, %s" % (v(t0), v(t1), v(t0)))
        e("v_xor_b32 %s, %s, %s" % (v(t0), v(t0), v(lo)))
        e("v_mul_u32_u24 %s, 768, %s" % (v(t1), v(rho)))
        e("v_lshl_add_u32 %s, %s, 4, %s" % (v(t0), v(t0), v(t1)))
        e("v_add3_u32 %s, %s, %s, %s" % (v(V_XT), s(S_LR0), v(t0), v(g_)))
        for x in range(1, 8):
            e("v_xor_b32 %s, 0x%x, %s" % (v(V_XT + x), x * 32, v(V_XT)))

    def consts(self, e):
        for r in range(4):
            e("v_mov_b32 %s, 0x3f803f80" % v(V_ONES + r))
            e("v_mov_b32 %s, %s" % (v(V_EPS + r), fl(EPSQ_VAL)))
            e("s_mov_b32 %s, 0x%x" % (s(S_MASK + 2 * r), (1 + (1 << 20)) << r))
            e("s_mov_b32 %s, 0x%x" % (s(S_MASK + 2 * r + 1), ((1 << 8) + (1 << 28)) << r))
        e("v_mov_b32 %s, %s" % (v(V_C192), fl(192.0)))

    def xch_write_addr(self, e, dst, base):
        e("v_lshrrev_b32 %s, 5, v0" % v(T))
        e("v_lshlrev_b32 %s, 8, %s" % (v(T), v(T)))
        e("v_and_b32 %s, 15, v0" % v(T + 1))
        e("v_lshl_add_u32 %s, %s, 4, %s" % (v(T), v(T + 1), v(T)))
        e("v_bfe_u32 %s, v0, 4, 1" % v(T + 1))
        e("v_lshl_add_u32 %s, %s, 3, %s" % (v(T), v(T + 1), v(T)))
        e("s_mul_i32 %s, %s, 1536" % (s(S_T0), s(S_WAVE)))
        e("s_add_u32 %s, %s, %d" % (s(S_T0), s(S_T0), base))
        e("v_add_u32 %s, %s, %s" % (v(dst), s(S_T0), v(T)))

    def diag(self, e, g, h, out):
        f = []
        for r in range(4):
            if h is not None:
                f.append(I(e, "v_fma_f32 %s, %s, 2.0, %s" % (v(g + r), v(h + r), v(g + r))))
        f.append(I(e, "v_cndmask_b32 %s, 0, %s, %s" % (v(out), v(g), s(S_MASK, 2))))
        for r in range(1, 4):
            f.append(I(e, "v_cndmask_b32 %s, %s, %s, %s" % (v(out), v(out), v(g + r), s(S_MASK + 2 * r, 2))))
        return f

    def dma_list(self, e, kind, k):
        out = []
        if kind == "F":
            n, voff, rs, lb, so, add = 6, V_DF, R_F1, S_LF, S_OF, k * 24576
        else:
            rho = int(kind[1])
            n, voff, rs, lb, so, add = 12, V_DR, R_F0, (S_LR0, S_LR1)[rho], S_OR, k * 49152 + rho * 196608
        sreg = {"F": S_T1, "R0": S_T2, "R1": S_T3}[kind]

        def one(ee):
            def fn():
                if ee % 4 == 0:
                    e("s_add_u32 m0, %s, %d" % (s(lb), ee * 1024))
                if ee == 0:
                    e("s_add_u32 %s, %s, %d" % (s(sreg), s(so), add))
                e.vmem((kind, k), "buffer_load_dwordx4 %s, %s, %s offen offset:%d %s lds" % (
                    v(voff + ee), s(rs, 4), s(sreg), (ee % 4) * 1024, self.pol))
            return fn
        for ee in range(n):
            out.append(one(ee))
        return out

    def issue(self, e, kind, k, extra):
        for j, fn in enumerate(self.dma_list(e, kind, k)):
            fn()
            if j % 2 == 1 and extra:
                extra.pop(0)()

    def phase_f(self, e, k, extra):
        e.wait_vm(("F", k))
        for st in range(6):
            e.lds(("fa", st), "ds_read_b128 %s, %s offset:%d" % (acc(A_FA + 4 * st, 4), v(V_FA + (st & 1)), (st >> 1) * 128))
        tr = []
        for n in range(12):
            tr.append((lambda n=n: e.lds("ft", "ds_read_b64_tr_b16 %s, %s offset:%d" % (
                acc(A_FT + 2 * n, 2), v(V_FT + (n & 3)), (n >> 2) * 128)), 1))
        ms = []
        for st in range(6):
            fa = acc(A_FA + 4 * st, 4)

            def g(st=st, fa=fa):
                e.wait_ds(("fa", st))
                self.mfma(e, v(V_G1, 4), fa, fa, v(V_G1, 4) if st else "0")
            ms.append(g)
            ms.append(lambda st=st, fa=fa: self.mfma(e, v(V_M1, 4), fa, v(V_ONES, 4), v(V_M1, 4) if st else "0"))
        flush(weave(e, ms, tr, 0, 2))
        e.wait_ds_all()
        if k < 3:
            self.issue(e, "F", k + 1, extra)
        if k == 0:
            self.finish_qk(e)
        for st in range(6):
            self.mfma(e, v(V_S1, 4), acc(A_FA + 4 * st, 4), v(V_QK + 4 * st, 4), v(V_S1, 4) if st else "0")

    def soft_a(self, e, t):
        S_, M_ = V_TILE[t], V_TILE[t] + 4
        f = []
        for r in range(4):
            f.append(I(e, "v_fma_f32 %s, -%s, %s, %s" % (v(V_RS[t] + r), v(M_ + r), v(M_ + r), v(V_SS[t] + r))))
        for r in range(4):
            f.append(I(e, "v_max_f32 %s, %s, %s" % (v(V_RS[t] + r), v(V_RS[t] + r), v(V_EPS))))
        for r in range(4):
            f.append(I(e, "v_rsq_f32 %s, %s" % (v(V_RS[t] + r), v(V_RS[t] + r)), 2))
        return f

    def soft_b(self, e, t, first):
        S_, M_ = V_TILE[t], V_TILE[t] + 4
        f = []
        for r in range(4):
            f.append(I(e, "v_fma_f32 %s, -%s, %s, %s" % (v(S_ + r), v(M_ + r), v(V_CQ), v(S_ + r))))
        for r in range(4):
            if first:
                f.append(I(e, "v_mul_f32 %s, %s, %s" % (v(S_ + r), v(S_ + r), v(V_RS[t] + r))))
            else:
                f.append(I(e, "v_fma_f32 %s, %s, %s, %s" % (v(S_ + r), v(S_ + r), v(V_RS[t] + r), v(V_NEGM))))
        f.append(I(e, "v_max3_f32 %s, %s, %s, %s" % (v(T), v(S_), v(S_ + 1), v(S_ + 2))))
        f.append(I(e, "v_max_f32 %s, %s, %s" % (v(T), v(T), v(S_ + 3))))
        if first:
            for sw in ("32", "16"):
                f.append(I(e, "v_mov_b32 %s, %s" % (v(T + 1), v(T))))
                f.append(I(e, "v_permlane%s_swap_b32 %s, %s" % (sw, v(T), v(T + 1))))
                f.append(I(e, "v_max_f32 %s, %s, %s" % (v(T), v(T), v(T + 1))))
            f.append(I(e, "v_sub_f32 %s, 0, %s" % (v(V_NEGM), v(T))))
            for r in range(4):
                f.append(I(e, "v_sub_f32 %s, %s, %s" % (v(S_ + r), v(S_ + r), v(T))))
        else:
            site = len(self.sites)
            self.sites.append(t)

            def chk():
                e("v_cmp_lt_f32 vcc, %s, %s" % (s(S_THR), v(T)))
                e("s_cbranch_vccnz L_site%d" % site)
                e("L_back%d:" % site)
            f.append((chk, 2))
        return f

    def soft_c(self, e, t, first, rho):
        S_, M_ = V_TILE[t], V_TILE[t] + 4
        P_ = V_TILE[t] + 8
        crit, late = [], []
        for r in range(4):
            crit.append(I(e, "v_exp_f32 %s, %s" % (v(P_ + r), v(S_ + r)), 2))
        for r in range(4):
            crit.append(I(e, "v_mul_f32 %s, %s, %s" % (v(S_ + r), v(P_ + r), v(V_RS[t] + r))))
        for r in range(4):
            if first and r == 0:
                late.append(I(e, "v_mov_b32 %s, %s" % (v(V_L), v(P_))))
                late.append(I(e, "v_mul_f32 %s, %s, %s" % (v(V_PM), v(S_), v(M_))))
            else:
                late.append(I(e, "v_add_f32 %s, %s, %s" % (v(V_L), v(V_L), v(P_ + r))))
                late.append(I(e, "v_fmac_f32 %s, %s, %s" % (v(V_PM), v(S_ + r), v(M_ + r))))
        for r in range(4):
            if rho == 0 and t == 0:
                late.append(I(e, "v_mov_b32 %s, %s" % (v(V_PF + r), v(S_ + r))))
            else:
                late.append(I(e, "v_add_f32 %s, %s, %s" % (v(V_PF + r), v(V_PF + r), v(S_ + r))))
        return crit, late

    def phase_r(self, e, k, rho, extra):
        kind = "R%d" % rho
        base = rho * (L_R1 - L_R0)
        first = (k == 0 and rho == 0)
        e.wait_vm((kind, k))
        for t in range(2):
            for st in range(6):
                v0 = 24 * t + 4 * st
                e.lds(("xa", t, st), "ds_read_b128 %s, %s offset:%d" % (
                    acc(A_XA + 24 * t + 4 * st, 4), v(V_XA + ((v0 & 12) >> 2)), (v0 & ~15) * 16 + base))
        tr = []
        for n in range(12):
            for t in range(2):
                vv = 24 * t + 2 * n
                tr.append((lambda n=n, t=t, vv=vv: e.lds("xt", "ds_read_b64_tr_b16 %s, %s offset:%d" % (
                    acc(A_XT + 4 * n + 2 * t, 2), v(V_XT + ((vv & 14) >> 1)), (vv & ~15) * 16 + base)), 1))

        def gh(t):
            ms = []
            G_, H_ = V_TILE[t] + 8, V_TILE[t] + 12
            for st in range(6):
                xa = acc(A_XA + 24 * t + 4 * st, 4)

                def g(st=st, xa=xa):
                    e.wait_ds(("xa", t, st))
                    self.mfma(e, v(G_, 4), xa, xa, v(G_ if st else V_G1, 4))
                ms.append(g)
                ms.append(lambda st=st, xa=xa: self.mfma(e, v(H_, 4), xa, acc(A_FA + 4 * st, 4), v(H_, 4) if st else "0"))
            return ms

        def msq(t):
            S_, M_ = V_TILE[t], V_TILE[t] + 4
            ms = []
            for st in range(6):
                ms.append(lambda st=st: self.mfma(e, v(M_, 4), acc(A_XA + 24 * t + 4 * st, 4), v(V_ONES, 4), v(M_ if st else V_M1, 4)))
            for st in range(6):
                ms.append(lambda st=st: self.mfma(e, v(S_, 4), acc(A_XA + 24 * t + 4 * st, 4), v(V_QK + 4 * st, 4), v(S_ if st else V_S1, 4)))
            return ms

        def ssm(t):
            return (lambda: e("v_mfma_f32_16x16x4_f32 %s, %s, %s, %s" % (v(V_SS[t], 4), v(T + 2 + t), v(V_C192), v(V_EPS, 4))), 2)

        def dg(t):
            return self.diag(e, V_TILE[t] + 8, V_TILE[t] + 12, T + 2 + t)

        left = weave(e, gh(0), tr, 0, 2)
        left = weave(e, msq(0), left + [(lambda: None, 0)] + dg(0) + [I(e, "s_nop 0"), I(e, "s_nop 0"), ssm(0)], 3 if not left else 0, 2)
        flush(left)
        e.wait_ds_all()
        if k < 3:
            self.issue(e, kind, k + 1, extra)
        c0, l0 = self.soft_c(e, 0, first, rho)
        q0 = self.soft_a(e, 0) + self.soft_b(e, 0, first) + c0
        left = weave(e, gh(1), q0, 3, 2)
        nl = sum(c for _, c in left)
        pad = l0[:max(0, 8 - nl)]
        rest = l0[len(pad):]
        left = weave(e, msq(1), left + pad + dg(1) + rest[:2] + [ssm(1)] + rest[2:], 0, 2)
        flush(left)
        c1, l1 = self.soft_c(e, 1, False, rho)
        flush(self.soft_a(e, 1) + self.soft_b(e, 1, False) + c1)
        for t in range(2):
            S_ = V_TILE[t]
            e("v_cvt_pk_bf16_f32 %s, %s, %s" % (v(V_P + 2 * t), v(S_), v(S_ + 1)))
            e("v_cvt_pk_bf16_f32 %s, %s, %s" % (v(V_P + 2 * t + 1), v(S_ + 2), v(S_ + 3)))
        if rho == 1:
            l1 = l1[8:] + [I(e, "v_cvt_pk_bf16_f32 %s, %s, %s" % (v(V_PFB), v(V_PF), v(V_PF + 1))),
                           I(e, "v_cvt_pk_bf16_f32 %s, %s, %s" % (v(V_PFB + 1), v(V_PF + 2), v(V_PF + 3)))] + l1[:8]
        ms = [(lambda n=n: self.mfma(e, acc(A_O + 4 * n, 4), acc(A_XT + 4 * n, 4), v(V_P, 4),
                                     "0" if first else acc(A_O + 4 * n, 4))) for n in range(12)]
        flush(weave(e, ms, l1, 0, 2))
        if rho == 1:
            for n in range(12):
                e("v_mfma_f32_16x16x16_bf16 %s, %s, %s, %s" % (
                    acc(A_O + 4 * n, 4), acc(A_FT + 2 * n, 2), v(V_PFB, 2), acc(A_O + 4 * n, 4)))

    def rare(self, e):
        for site, t in enumerate(self.sites):
            e("L_site%d:" % site)
            e("s_call_b64 %s, L_rare%d" % (s(S_RET, 2), t))
            e("s_branch L_back%d" % site)
        for t in range(2):
            r_ = Emit()
            r_("L_rare%d:" % t)
            r_("s_nop 7")
            r_("s_nop 7")
            for sw in ("32", "16"):
                r_("v_mov_b32 %s, %s" % (v(T + 1), v(T)))
                r_("v_permlane%s_swap_b32 %s, %s" % (sw, v(T), v(T + 1)))
                r_("v_max_f32 %s, %s, %s" % (v(T), v(T), v(T + 1)))
            r_("v_max_f32 %s, 0, %s" % (v(T), v(T)))
            r_("v_sub_f32 %s, %s, %s" % (v(V_NEGM), v(V_NEGM), v(T)))
            for r in range(4):
                r_("v_sub_f32 %s, %s, %s" % (v(V_TILE[t] + r), v(V_TILE[t] + r), v(T)))
            r_("v_sub_f32 %s, 0, %s" % (v(T), v(T)))
            r_("v_exp_f32 %s, %s" % (v(T), v(T)))
            tgt = [V_L, V_PM] + [V_PF + r for r in range(4)]
            if t == 1:
                tgt += [V_TILE[0] + r for r in range(4)]
            for x in tgt:
                r_("v_mul_f32 %s, %s, %s" % (v(x), v(x), v(T)))
            for n in range(48):
                r_("v_accvgpr_read_b32 %s, %s" % (v(T + 1), acc(A_O + n)))
                r_("v_mul_f32 %s, %s, %s" % (v(T + 1), v(T + 1), v(T)))
                r_("v_accvgpr_write_b32 %s, %s" % (acc(A_O + n), v(T + 1)))
            r_("s_nop 3")
            r_("s_setpc_b64 %s" % s(S_RET, 2))
            for ln in fix_hazards(r_.lines, "rare"):
                e(ln)

    def finish_qk(self, e):
        e.wait_vm("qk")
        for st in range(6):
            self.mfma(e, v(V_SS[0], 4), v(V_ONES, 4), v(V_QK + 4 * st, 4), v(V_SS[0], 4) if st else "0")
        e("v_mul_f32 %s, %s, %s" % (v(V_CQ), fl(1.0 / 192), v(V_SS[0])))

    def epilogue(self, e):
        XW, RD, AR = V_E, V_E + 1, V_E + 2
        ST = 16
        OT = 76
        FV, LS, PS, ONE = 32, 36, 40, 44
        for n in range(12):
            e.lds("x1", "ds_write_b128 %s, %s offset:%d" % (v(AR), acc(A_O + 4 * n, 4), n * 1024))
        e.lds("x1", "ds_write_b128 %s, %s" % (v(AR + 1), v(V_NEGM, 4)))
        e("v_mov_b32 %s, 1.0" % v(ONE))
        e.wait_ds_all()
        e("s_barrier")
        for w in range(4):
            e.lds(("st", w), "ds_read_b128 %s, %s offset:%d" % (v(ST + 4 * w, 4), v(AR + 2), w * 1024))
        for w in range(4):
            for t in range(3):
                e.lds(("o", w), "ds_read_b128 %s, %s offset:%d" % (v(OT + 12 * w + 4 * t, 4), v(RD), w * 12288 + t * 1024))
        e.wait_ds(("st", 3))
        NM = T + 8
        e("v_min3_f32 %s, %s, %s, %s" % (v(NM), v(ST), v(ST + 4), v(ST + 8)))
        e("v_min_f32 %s, %s, %s" % (v(NM), v(NM), v(ST + 12)))
        for w in range(4):
            e("v_sub_f32 %s, %s, %s" % (v(FV + w), v(NM), v(ST + 4 * w)))
        for w in range(4):
            e("v_exp_f32 %s, %s" % (v(FV + w), v(FV + w)))
        e("v_mul_f32 %s, %s, %s" % (v(T), v(FV), v(ST + 1)))
        e("v_mul_f32 %s, %s, %s" % (v(T + 1), v(FV), v(ST + 2)))
        for w in range(1, 4):
            e("v_fmac_f32 %s, %s, %s" % (v(T), v(FV + w), v(ST + 4 * w + 1)))
            e("v_fmac_f32 %s, %s, %s" % (v(T + 1), v(FV + w), v(ST + 4 * w + 2)))
        e.wait_ds(("o", 0))
        for j in range(2):
            e("v_mul_f32 %s, %s, %s" % (v(OT + j), v(OT + j), v(FV)))
        e("v_mfma_f32_16x16x4_f32 %s, %s, %s, 0" % (v(LS, 4), v(ONE), v(T)))
        e("v_mfma_f32_16x16x4_f32 %s, %s, %s, 0" % (v(PS, 4), v(ONE), v(T + 1)))
        for j in range(2, 12):
            e("v_mul_f32 %s, %s, %s" % (v(OT + j), v(OT + j), v(FV)))
        for w in range(1, 4):
            e.wait_ds(("o", w))
            for j in range(12):
                e("v_fmac_f32 %s, %s, %s" % (v(OT + j), v(OT + 12 * w + j), v(FV + w)))
            if w == 1:
                e("v_rcp_f32 %s, %s" % (v(T + 2), v(LS)))
                e("v_log_f32 %s, %s" % (v(T + 3), v(LS)))
            if w == 2:
                e("v_mul_f32 %s, %s, %s" % (v(T + 4), v(V_C192), v(T + 2)))
                e("v_mul_f32 %s, %s, %s" % (v(T + 5), v(PS), v(T + 2)))
                e("v_sub_f32 %s, %s, %s" % (v(T + 3), v(T + 3), v(NM)))
        for j in range(12):
            e("v_fma_f32 %s, %s, %s, -%s" % (v(OT + j), v(OT + j), v(T + 4), v(T + 5)))
        for t in range(3):
            e("v_cvt_pk_bf16_f32 %s, %s, %s" % (v(OT + 12 + 2 * t), v(OT + 4 * t), v(OT + 4 * t + 1)))
            e("v_cvt_pk_bf16_f32 %s, %s, %s" % (v(OT + 13 + 2 * t), v(OT + 4 * t + 2), v(OT + 4 * t + 3)))
            e.lds("x2", "ds_write_b64 %s, %s offset:%d" % (v(XW), v(OT + 12 + 2 * t, 2), t * 512))
        e.wait_vm("wvo")
        e.wait_ds_all()
        e("s_barrier")
        B = V_QK
        for st in range(6):
            e.lds(("b", st), "ds_read_b128 %s, %s offset:%d" % (v(B + 4 * st, 4), v(AR + 3), st * 1024))
        D = 16
        for st in range(6):
            e.wait_ds(("b", st))
            for t in range(3):
                self.mfma(e, v(D + 4 * t, 4), v(V_W + (t * 6 + st) * 4, 4), v(B + 4 * st, 4), v(D + 4 * t, 4) if st else "0")
        O_ = 32
        e("v_mov_b32 %s, %s" % (v(O_ + 3), v(T + 3)))
        e("v_mov_b32 %s, %s" % (v(O_ + 7), v(T + 3)))
        for j in range(6):
            e("v_cvt_pk_bf16_f32 %s, %s, %s" % (v(O_ + j + j // 3), v(D + 2 * j), v(D + 2 * j + 1)))
        e.vmem("out", "buffer_store_dwordx4 %s, %s, %s, %s offen" % (v(O_, 4), v(AR + 4), s(R_WS, 4), s(S_T0)))
        e.vmem("out", "buffer_store_dwordx4 %s, %s, %s, %s offen offset:64" % (v(O_ + 4, 4), v(AR + 4), s(R_WS, 4), s(S_T0)))

    def epilogue_addrs(self, e):
        XW, RD, AR = V_E, V_E + 1, V_E + 2
        self.xch_write_addr(e, XW, L_XA)
        e("s_mul_i32 %s, %s, 3072" % (s(S_T0), s(S_WAVE)))
        e("s_add_u32 %s, %s, %d" % (s(S_T0), s(S_T0), L_R0))
        e("v_add_u32 %s, %s, %s" % (v(RD), s(S_T0), v(V_LANE16)))
        e("v_add_u32 %s, %s, %s" % (v(AR), s(S_LR0), v(V_LANE16)))
        e("s_lshl_b32 %s, %s, 10" % (s(S_T0), s(S_WAVE)))
        e("v_add_u32 %s, %d, %s" % (v(AR + 2), L_ST, v(V_LANE16)))
        e("v_add_u32 %s, %s, %s" % (v(AR + 1), s(S_T0), v(AR + 2)))
        e("v_add_u32 %s, %d, %s" % (v(AR + 3), L_XA, v(V_LANE16)))
        e("v_and_b32 %s, 15, v0" % v(T))
        e("v_lshlrev_b32 %s, 17, %s" % (v(T), v(T)))
        e("v_and_b32 %s, 48, v0" % v(T + 1))
        e("v_add_u32 %s, %s, %s" % (v(AR + 4), v(T), v(T + 1)))

    def code_prefetch(self, e, start, end):
        e("s_getpc_b64 %s" % s(S_RET, 2))
        e("L_pc_%s:" % start)
        e("v_lshlrev_b32 %s, 7, v0" % v(V_JUNK + 1))
        e("v_min_u32 %s, %s - L_pc_%s - 4, %s" % (v(V_JUNK + 1), end, start, v(V_JUNK + 1)))
        e.vmem("pf", "global_load_dword %s, %s, %s" % (v(V_JUNK), v(V_JUNK + 1), s(S_RET, 2)))

    def write_stamps(self, e):
        if not self.a.stamps:
            return
        n = 12
        e("s_getreg_b32 %s, hwreg(HW_REG_XCC_ID)" % s(S_T1))
        for j in range(n):
            src = s(S_STAMP + 2 * j) if j < self.nstamp else "0"
            if j == n - 1:
                src = s(S_T1)
            e("v_mov_b32 %s, %s" % (v(200 + j), src))
        e("s_lshl_b32 %s, s2, 2" % s(S_T1))
        e("s_add_u32 %s, %s, %s" % (s(S_T1), s(S_T1), s(S_WAVE)))
        e("s_mul_i32 %s, %s, %d" % (s(S_T1), s(S_T1), n * 4))
        e("s_add_u32 %s, %s, %d" % (s(S_T1), s(S_T1), WS_STAMP))
        e("v_mov_b32 %s, 0" % v(T))
        e("v_cmp_eq_u32 vcc, 0, v0")
        e("s_and_saveexec_b64 %s, vcc" % s(S_RET, 2))
        for j in range(n // 4):
            e("buffer_store_dwordx4 %s, %s, %s, %s offen offset:%d" % (v(200 + 4 * j, 4), v(T), s(R_WS, 4), s(S_T1), 16 * j))

    def k_main(self):
        e = Emit()
        self.sites = []
        self.nstamp = 0
        e("s_cmp_ge_u32 s2, 256")
        e("s_cbranch_scc1 L_main_end")
        e("s_load_dwordx16 s[4:19], s[0:1], 0")
        e("s_load_dwordx4 s[20:23], s[0:1], 64")
        self.code_prefetch(e, "main", "L_main_codeend")
        self.lane_ids(e)
        self.dma_f_offsets(e)
        self.dma_r_offsets(e)
        e("s_mul_i32 %s, %s, 6144" % (s(S_OF), s(S_WAVE)))
        e("s_mul_i32 %s, %s, 12288" % (s(S_OR), s(S_WAVE)))
        e("s_add_u32 %s, %s, %d" % (s(S_LF), s(S_OF), L_F))
        e("s_add_u32 %s, %s, %d" % (s(S_LR0), s(S_OR), L_R0))
        e("s_add_u32 %s, %s, %d" % (s(S_LR1), s(S_OR), L_R1))
        e("s_mul_i32 %s, s2, 393216" % s(S_T0))
        e("s_mul_i32 %s, s2, 98304" % s(S_T1))
        e("s_waitcnt lgkmcnt(0)")
        srd(e, R_F1, S_F1, 98304, s(S_T1))
        srd(e, R_F0, S_F0, 393216, s(S_T0))
        srd(e, R_WS, S_WS, WS_SIZE)
        self.stamp(e, 0)
        self.issue(e, "F", 0, [])
        e("s_movk_i32 %s, 0x1000" % s(S_T0))
        for st in range(6):
            e.vmem("qk", "buffer_load_dwordx4 %s, %s, %s, %s offen offset:%d" % (
                v(V_QK + 4 * st, 4), v(V_LANE16), s(R_WS, 4), s(S_T0) if st >= 4 else "0", WS_QK + (st % 4) * 1024))
        self.issue(e, "R0", 0, [])
        self.lds_read_addrs(e)
        self.consts(e)
        self.epilogue_addrs(e)
        e("s_mov_b32 %s, %s" % (s(S_THR), fl(THR)))
        self.issue(e, "R1", 0, [])
        self.stamp(e, 1)
        e("s_mul_i32 %s, %s, 18432" % (s(60), s(S_WAVE)))
        extra = []
        for j in range(18):
            def ld(j=j):
                if j % 4 == 0:
                    e("s_add_u32 %s, %s, %d" % (s(61), s(60), WS_WVO + j * 1024))
                e.vmem("wvo", "buffer_load_dwordx4 %s, %s, %s, %s offen offset:%d" % (
                    v(V_W + 4 * j, 4), v(V_LANE16), s(R_WS, 4), s(61), (j % 4) * 1024))
            extra.append(ld)
        for k in range(4):
            self.phase_f(e, k, extra if k > 0 else [])
            if k == 0:
                self.stamp(e, 2)
            self.phase_r(e, k, 0, extra)
            if k == 3:
                self.stamp(e, 5)
                e.wait_vm(("R1", 3))
                self.stamp(e, 6)
            self.phase_r(e, k, 1, extra)
            if k in (0, 1):
                self.stamp(e, 3 + k)
        assert not extra
        self.stamp(e, 7)
        e("s_lshl_b32 %s, %s, 15" % (s(S_T0), s(S_WAVE)))
        e("s_lshl_b32 %s, s2, 7" % s(S_T1))
        e("s_add_u32 %s, %s, %s" % (s(S_T0), s(S_T0), s(S_T1)))
        e("s_add_u32 %s, %s, %d" % (s(S_T0), s(S_T0), WS_PART))
        self.epilogue(e)
        self.stamp(e, 8)
        if self.a.stamps:
            e("s_waitcnt vmcnt(0)")
            self.stamp(e, 9)
        self.write_stamps(e)
        e("L_main_end:")
        e("s_endpgm")
        e.lines = fix_hazards(e.lines, "main", self.a.verbose)
        self.rare(e)
        e("L_main_codeend:")
        return e.lines

    def k_prep(self):
        e = Emit()
        e("s_cmp_ge_u32 s2, 25")
        e("s_cbranch_scc1 L_prep_end")
        e("s_load_dwordx16 s[4:19], s[0:1], 0")
        e("s_load_dwordx4 s[20:23], s[0:1], 64")
        self.lane_ids(e)
        e("s_waitcnt lgkmcnt(0)")
        srd(e, R_WS, S_WS, WS_SIZE)
        e("s_cmp_eq_u32 s2, 24")
        e("s_cbranch_scc1 L_prep_qk")
        e("s_cmp_lg_u32 %s, 0" % s(S_WAVE))
        e("s_cbranch_scc1 L_prep_end")
        head = e.lines
        a = Emit()
        self.wvo_role(a)
        a("s_endpgm")
        b = Emit()
        b("L_prep_qk:")
        self.qk_role(b)
        b("L_prep_end:")
        b("s_endpgm")
        return fix_hazards(head + a.lines, "prep_wvo", self.a.verbose) + fix_hazards(b.lines, "prep_qk", self.a.verbose)

    def wvo_role(self, e):
        SW, SS_ = 62, 63
        e("s_mul_i32 %s, s2, 43" % s(SW))
        e("s_lshr_b32 %s, %s, 8" % (s(SW), s(SW)))
        e("s_mul_i32 %s, %s, 6" % (s(S_T0), s(SW)))
        e("s_sub_u32 %s, s2, %s" % (s(SS_), s(S_T0)))
        srd(e, R_A, S_WV, 73728)
        srd(e, R_B, S_WO, 73728)
        DO, WA, AV, BF, D = 16, 20, 184, 76, 160
        for e0 in range(3):
            e("v_add_u32 %s, %d, v0" % (v(T), 64 * e0))
            e("v_mul_u32_u24 %s, 10923, %s" % (v(T), v(T)))
            e("v_lshrrev_b32 %s, 16, %s" % (v(T), v(T)))
            e("v_mul_u32_u24 %s, 288, %s" % (v(T), v(T)))
            e("v_add_u32 %s, %s, %s" % (v(DO + e0), v(T), v(V_LANE16)))
        e("s_mul_i32 %s, %s, 96" % (s(S_T1), s(SW)))
        for j in range(18):
            if j % 3 == 0:
                e("s_mov_b32 m0, %d" % (L_SP + j * 1024))
                if j:
                    e("s_add_u32 %s, %s, 12288" % (s(S_T1), s(S_T1)))
                else:
                    e("s_nop 0")
            e.vmem("wo", "buffer_load_dwordx4 %s, %s, %s offen offset:%d lds" % (v(DO + j % 3), s(R_B, 4), s(S_T1), (j % 3) * 1024))
        e("v_bfe_u32 %s, v0, 2, 2" % v(T))
        e("v_and_b32 %s, 3, v0" % v(T + 1))
        e("v_lshl_add_u32 %s, %s, 3, %s" % (v(T), v(T), v(T + 1)))
        e("v_mul_u32_u24 %s, 384, %s" % (v(T), v(T)))
        e("v_and_b32 %s, 48, v0" % v(T + 1))
        e("v_add_u32 %s, %s, %s" % (v(WA), v(T), v(T + 1)))
        e("s_mul_i32 %s, %s, 12288" % (s(S_T2), s(SS_)))
        for h in range(2):
            for k in range(6):
                e.vmem("wv", "buffer_load_dwordx4 %s, %s, %s, %s offen offset:%d" % (
                    v(AV + (h * 6 + k) * 4, 4), v(WA), s(R_A, 4), s(S_T2), h * 1536 + k * 64))
        e("v_lshrrev_b32 %s, 4, v0" % v(T))
        e("v_bfe_u32 %s, v0, 2, 2" % v(T + 1))
        e("v_lshl_add_u32 %s, %s, 3, %s" % (v(T), v(T), v(T + 1)))
        e("v_mul_u32_u24 %s, 96, %s" % (v(T), v(T)))
        e("v_and_b32 %s, 3, v0" % v(T + 1))
        e("v_mul_u32_u24 %s, 24, %s" % (v(T + 1), v(T + 1)))
        e("v_add_u32 %s, %s, %s" % (v(T), v(T), v(T + 1)))
        e("v_add_u32 %s, %d, %s" % (v(WA + 1), L_SP, v(T)))
        e.wait_vm("wo")
        for t in range(3):
            for k in range(6):
                for h in range(2):
                    e.lds(("b", t, k), "ds_read_b64_tr_b16 %s, %s offset:%d" % (
                        v(BF + (t * 6 + k) * 4 + 2 * h, 2), v(WA + 1), (32 * k + 4 * h) * 96 + 8 * t))
        e.wait_vm("wv")
        for t in range(3):
            for k in range(6):
                e.wait_ds(("b", t, k))
                for h in range(2):
                    d = D + (t * 2 + h) * 4
                    self.mfma(e, v(d, 4), v(AV + (h * 6 + k) * 4, 4), v(BF + (t * 6 + k) * 4, 4), v(d, 4) if k else "0")
        e("s_mul_i32 %s, %s, 18432" % (s(S_T0), s(SW)))
        e("s_lshl_b32 %s, %s, 10" % (s(S_T1), s(SS_)))
        e("s_add_u32 %s, %s, %s" % (s(S_T0), s(S_T0), s(S_T1)))
        e("s_add_u32 %s, %s, %d" % (s(S_T0), s(S_T0), WS_WVO))
        for t in range(3):
            for j in range(4):
                e("v_cvt_pk_bf16_f32 %s, %s, %s" % (v(AV + 4 * t + j), v(D + t * 8 + 2 * j), v(D + t * 8 + 2 * j + 1)))
            e.vmem("st", "buffer_store_dwordx4 %s, %s, %s, %s offen" % (v(AV + 4 * t, 4), v(V_LANE16), s(R_WS, 4), s(S_T0)))
            if t < 2:
                e("s_add_u32 %s, %s, 6144" % (s(S_T0), s(S_T0)))

    def qk_role(self, e):
        QF, AF, KF, D, CS, XW, RA = 136, 160, 76, 16, 28, 40, 44
        srd(e, R_A, S_WQ, 73728)
        srd(e, R_B, S_WK, 73728)
        srd(e, R_C, S_Q, 6144)
        self.dma_f_offsets(e)
        e("s_mul_i32 %s, %s, 18432" % (s(S_T1), s(S_WAVE)))
        for j in range(18):
            ee = j % 6
            if ee == 0 and j:
                e("s_add_u32 %s, %s, 6144" % (s(S_T1), s(S_T1)))
            if ee % 4 == 0:
                e("s_add_u32 m0, %s, %d" % (s(S_T1), L_R1 + ee * 1024))
                e("s_nop 0")
            e.vmem("wq", "buffer_load_dwordx4 %s, %s, %s offen offset:%d lds" % (v(V_DF + ee), s(R_A, 4), s(S_T1), (ee % 4) * 1024))
        e("v_and_b32 %s, 15, v0" % v(T))
        e("v_mul_u32_u24 %s, 384, %s" % (v(T), v(T)))
        e("v_and_b32 %s, 48, v0" % v(T + 1))
        e("v_add_u32 %s, %s, %s" % (v(RA), v(T), v(T + 1)))
        for k in range(6):
            e.vmem("q", "buffer_load_dwordx4 %s, %s, %s, 0 offen offset:%d" % (v(QF + 4 * k, 4), v(RA), s(R_C, 4), 64 * k))
        e("s_mul_i32 %s, %s, 18432" % (s(S_T1), s(S_WAVE)))
        for t in range(3):
            for k in range(6):
                e.vmem("wk", "buffer_load_dwordx4 %s, %s, %s, %s offen offset:%d" % (
                    acc(KF + (t * 6 + k) * 4, 4), v(RA), s(R_B, 4), s(S_T1), 64 * k))
            if t < 2:
                e("s_add_u32 %s, %s, 6144" % (s(S_T1), s(S_T1)))
        self.consts(e)
        self.xch_write_addr(e, XW, L_XA)
        TA = 46
        e("v_lshrrev_b32 %s, 4, v0" % v(T))
        e("v_bfe_u32 %s, v0, 2, 2" % v(T + 1))
        e("v_lshl_add_u32 %s, %s, 3, %s" % (v(T + 2), v(T), v(T + 1)))
        e("v_mul_u32_u24 %s, 384, %s" % (v(T + 2), v(T + 2)))
        e("v_and_b32 %s, 1, v0" % v(T + 3))
        e("v_lshl_add_u32 %s, %s, 3, %s" % (v(T + 2), v(T + 3), v(T + 2)))
        e("v_add_u32 %s, %d, %s" % (v(T + 2), L_R1, v(T + 2)))
        e("v_and_b32 %s, 2, %s" % (v(T + 1), v(T + 1)))
        e("v_and_or_b32 %s, %s, 1, %s" % (v(T + 1), v(T), v(T + 1)))
        e("v_bfe_u32 %s, v0, 1, 1" % v(T + 3))
        e("v_xor_b32 %s, %s, %s" % (v(T + 1), v(T + 1), v(T + 3)))
        e("s_mul_i32 %s, %s, 6" % (s(S_T0), s(S_WAVE)))
        for t in range(3):
            e("s_add_u32 %s, %s, %d" % (s(S_T1), s(S_T0), 2 * t))
            e("v_xor_b32 %s, %s, %s" % (v(T + 3), s(S_T1), v(T + 1)))
            e("v_lshl_add_u32 %s, %s, 4, %s" % (v(TA + 2 * t), v(T + 3), v(T + 2)))
            e("v_xor_b32 %s, 64, %s" % (v(TA + 2 * t + 1), v(TA + 2 * t)))
        e.wait_vm("q")
        G_, M_, SQ = 88, 92, 96
        for k in range(6):
            self.mfma(e, v(G_, 4), v(QF + 4 * k, 4), v(QF + 4 * k, 4), v(G_, 4) if k else "0")
            self.mfma(e, v(M_, 4), v(V_ONES, 4), v(QF + 4 * k, 4), v(M_, 4) if k else "0")
        e("s_barrier")
        for t in range(3):
            for k in range(6):
                for h in range(2):
                    e.lds(("a", t, k), "ds_read_b64_tr_b16 %s, %s offset:%d" % (
                        v(AF + (t * 6 + k) * 4 + 2 * h, 2), v(TA + 2 * t + h), 12288 * k + 1536 * h))
        flush(self.diag(e, G_, None, T + 2))
        e("v_mfma_f32_16x16x4_f32 %s, %s, %s, %s" % (v(SQ, 4), v(V_C192), v(T + 2), v(V_EPS, 4)))
        for t in range(3):
            for k in range(6):
                e.wait_ds(("a", t, k))
                af = v(AF + (t * 6 + k) * 4, 4)
                self.mfma(e, v(D + 4 * t, 4), af, v(QF + 4 * k, 4), v(D + 4 * t, 4) if k else "0")
                self.mfma(e, v(CS + 4 * t, 4), af, v(V_ONES, 4), v(CS + 4 * t, 4) if k else "0")
        e("v_fma_f32 %s, -%s, %s, %s" % (v(T + 4), v(M_), v(M_), v(SQ)))
        e("v_max_f32 %s, %s, %s" % (v(T + 4), v(T + 4), v(V_EPS)))
        e("v_rsq_f32 %s, %s" % (v(T + 4), v(T + 4)))
        e("v_mul_f32 %s, %s, %s" % (v(T + 5), fl(1.0 / 192), v(M_)))
        e("v_mul_f32 %s, %s, %s" % (v(T + 4), v(V_C192), v(T + 4)))
        for j in range(12):
            e("v_fma_f32 %s, -%s, %s, %s" % (v(D + j), v(T + 5), v(CS + j), v(D + j)))
        for j in range(12):
            e("v_mul_f32 %s, %s, %s" % (v(D + j), v(D + j), v(T + 4)))
        for t in range(3):
            e("v_cvt_pk_bf16_f32 %s, %s, %s" % (v(CS + 2 * t), v(D + 4 * t), v(D + 4 * t + 1)))
            e("v_cvt_pk_bf16_f32 %s, %s, %s" % (v(CS + 2 * t + 1), v(D + 4 * t + 2), v(D + 4 * t + 3)))
            e.lds("x", "ds_write_b64 %s, %s offset:%d" % (v(XW), v(CS + 2 * t, 2), t * 512))
        e("v_add_u32 %s, %d, %s" % (v(T + 6), L_XA, v(V_LANE16)))
        e.wait_ds_all()
        e("s_barrier")
        for k in range(6):
            e.lds(("b", k), "ds_read_b128 %s, %s offset:%d" % (v(QF + 4 * k, 4), v(T + 6), 1024 * k))
        e.wait_vm("wk")
        for k in range(6):
            e.wait_ds(("b", k))
            for t in range(3):
                self.mfma(e, v(D + 4 * t, 4), acc(KF + (t * 6 + k) * 4, 4), v(QF + 4 * k, 4), v(D + 4 * t, 4) if k else "0")
        for j in range(12):
            e("v_mul_f32 %s, %s, %s" % (v(D + j), fl(QSCALE), v(D + j)))
        for t in range(3):
            e("v_cvt_pk_bf16_f32 %s, %s, %s" % (v(CS + 2 * t), v(D + 4 * t), v(D + 4 * t + 1)))
            e("v_cvt_pk_bf16_f32 %s, %s, %s" % (v(CS + 2 * t + 1), v(D + 4 * t + 2), v(D + 4 * t + 3)))
            e.lds("x", "ds_write_b64 %s, %s offset:%d" % (v(XW), v(CS + 2 * t, 2), (L_XB - L_XA) + t * 512))
        e("v_lshrrev_b32 %s, 5, v0" % v(T))
        e("v_bfe_u32 %s, v0, 4, 1" % v(T + 1))
        e("v_lshl_or_b32 %s, %s, 1, %s" % (v(T), v(T + 1), v(T)))
        e("v_and_b32 %s, 15, v0" % v(T + 1))
        e("v_lshlrev_b32 %s, 4, %s" % (v(T + 1), v(T + 1)))
        e("v_lshl_add_u32 %s, %s, 8, %s" % (v(T), v(T), v(T + 1)))
        e("v_add_u32 %s, %d, %s" % (v(T), L_XB, v(T)))
        e.wait_ds_all()
        e("s_barrier")
        e("s_cmp_lg_u32 %s, 0" % s(S_WAVE))
        e("s_cbranch_scc1 L_prep_end")
        for k in range(6):
            e.lds("c", "ds_read_b128 %s, %s offset:%d" % (v(QF + 4 * k, 4), v(T), 1024 * k))
        e.wait_ds_all()
        e("s_movk_i32 %s, 0x1000" % s(S_T0))
        for k in range(6):
            e.vmem("st", "buffer_store_dwordx4 %s, %s, %s, %s offen offset:%d" % (
                v(QF + 4 * k, 4), v(V_LANE16), s(R_WS, 4), s(S_T0) if k >= 4 else "0", WS_QK + (k % 4) * 1024))

    def k_comb(self):
        e = Emit()
        DT, LAM, AC, X = 16, 48, 56, 64
        e("s_cmp_ge_u32 s2, 64")
        e("s_cbranch_scc1 L_comb_end")
        e("s_load_dwordx2 s[4:5], s[0:1], 0")
        e("s_load_dwordx2 s[18:19], s[0:1], 56")
        e("s_load_dwordx2 s[22:23], s[0:1], 72")
        self.lane_ids(e)
        e("s_lshl_b32 %s, s2, 15" % s(S_T0))
        e("s_lshl_b32 %s, %s, 13" % (s(S_T1), s(S_WAVE)))
        e("s_add_u32 %s, %s, %s" % (s(S_T0), s(S_T0), s(S_T1)))
        e("s_add_u32 %s, %s, %d" % (s(S_T0), s(S_T0), WS_PART))
        e("s_add_u32 %s, %s, 4096" % (s(S_T1), s(S_T0)))
        e("s_waitcnt lgkmcnt(0)")
        srd(e, R_WS, S_WS, WS_SIZE)
        for t in range(8):
            e.vmem(("d", t), "buffer_load_dwordx4 %s, %s, %s, %s offen offset:%d" % (
                v(DT + 4 * t, 4), v(V_LANE16), s(R_WS, 4), s(S_T0 + t // 4), (t % 4) * 1024))
        srd(e, R_A, S_Q, 6144)
        srd(e, R_B, S_OUT, 6144)
        e("v_mul_u32_u24 %s, 43, v0" % v(T))
        e("v_lshrrev_b32 %s, 7, %s" % (v(T), v(T)))
        e("v_mul_u32_u24 %s, 3, %s" % (v(T + 1), v(T)))
        e("v_sub_u32 %s, v0, %s" % (v(T + 1), v(T + 1)))
        e("v_and_b32 %s, 3, %s" % (v(T + 2), v(T)))
        e("v_mul_u32_u24 %s, 6, %s" % (v(T + 2), v(T + 2)))
        e("v_lshrrev_b32 %s, 2, %s" % (v(T + 3), v(T)))
        e("v_mul_u32_u24 %s, 3, %s" % (v(T + 3), v(T + 3)))
        e("v_add3_u32 %s, %s, %s, %s" % (v(T + 2), v(T + 2), v(T + 3), v(T + 1)))
        e("v_lshlrev_b32 %s, 2, %s" % (v(T + 2), v(T + 2)))
        e("v_lshlrev_b32 %s, 5, %s" % (v(T), v(T)))
        e("v_lshl_add_u32 %s, %s, 3, %s" % (v(T + 4), v(T + 1), v(T)))
        e("v_cmp_gt_u32 vcc, 24, v0")
        e("v_mov_b32 %s, 0x10000" % v(T + 3))
        e("s_mul_i32 %s, s2, 96" % s(S_T2))
        e("v_cndmask_b32 %s, %s, %s, vcc" % (v(T + 2), v(T + 3), v(T + 2)))
        e.vmem("q", "buffer_load_dword %s, %s, %s, %s offen" % (v(T + 5), v(T + 2), s(R_A, 4), s(S_T2)))
        e.wait_vm(("d", 7))
        MX = T + 6
        e("v_max3_f32 %s, %s, %s, %s" % (v(MX), v(DT + 3), v(DT + 7), v(DT + 11)))
        e("v_max3_f32 %s, %s, %s, %s" % (v(MX), v(MX), v(DT + 15), v(DT + 19)))
        e("v_max3_f32 %s, %s, %s, %s" % (v(MX), v(MX), v(DT + 23), v(DT + 27)))
        e("v_max_f32 %s, %s, %s" % (v(MX), v(MX), v(DT + 31)))
        e("v_max_f32_dpp %s, %s, %s row_ror:8 row_mask:0xf bank_mask:0xf" % (v(MX), v(MX), v(MX)))
        for sw in ("32", "16"):
            e("v_mov_b32 %s, %s" % (v(MX + 1), v(MX)))
            e("v_permlane%s_swap_b32 %s, %s" % (sw, v(MX), v(MX + 1)))
            e("v_max_f32 %s, %s, %s" % (v(MX), v(MX), v(MX + 1)))
        for t in range(8):
            e("v_sub_f32 %s, %s, %s" % (v(LAM + t), v(DT + 4 * t + 3), v(MX)))
        for t in range(8):
            e("v_exp_f32 %s, %s" % (v(LAM + t), v(LAM + t)))
        for t in range(8):
            for j in range(3):
                e("v_lshlrev_b32 %s, 16, %s" % (v(X + 2 * j), v(DT + 4 * t + j)))
                e("v_and_b32 %s, 0xffff0000, %s" % (v(X + 2 * j + 1), v(DT + 4 * t + j)))
            for j in range(6):
                e("%s %s, %s, %s" % ("v_fmac_f32" if t else "v_mul_f32", v(AC + j), v(X + j), v(LAM + t)))
            if t:
                e("v_add_f32 %s, %s, %s" % (v(LAM), v(LAM), v(LAM + t)))
        e("v_mov_b32 %s, %s" % (v(AC + 6), v(LAM)))
        e("v_mov_b32 %s, %s" % (v(AC + 7), v(MX)))
        for j in range(7):
            e("v_add_f32_dpp %s, %s, %s row_ror:8 row_mask:0xf bank_mask:0xf" % (v(AC + j), v(AC + j), v(AC + j)))
        for sw in ("16", "32"):
            for j in range(7):
                e("v_mov_b32 %s, %s" % (v(X + j), v(AC + j)))
            for j in range(7):
                e("v_permlane%s_swap_b32 %s, %s" % (sw, v(AC + j), v(X + j)))
            for j in range(7):
                e("v_add_f32 %s, %s, %s" % (v(AC + j), v(AC + j), v(X + j)))
        e("v_lshlrev_b32 %s, 5, v0" % v(X))
        e("s_lshl_b32 %s, %s, 8" % (s(S_T0), s(S_WAVE)))
        e("v_add_u32 %s, %s, %s" % (v(X), s(S_T0), v(X)))
        e("s_mov_b64 exec, 0xff")
        e.lds("w", "ds_write_b128 %s, %s" % (v(X), v(AC, 4)))
        e.lds("w", "ds_write_b128 %s, %s offset:16" % (v(X), v(AC + 4, 4)))
        e("s_mov_b64 exec, -1")
        e.wait_ds_all()
        e("s_barrier")
        e("s_cmp_lg_u32 %s, 0" % s(S_WAVE))
        e("s_cbranch_scc1 L_comb_end")
        e("v_and_b32 %s, 0xff, %s" % (v(T + 4), v(T + 4)))
        e("v_mov_b32 %s, 24" % v(T))
        for w in range(4):
            e.lds("r", "ds_read_b64 %s, %s offset:%d" % (v(DT + 2 * w, 2), v(T + 4), 256 * w))
            e.lds("r", "ds_read_b64 %s, %s offset:%d" % (v(DT + 8 + 2 * w, 2), v(T), 256 * w))
        e.wait_ds_all()
        e("v_max3_f32 %s, %s, %s, %s" % (v(MX), v(DT + 9), v(DT + 11), v(DT + 13)))
        e("v_max_f32 %s, %s, %s" % (v(MX), v(MX), v(DT + 15)))
        for w in range(4):
            e("v_sub_f32 %s, %s, %s" % (v(LAM + w), v(DT + 9 + 2 * w), v(MX)))
        for w in range(4):
            e("v_exp_f32 %s, %s" % (v(LAM + w), v(LAM + w)))
        for w in range(4):
            op = "v_fmac_f32" if w else "v_mul_f32"
            e("%s %s, %s, %s" % (op, v(AC + 2), v(DT + 8 + 2 * w), v(LAM + w)))
            e("%s %s, %s, %s" % (op, v(AC), v(DT + 2 * w), v(LAM + w)))
            e("%s %s, %s, %s" % (op, v(AC + 1), v(DT + 2 * w + 1), v(LAM + w)))
        e("v_rcp_f32 %s, %s" % (v(AC + 2), v(AC + 2)))
        e.wait_vm("q")
        e("v_lshlrev_b32 %s, 16, %s" % (v(X), v(T + 5)))
        e("v_and_b32 %s, 0xffff0000, %s" % (v(X + 1), v(T + 5)))
        e("v_fmac_f32 %s, %s, %s" % (v(X), v(AC), v(AC + 2)))
        e("v_fmac_f32 %s, %s, %s" % (v(X + 1), v(AC + 1), v(AC + 2)))
        e("v_cvt_pk_bf16_f32 %s, %s, %s" % (v(X), v(X), v(X + 1)))
        e.vmem("o", "buffer_store_dword %s, %s, %s, %s offen" % (v(X), v(T + 2), s(R_B, 4), s(S_T2)))
        e("L_comb_end:")
        e("s_endpgm")
        return fix_hazards(e.lines, "comb", self.a.verbose)

    def k_touch(self):
        e = Emit()
        e("s_load_dwordx16 s[4:19], s[0:1], 0")
        e("s_load_dwordx4 s[20:23], s[0:1], 64")
        e("v_lshlrev_b32 v1, 19, v0")
        e("v_lshlrev_b32 v2, 7, v0")
        e("v_lshlrev_b32 v3, 14, v0")
        e("s_waitcnt lgkmcnt(0)")
        lvl = self.a.touch
        if "f" in lvl:
            srd(e, 24, S_F0, 100663296)
            srd(e, 28, S_F1, 25165824)
            e("buffer_load_dword v4, v1, s[24:27], 0 offen nt")
            e("buffer_load_dword v5, v1, s[28:31], 0 offen nt")
        if "w" in lvl:
            for j, p in enumerate([S_Q, S_WQ, S_WK, S_WV, S_WO, S_OUT]):
                srd(e, 32 + 4 * j, p, 128)
                e("buffer_load_dword v%d, v2, %s, 0 offen" % (6 + j, s(32 + 4 * j, 4)))
            srd(e, 60, S_WS, WS_SIZE)
            e("buffer_load_dword v12, v3, s[60:63], 0 offen nt")
        e("s_waitcnt vmcnt(0)")
        e("s_endpgm")
        return e.lines

    def build(self):
        ks = [("prep_kernel", self.k_prep(), 25, L_END, 256, 512),
              ("main_kernel", self.k_main(), 256, L_END, 256, 448),
              ("comb_kernel", self.k_comb(), 64, 1024, 72, 72)]
        o = [HDR]
        if self.a.empty_first:
            ks = [("nil0_kernel", ["s_endpgm"], 1, 0, 8, 8)] + ks
        if self.a.touch:
            ks = [("touch_kernel", self.k_touch(), 64, 0, 16, 16)] + ks
        if self.a.empty_last:
            ks = ks + [("nil1_kernel", ["s_endpgm"], 1, 0, 8, 8)]
        for n, _, g, lds, _, _ in ks:
            for _ in range(2 if n.startswith(self.a.repeat or "-") else 1):
                o.append("; @launch kernel=%s grid=(%d,1,1) block=(256,1,1) lds=%d" % (n, g, lds))
        o.append('.amdgcn_target "amdgcn-amd-amdhsa--gfx950"')
        o.append(".text")
        for n, lines, _, _, _, _ in ks:
            o.append(".p2align 8")
            o.append("%s:" % n)
            o += [("    " + x if not x.endswith(":") else x) for x in lines]
        o.append('.section .rodata,"a"')
        for n, _, _, _, ao, nv in ks:
            o.append(".p2align 6")
            o.append(".amdhsa_kernel %s" % n)
            o.append("  .amdhsa_next_free_vgpr %d" % nv)
            o.append("  .amdhsa_next_free_sgpr 102")
            o.append("  .amdhsa_accum_offset %d" % ao)
            o.append("  .amdhsa_group_segment_fixed_size 0")
            o.append("  .amdhsa_kernarg_size 80")
            o.append("  .amdhsa_user_sgpr_count 2")
            o.append("  .amdhsa_user_sgpr_kernarg_segment_ptr 1")
            o.append("  .amdhsa_system_sgpr_workgroup_id_x 1")
            o.append("  .amdhsa_float_denorm_mode_32 3")
            o.append(".end_amdhsa_kernel")
        return "\n".join(o) + "\n"


if __name__ == "__main__":
    ap = argparse.ArgumentParser()
    ap.add_argument("-o", default="v1.s")
    ap.add_argument("--pol", default="nt")
    ap.add_argument("--stamps", action="store_true")
    ap.add_argument("--verbose", action="store_true")
    ap.add_argument("--repeat", default=None)
    ap.add_argument("--touch", default=None)
    ap.add_argument("--empty_first", action="store_true")
    ap.add_argument("--empty_last", action="store_true")
    args = ap.parse_args()
    open(args.o, "w").write(Gen(args).build())
```

```python
import re


class Emit:
    def __init__(self):
        self.lines = []
        self.vm = []
        self.vm_done = 0
        self.ds = []
        self.ds_done = 0
        self.smem = False

    def __call__(self, s):
        self.lines.append(s)

    def raw(self, s):
        self.lines.append(s)

    def vmem(self, tag, s):
        self.lines.append(s)
        self.vm.append(tag)

    def lds(self, tag, s):
        self.lines.append(s)
        self.ds.append(tag)

    def _need(self, lst, done, tags):
        if isinstance(tags, (str, tuple)):
            tags = [tags]
        idx = [i for i, t in enumerate(lst) if t in tags]
        assert idx, "no such tag %r" % (tags,)
        last = max(idx)
        if last < done:
            return None
        return len(lst) - 1 - last

    def wait_vm(self, tags):
        n = self._need(self.vm, self.vm_done, tags)
        if n is None:
            return
        n = min(n, 63)
        self.lines.append("s_waitcnt vmcnt(%d)" % n)
        self.vm_done = max(self.vm_done, len(self.vm) - n)

    def wait_ds(self, tags):
        n = self._need(self.ds, self.ds_done, tags)
        if n is None:
            return
        n = 0 if self.smem else min(n, 15)
        self.smem = False
        self.lines.append("s_waitcnt lgkmcnt(%d)" % n)
        self.ds_done = max(self.ds_done, len(self.ds) - n)

    def wait_ds_all(self):
        if self.ds_done < len(self.ds) or self.smem:
            self.lines.append("s_waitcnt lgkmcnt(0)")
            self.ds_done = len(self.ds)
            self.smem = False

    def wait_vm_all(self):
        self.lines.append("s_waitcnt vmcnt(0)")
        self.vm_done = len(self.vm)

    def text(self):
        return "\n".join(self.lines) + "\n"


def v(a, n=1):
    return "v%d" % a if n == 1 else "v[%d:%d]" % (a, a + n - 1)


def acc(a, n=1):
    return "a%d" % a if n == 1 else "a[%d:%d]" % (a, a + n - 1)


def s(a, n=1):
    return "s%d" % a if n == 1 else "s[%d:%d]" % (a, a + n - 1)


_REG = re.compile(r"^-?(?:abs\()?\|?([vas])(?:(\d+)|\[(\d+):(\d+)\])\)?\|?$")
TRANS = ("v_exp_f32", "v_log_f32", "v_rcp_f32", "v_rsq_f32", "v_sqrt_f32", "v_sin_f32", "v_cos_f32")


def regs(op):
    op = op.strip()
    if op == "vcc":
        return {("s", "vcc")}
    if op == "m0":
        return {("s", "m0")}
    if op == "exec":
        return {("s", "exec")}
    m = _REG.match(op)
    if not m:
        return set()
    k = m.group(1)
    if m.group(2) is not None:
        return {(k, int(m.group(2)))}
    return {(k, i) for i in range(int(m.group(3)), int(m.group(4)) + 1)}


class Ins:
    def __init__(self, text):
        self.text = text
        t = text.split(";")[0].strip()
        parts = t.split(None, 1)
        self.op = parts[0]
        rest = parts[1] if len(parts) > 1 else ""
        ops = [x.strip() for x in rest.split(",")] if rest else []
        if ops:
            tail = ops[-1].split()
            ops[-1] = tail[0] if tail else ""
            self.mods = " ".join(tail[1:])
        else:
            self.mods = ""
        self.ops = ops
        op = self.op
        self.kind = "other"
        self.w, self.r = set(), set()
        self.a = self.b = self.c = set()
        R = [regs(x) for x in ops]
        if op.startswith("v_mfma"):
            self.kind = "mfma"
            self.w = R[0]
            self.a, self.b, self.c = R[1], R[2], R[3]
            self.r = self.a | self.b | self.c
            self.sgemm = op.endswith("_f32") and "bf16" not in op
            self.passes = 8 if (self.sgemm or "32x32" in op) else 4
        elif op.startswith("v_"):
            self.kind = "valu"
            self.w = set(R[0])
            self.r = set().union(*R[1:]) if len(R) > 1 else set()
            if op.startswith(("v_fmac", "v_permlane", "v_dot2c", "v_writelane")) or "dpp" in op:
                self.r |= R[0]
            if op.startswith("v_permlane"):
                self.w |= R[1]
            if op.startswith(("v_add_co", "v_addc_co", "v_sub_co")):
                self.w |= R[1]
            if op.startswith("v_cndmask") and len(ops) == 3:
                self.r |= {("s", "vcc")}
            self.trans = op.split("_e32")[0].split("_e64")[0] in TRANS
            self.dpp = "dpp" in op or "row_" in self.mods or "quad_perm" in self.mods
        elif op.startswith("ds_"):
            self.kind = "ds"
            if op.startswith("ds_read"):
                self.w, self.r = R[0], R[1]
            else:
                self.r = set().union(*R)
        elif op.startswith(("buffer_", "global_")):
            self.kind = "vmem"
            self.ldsdma = " lds" in (" " + self.mods) or "load_lds" in op
            if op in ("buffer_inv", "buffer_wbl2"):
                pass
            elif "load" in op and not self.ldsdma:
                self.w = R[0]
                self.r = set().union(*R[1:])
            elif "atomic" in op and "sc0" in self.mods:
                self.w = R[0]
                self.r = set().union(*R)
            else:
                self.r = set().union(*R)
            if self.ldsdma:
                self.r |= {("s", "m0")}
            self.widestore = "store" in op and ("x3" in op or "x4" in op)
            self.data = set()
            if "store" in op:
                self.data = R[0] if op.startswith("buffer") else R[1]
        elif op.startswith("s_"):
            self.kind = "salu"
            if op.startswith(("s_cmp", "s_cbranch", "s_branch", "s_waitcnt", "s_barrier", "s_nop", "s_endpgm",
                              "s_sleep", "s_setprio", "s_setpc")):
                self.r = set().union(*R) if R else set()
            else:
                self.w = R[0] if R else set()
                self.r = set().union(*R[1:]) if len(R) > 1 else set()
        self.states = 1
        if op == "s_nop":
            self.states = int(ops[0], 0) + 1


def lint(lines, name="", short=None):
    ins = []
    where = []
    for k, ln in enumerate(lines):
        t = ln.split(";")[0].strip()
        if not t or t.endswith(":") or t.startswith("."):
            continue
        ins.append(Ins(t))
        where.append(k)
    probs = []

    def bad(i, j, need, have, why):
        if short is not None:
            short[where[i]] = max(short.get(where[i], 0), need - have)
            return
        probs.append("%s: need %d have %d [%s]\n    %s\n    %s" % (name, need, have, why, ins[j].text, ins[i].text))
    vmq, dsq, smq = [], [], set()
    for i, x in enumerate(ins):
        touched = x.r | x.w
        if x.op == "s_waitcnt":
            m = re.search(r"vmcnt\((\d+)\)", x.text)
            if m:
                n = int(m.group(1))
                vmq = vmq[len(vmq) - n:] if n < len(vmq) else vmq
                if n == 0:
                    vmq = []
            m = re.search(r"lgkmcnt\((\d+)\)", x.text)
            if m:
                n = int(m.group(1))
                dsq = dsq[len(dsq) - n:] if n < len(dsq) else dsq
                if n == 0:
                    dsq = []
                    smq = set()
        else:
            for q, nm in ((vmq, "vm"), (dsq, "ds")):
                for (j, w) in q:
                    if w & touched:
                        probs.append("%s: pending %s load\n    %s\n    %s" % (name, nm, ins[j].text, x.text))
            if smq & touched:
                probs.append("%s: pending smem load\n    %s" % (name, x.text))
        if x.kind == "vmem" and x.op not in ("buffer_inv", "buffer_wbl2"):
            vmq.append((i, x.w))
        if x.kind == "ds":
            dsq.append((i, x.w))
        if x.op.startswith(("s_load", "s_memrealtime", "s_memtime")):
            smq |= x.w
            dsq.append((i, set()))
            dsq.append((i, set()))
        have = 0
        j = i - 1
        while j >= 0 and have < 24:
            p = ins[j]
            vw = {r for r in p.w if r[0] in "va"}
            sw = {r for r in p.w if r[0] == "s"}
            if p.kind == "valu":
                if x.kind == "mfma" and vw & x.r and have < 2:
                    bad(i, j, 2, have, "valu->mfma")
                if x.kind == "valu":
                    if p.trans and not x.trans and vw & x.r and have < 1:
                        bad(i, j, 1, have, "trans->valu")
                    if (x.dpp or x.op.startswith("v_permlane")) and vw & x.r and have < 2:
                        bad(i, j, 2, have, "valu->dpp/permlane")
                    if x.op.startswith(("v_readfirstlane", "v_readlane")) and vw & x.r and have < 1:
                        bad(i, j, 1, have, "valu->readlane")
                    if sw & x.r and have < 2:
                        bad(i, j, 2, have, "valu sgpr->valu const")
                if x.kind == "vmem" and sw & x.r and have < 5:
                    bad(i, j, 5, have, "valu sgpr->vmem")
                if p.trans and x.kind in ("mfma", "ds", "vmem") and vw & x.r and have < 1:
                    bad(i, j, 1, have, "trans->use")
            if p.kind == "mfma":
                need_v = {(False, 4): 8, (False, 8): 12, (True, 8): 10}[(p.sgemm, p.passes)]
                if x.kind in ("valu", "ds", "vmem") and p.w & (x.r | x.w) and have < need_v:
                    bad(i, j, need_v, have, "mfma D->valu/mem")
                if x.kind == "mfma":
                    if p.w & (x.a | x.b) and have < need_v:
                        bad(i, j, need_v, have, "mfma D->A/B")
                    if p.w & x.c:
                        exact = p.w == x.c and p.op == x.op
                        if not exact:
                            need = 0 if (p.sgemm and not x.sgemm) else (8 if p.sgemm else {4: 6, 8: 10}[p.passes])
                            if have < need:
                                bad(i, j, need, have, "mfma D->C overlap")
                    if p.w & x.w and not (p.w & x.c) and p.op != x.op and have < need_v:
                        bad(i, j, need_v, have, "mfma WAW")
                if x.kind == "valu" and not p.sgemm and p.c & x.w and have < {4: 3, 8: 7}[p.passes]:
                    bad(i, j, {4: 3, 8: 7}[p.passes], have, "mfma C WAR")
            if p.kind == "salu" and ("s", "m0") in p.w and x.kind == "vmem" and x.ldsdma and have < 1:
                bad(i, j, 1, have, "m0->ldsdma")
            if p.kind == "vmem" and getattr(p, "widestore", False) and p.data & x.w and have < 2:
                bad(i, j, 2, have, "store data WAR")
            have += p.states
            j -= 1
    return probs


def fix_hazards(lines, name="", verbose=False):
    lines = list(lines)
    total = 0
    while True:
        short = {}
        probs = lint(lines, name, short)
        if probs:
            raise SystemExit("\n".join(probs))
        if not short:
            break
        k = min(short)
        n = short[k]
        if verbose:
            print("%s: nop %d before: %s" % (name, n, lines[k]))
        total += n
        lines.insert(k, "s_nop %d" % (n - 1))
    assert not lint(lines, name)
    if verbose:
        print("%s: %d wait states inserted" % (name, total))
    return lines
```

```python
import sys, argparse, struct
sys.path.insert(0, "tools")
from asmlib import Emit, v, acc, s, fix_hazards

NAME = "standalone__detection_seg_dino__vision"
HDR = open("/code/%s.s.ref" % NAME).read().split("; Override launch")[0].rstrip()


def f2u(x):
    return struct.unpack("<I", struct.pack("<f", x))[0]


def fl(x):
    return "0x%08x" % f2u(x)


LOG2E = 1.4426950408889634
QSCALE = 192 ** -0.5 * LOG2E * 192.0
EPSQ_VAL = 1e-5 * 192 * 192
THR = 24.0

WS_QK, WS_WVO, WS_PART, WS_STAMP, WS_SIZE = 0, 8192, 131072, 4 << 20, 8 << 20
L_F, L_R0, L_R1, L_SP, L_XA, L_XB, L_ST, L_END = 0, 24576, 73728, 122880, 147456, 153600, 159744, 163840

S_WAVE = 3
S_Q, S_F0, S_F1, S_WQ, S_WK, S_WV, S_WO, S_OUT, S_DBG, S_WS = 4, 6, 8, 10, 12, 14, 16, 18, 20, 22
R_F0, R_F1, R_WS, R_A, R_B, R_C = 24, 28, 32, 64, 68, 72
S_OF, S_OR, S_LF, S_LR0, S_LR1 = 36, 37, 40, 41, 42
S_MASK = 44
S_THR, S_RET, S_T0, S_T1, S_T2, S_T3 = 52, 54, 56, 57, 58, 59
S_STAMP = 76

T = 1
V_DF, V_DR = 16, 22
V_FA, V_FT, V_XA, V_XT = 34, 36, 40, 44
V_ONES, V_EPS = 52, 56
V_C192, V_CQ, V_NEGM, V_L, V_PM, V_LANE16 = 60, 61, 62, 63, 64, 65
V_PFB, V_PF, V_P = 66, 68, 72
V_S1, V_M1, V_G1 = 76, 80, 84
V_TILE = [88, 104]
V_SS = [120, 124]
V_RS = [128, 132]
V_QK, V_W = 136, 160
V_JUNK = 232
V_E = 236
A_O, A_FA, A_FT, A_XA, A_XT = 0, 48, 72, 96, 144


def srd(e, r, base, size, add=None):
    if add is None:
        e("s_mov_b32 %s, %s" % (s(r), s(base)))
        e("s_mov_b32 %s, %s" % (s(r + 1), s(base + 1)))
    else:
        e("s_add_u32 %s, %s, %s" % (s(r), s(base), add))
        e("s_addc_u32 %s, %s, 0" % (s(r + 1), s(base + 1)))
    e("s_mov_b32 %s, %d" % (s(r + 2), size))
    e("s_mov_b32 %s, 0x20000" % s(r + 3))


def weave(e, mfmas, fillers, start=0, per_gap=2):
    fillers = list(fillers)
    for i, m in enumerate(mfmas):
        m()
        if i >= start:
            budget = per_gap
            while fillers and fillers[0][1] <= budget:
                fn, c = fillers.pop(0)
                fn()
                budget -= c
    return fillers


def flush(fillers):
    for fn, _ in fillers:
        fn()


def I(e, text, cost=1):
    return (lambda: e(text), cost)


class Gen:
    def __init__(self, args):
        self.a = args
        self.pol = args.pol
        self.nstamp = 0
        self.inner = False

    def stamp(self, e, idx):
        if self.a.stamps:
            e("%s %s" % ("s_memtime" if self.a.stamps == "cyc" and idx not in (0, 10) else "s_memrealtime", s(S_STAMP + 2 * idx, 2)))
            e.smem = True
            self.nstamp = max(self.nstamp, idx + 1)

    def mfma(self, e, d, a, b, c):
        e("v_mfma_f32_16x16x32_bf16 %s, %s, %s, %s" % (d, a, b, c))

    def lane_ids(self, e):
        e("v_lshrrev_b32 %s, 6, v0" % v(T))
        e("v_and_b32 v0, 63, v0")
        e("v_readfirstlane_b32 %s, %s" % (s(S_WAVE), v(T)))
        e("v_lshlrev_b32 %s, 4, v0" % v(V_LANE16))

    def dma_f_offsets(self, e):
        e("v_lshrrev_b32 %s, 2, v0" % v(T))
        e("v_and_b32 %s, 14, %s" % (v(T), v(T)))
        for e0 in range(3):
            k = sum((((8 * e0 + h) // 3) >> 1) << (2 * h) for h in range(8))
            e("s_mov_b32 %s, 0x%x" % (s(S_T0), k))
            e("v_bfe_u32 %s, %s, %s, 2" % (v(T + 1), s(S_T0), v(T)))
            e("v_lshlrev_b32 %s, 5, %s" % (v(T + 1), v(T + 1)))
            e("v_xor_b32 %s, %s, %s" % (v(V_DF + e0), v(V_LANE16), v(T + 1)))
        e("v_xor_b32 %s, 16, %s" % (v(V_DF + 3), v(V_DF)))
        e("v_xor_b32 %s, 0x1010, %s" % (v(V_DF + 4), v(V_DF + 1)))
        e("v_xor_b32 %s, 0x1010, %s" % (v(V_DF + 5), v(V_DF + 2)))

    def dma_r_offsets(self, e):
        e("v_lshrrev_b32 %s, 3, v0" % v(T))
        e("v_and_b32 %s, 6, %s" % (v(T), v(T)))
        for e0 in range(3):
            k = sum(((4 * e0 + g) // 3) << (2 * g) for g in range(4))
            e("s_mov_b32 %s, 0x%x" % (s(S_T0), k))
            e("v_bfe_u32 %s, %s, %s, 2" % (v(T + 1), s(S_T0), v(T)))
            e("v_lshlrev_b32 %s, 5, %s" % (v(T + 1), v(T + 1)))
            e("v_xor_b32 %s, %s, %s" % (v(V_DR + e0), v(V_LANE16), v(T + 1)))
        for ee in range(3, 12):
            c = [0, 128, 16, 144][ee // 3] | ((ee - ee % 4) * 1024)
            e("v_xor_b32 %s, 0x%x, %s" % (v(V_DR + ee), c, v(V_DR + ee % 3)))

    def lds_read_addrs(self, e):
        i_, g_, pg, rho, lo, t0, t1 = T, T + 1, T + 2, T + 3, T + 4, T + 5, T + 6
        e("v_and_b32 %s, 15, v0" % v(i_))
        e("v_lshrrev_b32 %s, 4, v0" % v(g_))
        e("v_lshrrev_b32 %s, 1, %s" % (v(t0), v(g_)))
        e("v_and_b32 %s, 1, %s" % (v(pg), v(g_)))
        e("v_lshl_or_b32 %s, %s, 1, %s" % (v(pg), v(pg), v(t0)))
        e("v_lshrrev_b32 %s, 2, v0" % v(rho))
        e("v_bfe_u32 %s, v0, 1, 1" % v(lo))
        e("v_lshrrev_b32 %s, 3, %s" % (v(t0), v(i_)))
        e("v_and_or_b32 %s, %s, 6, %s" % (v(t0), v(i_), v(t0)))
        e("v_xor_b32 %s, %s, %s" % (v(t0), v(t0), v(pg)))
        e("v_mul_u32_u24 %s, 384, %s" % (v(t1), v(i_)))
        e("v_lshl_add_u32 %s, %s, 4, %s" % (v(t0), v(t0), v(t1)))
        e("v_add_u32 %s, %s, %s" % (v(V_FA), s(S_LF), v(t0)))
        e("v_xor_b32 %s, 64, %s" % (v(V_FA + 1), v(V_FA)))
        e("v_lshrrev_b32 %s, 3, %s" % (v(t0), v(i_)))
        e("v_and_b32 %s, 7, %s" % (v(t1), v(i_)))
        e("v_lshl_or_b32 %s, %s, 1, %s" % (v(t0), v(t1), v(t0)))
        e("v_xor_b32 %s, %s, %s" % (v(t0), v(t0), v(pg)))
        e("v_mul_u32_u24 %s, 768, %s" % (v(t1), v(i_)))
        e("v_lshl_add_u32 %s, %s, 4, %s" % (v(t0), v(t0), v(t1)))
        e("v_add_u32 %s, %s, %s" % (v(V_XA), s(S_LR0), v(t0)))
        for x in range(1, 4):
            e("v_xor_b32 %s, 0x%x, %s" % (v(V_XA + x), x * 64, v(V_XA)))
        e("v_and_b32 %s, 1, v0" % v(g_))
        e("v_lshlrev_b32 %s, 3, %s" % (v(g_), v(g_)))
        e("v_lshrrev_b32 %s, 3, %s" % (v(t0), v(rho)))
        e("v_and_or_b32 %s, %s, 6, %s" % (v(t0), v(rho), v(t0)))
        e("v_xor_b32 %s, %s, %s" % (v(t0), v(t0), v(lo)))
        e("v_mul_u32_u24 %s, 384, %s" % (v(t1), v(rho)))
        e("v_lshl_add_u32 %s, %s, 4, %s" % (v(t0), v(t0), v(t1)))
        e("v_add3_u32 %s, %s, %s, %s" % (v(V_FT), s(S_LF), v(t0), v(g_)))
        for x in range(1, 4):
            e("v_xor_b32 %s, 0x%x, %s" % (v(V_FT + x), x * 32, v(V_FT)))
        e("v_lshrrev_b32 %s, 3, %s" % (v(t0), v(rho)))
        e("v_and_b32 %s, 7, %s" % (v(t1), v(rho)))
        e("v_lshl_or_b32 %s, %s, 1, %s" % (v(t0), v(t1), v(t0)))
        e("v_xor_b32 %s, %s, %s" % (v(t0), v(t0), v(lo)))
        e("v_mul_u32_u24 %s, 768, %s" % (v(t1), v(rho)))
        e("v_lshl_add_u32 %s, %s, 4, %s" % (v(t0), v(t0), v(t1)))
        e("v_add3_u32 %s, %s, %s, %s" % (v(V_XT), s(S_LR0), v(t0), v(g_)))
        for x in range(1, 8):
            e("v_xor_b32 %s, 0x%x, %s" % (v(V_XT + x), x * 32, v(V_XT)))

    def consts(self, e):
        for r in range(4):
            e("v_mov_b32 %s, 0x3f803f80" % v(V_ONES + r))
            e("v_mov_b32 %s, %s" % (v(V_EPS + r), fl(EPSQ_VAL)))
            e("s_mov_b32 %s, 0x%x" % (s(S_MASK + 2 * r), (1 + (1 << 20)) << r))
            e("s_mov_b32 %s, 0x%x" % (s(S_MASK + 2 * r + 1), ((1 << 8) + (1 << 28)) << r))
        e("v_mov_b32 %s, %s" % (v(V_C192), fl(192.0)))

    def xch_write_addr(self, e, dst, base):
        e("v_lshrrev_b32 %s, 5, v0" % v(T))
        e("v_lshlrev_b32 %s, 8, %s" % (v(T), v(T)))
        e("v_and_b32 %s, 15, v0" % v(T + 1))
        e("v_lshl_add_u32 %s, %s, 4, %s" % (v(T), v(T + 1), v(T)))
        e("v_bfe_u32 %s, v0, 4, 1" % v(T + 1))
        e("v_lshl_add_u32 %s, %s, 3, %s" % (v(T), v(T + 1), v(T)))
        e("s_mul_i32 %s, %s, 1536" % (s(S_T0), s(S_WAVE)))
        e("s_add_u32 %s, %s, %d" % (s(S_T0), s(S_T0), base))
        e("v_add_u32 %s, %s, %s" % (v(dst), s(S_T0), v(T)))

    def diag(self, e, g, h, out):
        f = []
        for r in range(4):
            if h is not None:
                f.append(I(e, "v_fma_f32 %s, %s, 2.0, %s" % (v(g + r), v(h + r), v(g + r))))
        f.append(I(e, "v_cndmask_b32 %s, 0, %s, %s" % (v(out), v(g), s(S_MASK, 2))))
        for r in range(1, 4):
            f.append(I(e, "v_cndmask_b32 %s, %s, %s, %s" % (v(out), v(out), v(g + r), s(S_MASK + 2 * r, 2))))
        return f

    def dma_list(self, e, kind, k):
        out = []
        if kind == "F":
            n, voff, rs, lb, so, add = 6, V_DF, R_F1, S_LF, S_OF, k * 24576
        else:
            rho = int(kind[1])
            n, voff, rs, lb, so, add = 12, V_DR, R_F0, (S_LR0, S_LR1)[rho], S_OR, k * 49152 + rho * 196608
        sreg = {"F": S_T1, "R0": S_T2, "R1": S_T3}[kind]

        def one(ee):
            def fn():
                if ee % 4 == 0:
                    e("s_add_u32 m0, %s, %d" % (s(lb), ee * 1024))
                if ee == 0:
                    e("s_add_u32 %s, %s, %d" % (s(sreg), s(so), add))
                e.vmem((kind, k), "buffer_load_dwordx4 %s, %s, %s offen offset:%d %s lds" % (
                    v(voff + ee), s(rs, 4), s(sreg), (ee % 4) * 1024, self.pol))
            return fn
        for ee in range(n):
            out.append(one(ee))
        return out

    def issue(self, e, kind, k, extra):
        if self.a.bar == "all" and (kind, k) != ("F", 0) or self.a.bar == "r" and kind != "F" \
                or self.a.bar == "late" and k >= 2 or self.a.bar == "f" and kind == "F" and k:
            e("s_barrier")
        for j, fn in enumerate(self.dma_list(e, kind, k)):
            fn()
            if j % 2 == 1 and extra:
                extra.pop(0)()

    ITEMS = [(kind, k) for k in range(4) for kind in ("F", "R0", "R1")]

    def push(self, e, n, where, extra):
        pol = self.a.push
        if pol == "mid3":
            tgt = n + 3 if where == "mid" else None
        elif pol == "end3":
            tgt = n + 3 if where == "end" else None
        elif pol == "end2":
            tgt = n + 2 if where == "end" else None
        elif pol == "mid2":
            tgt = n + 2 if where == "mid" else None
        elif pol == "end3l":
            tgt = (n + 3 if n < 8 else (11 if n == 9 else None)) if where == "end" else None
        elif pol == "mid3l":
            if n < 7:
                tgt = n + 3 if where == "mid" else None
            else:
                tgt = {7: 10, 9: 11}.get(n) if where == "end" else None
        elif pol == "mixf":
            if where != "end":
                tgt = None
            else:
                tgt = {0: n + 2, 1: n + 3, 2: None}[n % 3]
                if n % 3 == 1 and n + 2 < 12:
                    self.issue(e, *self.ITEMS[n + 2], extra)
        if tgt is not None and tgt < 12:
            self.issue(e, *self.ITEMS[tgt], extra)

    def phase_f(self, e, k, extra):
        e.wait_vm(("F", k))
        for st in range(6):
            e.lds(("fa", st), "ds_read_b128 %s, %s offset:%d" % (acc(A_FA + 4 * st, 4), v(V_FA + (st & 1)), (st >> 1) * 128))
        tr = []
        for n in range(12):
            tr.append((lambda n=n: e.lds("ft", "ds_read_b64_tr_b16 %s, %s offset:%d" % (
                acc(A_FT + 2 * n, 2), v(V_FT + (n & 3)), (n >> 2) * 128)), 1))
        ms = []
        for st in range(6):
            fa = acc(A_FA + 4 * st, 4)

            def g(st=st, fa=fa):
                e.wait_ds(("fa", st))
                self.mfma(e, v(V_G1, 4), fa, fa, v(V_G1, 4) if st else "0")
            ms.append(g)
            ms.append(lambda st=st, fa=fa: self.mfma(e, v(V_M1, 4), fa, v(V_ONES, 4), v(V_M1, 4) if st else "0"))
        flush(weave(e, ms, tr, 0, 2))
        e.wait_ds_all()
        self.push(e, 3 * k, "mid", extra)
        if k == 0:
            self.finish_qk(e)
        for st in range(6):
            self.mfma(e, v(V_S1, 4), acc(A_FA + 4 * st, 4), v(V_QK + 4 * st, 4), v(V_S1, 4) if st else "0")
        self.push(e, 3 * k, "end", extra)

    def soft_a(self, e, t):
        S_, M_ = V_TILE[t], V_TILE[t] + 4
        f = []
        for r in range(4):
            f.append(I(e, "v_fma_f32 %s, -%s, %s, %s" % (v(V_RS[t] + r), v(M_ + r), v(M_ + r), v(V_SS[t] + r))))
        for r in range(4):
            f.append(I(e, "v_max_f32 %s, %s, %s" % (v(V_RS[t] + r), v(V_RS[t] + r), v(V_EPS))))
        for r in range(4):
            f.append(I(e, "v_rsq_f32 %s, %s" % (v(V_RS[t] + r), v(V_RS[t] + r)), 2))
        return f

    def soft_b(self, e, t, first):
        S_, M_ = V_TILE[t], V_TILE[t] + 4
        f = []
        for r in range(4):
            f.append(I(e, "v_fma_f32 %s, -%s, %s, %s" % (v(S_ + r), v(M_ + r), v(V_CQ), v(S_ + r))))
        for r in range(4):
            if first:
                f.append(I(e, "v_mul_f32 %s, %s, %s" % (v(S_ + r), v(S_ + r), v(V_RS[t] + r))))
            else:
                f.append(I(e, "v_fma_f32 %s, %s, %s, %s" % (v(S_ + r), v(S_ + r), v(V_RS[t] + r), v(V_NEGM))))
        f.append(I(e, "v_max3_f32 %s, %s, %s, %s" % (v(T), v(S_), v(S_ + 1), v(S_ + 2))))
        f.append(I(e, "v_max_f32 %s, %s, %s" % (v(T), v(T), v(S_ + 3))))
        if first:
            for sw in ("32", "16"):
                f.append(I(e, "v_mov_b32 %s, %s" % (v(T + 1), v(T))))
                f.append(I(e, "v_permlane%s_swap_b32 %s, %s" % (sw, v(T), v(T + 1))))
                f.append(I(e, "v_max_f32 %s, %s, %s" % (v(T), v(T), v(T + 1))))
            f.append(I(e, "v_sub_f32 %s, 0, %s" % (v(V_NEGM), v(T))))
            for r in range(4):
                f.append(I(e, "v_sub_f32 %s, %s, %s" % (v(S_ + r), v(S_ + r), v(T))))
        else:
            site = len(self.sites)
            self.sites.append(t)

            def chk():
                e("v_cmp_lt_f32 vcc, %s, %s" % (s(S_THR), v(T)))
                e("s_cbranch_vccnz L_site%d" % site)
                e("L_back%d:" % site)
            f.append((chk, 2))
        return f

    def soft_c(self, e, t, first, rho):
        S_, M_ = V_TILE[t], V_TILE[t] + 4
        P_ = V_TILE[t] + 8
        crit, late = [], []
        for r in range(4):
            crit.append(I(e, "v_exp_f32 %s, %s" % (v(P_ + r), v(S_ + r)), 2))
        for r in range(4):
            crit.append(I(e, "v_mul_f32 %s, %s, %s" % (v(S_ + r), v(P_ + r), v(V_RS[t] + r))))
        for r in range(4):
            if first and r == 0:
                late.append(I(e, "v_mov_b32 %s, %s" % (v(V_L), v(P_))))
                late.append(I(e, "v_mul_f32 %s, %s, %s" % (v(V_PM), v(S_), v(M_))))
            else:
                late.append(I(e, "v_add_f32 %s, %s, %s" % (v(V_L), v(V_L), v(P_ + r))))
                late.append(I(e, "v_fmac_f32 %s, %s, %s" % (v(V_PM), v(S_ + r), v(M_ + r))))
        for r in range(4):
            if rho == 0 and t == 0:
                late.append(I(e, "v_mov_b32 %s, %s" % (v(V_PF + r), v(S_ + r))))
            else:
                late.append(I(e, "v_add_f32 %s, %s, %s" % (v(V_PF + r), v(V_PF + r), v(S_ + r))))
        return crit, late

    def phase_r(self, e, k, rho, extra):
        kind = "R%d" % rho
        base = rho * (L_R1 - L_R0)
        first = (k == 0 and rho == 0)
        e.wait_vm((kind, k))
        for t in range(2):
            for st in range(6):
                v0 = 24 * t + 4 * st
                e.lds(("xa", t, st), "ds_read_b128 %s, %s offset:%d" % (
                    acc(A_XA + 24 * t + 4 * st, 4), v(V_XA + ((v0 & 12) >> 2)), (v0 & ~15) * 16 + base))
        tr = []
        for n in range(12):
            for t in range(2):
                vv = 24 * t + 2 * n
                tr.append((lambda n=n, t=t, vv=vv: e.lds("xt", "ds_read_b64_tr_b16 %s, %s offset:%d" % (
                    acc(A_XT + 4 * n + 2 * t, 2), v(V_XT + ((vv & 14) >> 1)), (vv & ~15) * 16 + base)), 1))

        def gh(t):
            ms = []
            G_, H_ = V_TILE[t] + 8, V_TILE[t] + 12
            for st in range(6):
                xa = acc(A_XA + 24 * t + 4 * st, 4)

                def g(st=st, xa=xa):
                    e.wait_ds(("xa", t, st))
                    self.mfma(e, v(G_, 4), xa, xa, v(G_ if st else V_G1, 4))
                ms.append(g)
                ms.append(lambda st=st, xa=xa: self.mfma(e, v(H_, 4), xa, acc(A_FA + 4 * st, 4), v(H_, 4) if st else "0"))
            return ms

        def msq(t):
            S_, M_ = V_TILE[t], V_TILE[t] + 4
            ms = []
            for st in range(6):
                ms.append(lambda st=st: self.mfma(e, v(M_, 4), acc(A_XA + 24 * t + 4 * st, 4), v(V_ONES, 4), v(M_ if st else V_M1, 4)))
            for st in range(6):
                ms.append(lambda st=st: self.mfma(e, v(S_, 4), acc(A_XA + 24 * t + 4 * st, 4), v(V_QK + 4 * st, 4), v(S_ if st else V_S1, 4)))
            return ms

        def ssm(t):
            return (lambda: e("v_mfma_f32_16x16x4_f32 %s, %s, %s, %s" % (v(V_SS[t], 4), v(T + 2 + t), v(V_C192), v(V_EPS, 4))), 2)

        def dg(t):
            return self.diag(e, V_TILE[t] + 8, V_TILE[t] + 12, T + 2 + t)

        left = weave(e, gh(0), tr, 0, 2)
        left = weave(e, msq(0), left + [(lambda: None, 0)] + dg(0) + [I(e, "s_nop 0"), I(e, "s_nop 0"), ssm(0)], 3 if not left else 0, 2)
        flush(left)
        e.wait_ds_all()
        if self.inner:
            self.stamp(e, 3)
        self.push(e, 3 * k + 1 + rho, "mid", extra)
        c0, l0 = self.soft_c(e, 0, first, rho)
        q0 = self.soft_a(e, 0) + self.soft_b(e, 0, first) + c0
        left = weave(e, gh(1), q0, 3, 2)
        nl = sum(c for _, c in left)
        pad = l0[:max(0, 8 - nl)]
        rest = l0[len(pad):]
        left = weave(e, msq(1), left + pad + dg(1) + rest[:2] + [ssm(1)] + rest[2:], 0, 2)
        flush(left)
        if self.inner:
            self.stamp(e, 4)
        c1, l1 = self.soft_c(e, 1, False, rho)
        flush(self.soft_a(e, 1) + self.soft_b(e, 1, False) + c1)
        for t in range(2):
            S_ = V_TILE[t]
            e("v_cvt_pk_bf16_f32 %s, %s, %s" % (v(V_P + 2 * t), v(S_), v(S_ + 1)))
            e("v_cvt_pk_bf16_f32 %s, %s, %s" % (v(V_P + 2 * t + 1), v(S_ + 2), v(S_ + 3)))
        if rho == 1:
            l1 = l1[8:] + [I(e, "v_cvt_pk_bf16_f32 %s, %s, %s" % (v(V_PFB), v(V_PF), v(V_PF + 1))),
                           I(e, "v_cvt_pk_bf16_f32 %s, %s, %s" % (v(V_PFB + 1), v(V_PF + 2), v(V_PF + 3)))] + l1[:8]
        if self.inner:
            self.stamp(e, 5)
        ms = [(lambda n=n: self.mfma(e, acc(A_O + 4 * n, 4), acc(A_XT + 4 * n, 4), v(V_P, 4),
                                     "0" if first else acc(A_O + 4 * n, 4))) for n in range(12)]
        flush(weave(e, ms, l1, 0, 2))
        if self.inner:
            self.stamp(e, 6)
        if rho == 1:
            for n in range(12):
                e("v_mfma_f32_16x16x16_bf16 %s, %s, %s, %s" % (
                    acc(A_O + 4 * n, 4), acc(A_FT + 2 * n, 2), v(V_PFB, 2), acc(A_O + 4 * n, 4)))
        self.push(e, 3 * k + 1 + rho, "end", extra)

    def rare(self, e):
        for site, t in enumerate(self.sites):
            e("L_site%d:" % site)
            e("s_call_b64 %s, L_rare%d" % (s(S_RET, 2), t))
            e("s_branch L_back%d" % site)
        for t in range(2):
            r_ = Emit()
            r_("L_rare%d:" % t)
            r_("s_nop 7")
            r_("s_nop 7")
            for sw in ("32", "16"):
                r_("v_mov_b32 %s, %s" % (v(T + 1), v(T)))
                r_("v_permlane%s_swap_b32 %s, %s" % (sw, v(T), v(T + 1)))
                r_("v_max_f32 %s, %s, %s" % (v(T), v(T), v(T + 1)))
            r_("v_max_f32 %s, 0, %s" % (v(T), v(T)))
            r_("v_sub_f32 %s, %s, %s" % (v(V_NEGM), v(V_NEGM), v(T)))
            for r in range(4):
                r_("v_sub_f32 %s, %s, %s" % (v(V_TILE[t] + r), v(V_TILE[t] + r), v(T)))
            r_("v_sub_f32 %s, 0, %s" % (v(T), v(T)))
            r_("v_exp_f32 %s, %s" % (v(T), v(T)))
            tgt = [V_L, V_PM] + [V_PF + r for r in range(4)]
            if t == 1:
                tgt += [V_TILE[0] + r for r in range(4)]
            for x in tgt:
                r_("v_mul_f32 %s, %s, %s" % (v(x), v(x), v(T)))
            for n in range(48):
                r_("v_accvgpr_read_b32 %s, %s" % (v(T + 1), acc(A_O + n)))
                r_("v_mul_f32 %s, %s, %s" % (v(T + 1), v(T + 1), v(T)))
                r_("v_accvgpr_write_b32 %s, %s" % (acc(A_O + n), v(T + 1)))
            r_("s_nop 3")
            r_("s_setpc_b64 %s" % s(S_RET, 2))
            for ln in fix_hazards(r_.lines, "rare"):
                e(ln)

    def finish_qk(self, e):
        e.wait_vm("qk")
        for st in range(6):
            self.mfma(e, v(V_SS[0], 4), v(V_ONES, 4), v(V_QK + 4 * st, 4), v(V_SS[0], 4) if st else "0")
        e("v_mul_f32 %s, %s, %s" % (v(V_CQ), fl(1.0 / 192), v(V_SS[0])))

    def epilogue(self, e):
        XW, RD, AR = V_E, V_E + 1, V_E + 2
        ST = 16
        OT = 76
        FV, LS, PS, ONE = 32, 36, 40, 44
        for n in range(12):
            e.lds("x1", "ds_write_b128 %s, %s offset:%d" % (v(AR), acc(A_O + 4 * n, 4), n * 1024))
        e.lds("x1", "ds_write_b128 %s, %s" % (v(AR + 1), v(V_NEGM, 4)))
        e("v_mov_b32 %s, 1.0" % v(ONE))
        e.wait_ds_all()
        e("s_barrier")
        for w in range(4):
            e.lds(("st", w), "ds_read_b128 %s, %s offset:%d" % (v(ST + 4 * w, 4), v(AR + 2), w * 1024))
        for w in range(4):
            for t in range(3):
                e.lds(("o", w), "ds_read_b128 %s, %s offset:%d" % (v(OT + 12 * w + 4 * t, 4), v(RD), w * 12288 + t * 1024))
        e.wait_ds(("st", 3))
        NM = T + 8
        e("v_min3_f32 %s, %s, %s, %s" % (v(NM), v(ST), v(ST + 4), v(ST + 8)))
        e("v_min_f32 %s, %s, %s" % (v(NM), v(NM), v(ST + 12)))
        for w in range(4):
            e("v_sub_f32 %s, %s, %s" % (v(FV + w), v(NM), v(ST + 4 * w)))
        for w in range(4):
            e("v_exp_f32 %s, %s" % (v(FV + w), v(FV + w)))
        e("v_mul_f32 %s, %s, %s" % (v(T), v(FV), v(ST + 1)))
        e("v_mul_f32 %s, %s, %s" % (v(T + 1), v(FV), v(ST + 2)))
        for w in range(1, 4):
            e("v_fmac_f32 %s, %s, %s" % (v(T), v(FV + w), v(ST + 4 * w + 1)))
            e("v_fmac_f32 %s, %s, %s" % (v(T + 1), v(FV + w), v(ST + 4 * w + 2)))
        e.wait_ds(("o", 0))
        for j in range(2):
            e("v_mul_f32 %s, %s, %s" % (v(OT + j), v(OT + j), v(FV)))
        e("v_mfma_f32_16x16x4_f32 %s, %s, %s, 0" % (v(LS, 4), v(ONE), v(T)))
        e("v_mfma_f32_16x16x4_f32 %s, %s, %s, 0" % (v(PS, 4), v(ONE), v(T + 1)))
        for j in range(2, 12):
            e("v_mul_f32 %s, %s, %s" % (v(OT + j), v(OT + j), v(FV)))
        for w in range(1, 4):
            e.wait_ds(("o", w))
            for j in range(12):
                e("v_fmac_f32 %s, %s, %s" % (v(OT + j), v(OT + 12 * w + j), v(FV + w)))
            if w == 1:
                e("v_rcp_f32 %s, %s" % (v(T + 2), v(LS)))
                e("v_log_f32 %s, %s" % (v(T + 3), v(LS)))
            if w == 2:
                e("v_mul_f32 %s, %s, %s" % (v(T + 4), v(V_C192), v(T + 2)))
                e("v_mul_f32 %s, %s, %s" % (v(T + 5), v(PS), v(T + 2)))
                e("v_sub_f32 %s, %s, %s" % (v(T + 3), v(T + 3), v(NM)))
        for j in range(12):
            e("v_fma_f32 %s, %s, %s, -%s" % (v(OT + j), v(OT + j), v(T + 4), v(T + 5)))
        for t in range(3):
            e("v_cvt_pk_bf16_f32 %s, %s, %s" % (v(OT + 12 + 2 * t), v(OT + 4 * t), v(OT + 4 * t + 1)))
            e("v_cvt_pk_bf16_f32 %s, %s, %s" % (v(OT + 13 + 2 * t), v(OT + 4 * t + 2), v(OT + 4 * t + 3)))
            e.lds("x2", "ds_write_b64 %s, %s offset:%d" % (v(XW), v(OT + 12 + 2 * t, 2), t * 512))
        e.wait_vm("wvo")
        e.wait_ds_all()
        e("s_barrier")
        B = V_QK
        for st in range(6):
            e.lds(("b", st), "ds_read_b128 %s, %s offset:%d" % (v(B + 4 * st, 4), v(AR + 3), st * 1024))
        D = 16
        for st in range(6):
            e.wait_ds(("b", st))
            for t in range(3):
                self.mfma(e, v(D + 4 * t, 4), v(V_W + (t * 6 + st) * 4, 4), v(B + 4 * st, 4), v(D + 4 * t, 4) if st else "0")
        O_ = 32
        e("v_mov_b32 %s, %s" % (v(O_ + 3), v(T + 3)))
        e("v_mov_b32 %s, %s" % (v(O_ + 7), v(T + 3)))
        for j in range(6):
            e("v_cvt_pk_bf16_f32 %s, %s, %s" % (v(O_ + j + j // 3), v(D + 2 * j), v(D + 2 * j + 1)))
        e.vmem("out", "buffer_store_dwordx4 %s, %s, %s, %s offen" % (v(O_, 4), v(AR + 4), s(R_WS, 4), s(S_T0)))
        e.vmem("out", "buffer_store_dwordx4 %s, %s, %s, %s offen offset:64" % (v(O_ + 4, 4), v(AR + 4), s(R_WS, 4), s(S_T0)))

    def epilogue_addrs(self, e):
        XW, RD, AR = V_E, V_E + 1, V_E + 2
        self.xch_write_addr(e, XW, L_XA)
        e("s_mul_i32 %s, %s, 3072" % (s(S_T0), s(S_WAVE)))
        e("s_add_u32 %s, %s, %d" % (s(S_T0), s(S_T0), L_R0))
        e("v_add_u32 %s, %s, %s" % (v(RD), s(S_T0), v(V_LANE16)))
        e("v_add_u32 %s, %s, %s" % (v(AR), s(S_LR0), v(V_LANE16)))
        e("s_lshl_b32 %s, %s, 10" % (s(S_T0), s(S_WAVE)))
        e("v_add_u32 %s, %d, %s" % (v(AR + 2), L_ST, v(V_LANE16)))
        e("v_add_u32 %s, %s, %s" % (v(AR + 1), s(S_T0), v(AR + 2)))
        e("v_add_u32 %s, %d, %s" % (v(AR + 3), L_XA, v(V_LANE16)))
        e("v_and_b32 %s, 15, v0" % v(T))
        e("v_lshlrev_b32 %s, 17, %s" % (v(T), v(T)))
        e("v_and_b32 %s, 48, v0" % v(T + 1))
        e("v_add_u32 %s, %s, %s" % (v(AR + 4), v(T), v(T + 1)))

    def code_prefetch(self, e, start, end):
        e("s_getpc_b64 %s" % s(S_RET, 2))
        e("L_pc_%s:" % start)
        e("v_lshlrev_b32 %s, 7, v0" % v(V_JUNK + 1))
        e("v_min_u32 %s, %s - L_pc_%s - 4, %s" % (v(V_JUNK + 1), end, start, v(V_JUNK + 1)))
        e.vmem("pf", "global_load_dword %s, %s, %s" % (v(V_JUNK), v(V_JUNK + 1), s(S_RET, 2)))

    def write_stamps(self, e):
        if not self.a.stamps:
            return
        n = 12
        e.wait_ds_all()
        e("s_getreg_b32 %s, hwreg(HW_REG_XCC_ID)" % s(S_T1))
        for j in range(n):
            src = s(S_STAMP + 2 * j) if j < self.nstamp else "0"
            if j == n - 1:
                src = s(S_T1)
            e("v_mov_b32 %s, %s" % (v(200 + j), src))
        e("s_lshl_b32 %s, s2, 2" % s(S_T1))
        e("s_add_u32 %s, %s, %s" % (s(S_T1), s(S_T1), s(S_WAVE)))
        e("s_mul_i32 %s, %s, %d" % (s(S_T1), s(S_T1), n * 4))
        e("s_add_u32 %s, %s, %d" % (s(S_T1), s(S_T1), WS_STAMP))
        e("v_mov_b32 %s, 0" % v(T))
        e("v_cmp_eq_u32 vcc, 0, v0")
        e("s_and_saveexec_b64 %s, vcc" % s(S_RET, 2))
        for j in range(n // 4):
            e("buffer_store_dwordx4 %s, %s, %s, %s offen offset:%d" % (v(200 + 4 * j, 4), v(T), s(R_WS, 4), s(S_T1), 16 * j))

    def k_main(self):
        e = Emit()
        self.sites = []
        self.nstamp = 0
        e("s_cmp_ge_u32 s2, 256")
        e("s_cbranch_scc1 L_main_end")
        e("s_load_dwordx16 s[4:19], s[0:1], 0")
        e("s_load_dwordx4 s[20:23], s[0:1], 64")
        self.code_prefetch(e, "main", "L_main_codeend")
        self.lane_ids(e)
        self.dma_f_offsets(e)
        self.dma_r_offsets(e)
        e("s_mul_i32 %s, %s, 6144" % (s(S_OF), s(S_WAVE)))
        e("s_mul_i32 %s, %s, 12288" % (s(S_OR), s(S_WAVE)))
        e("s_add_u32 %s, %s, %d" % (s(S_LF), s(S_OF), L_F))
        e("s_add_u32 %s, %s, %d" % (s(S_LR0), s(S_OR), L_R0))
        e("s_add_u32 %s, %s, %d" % (s(S_LR1), s(S_OR), L_R1))
        e("s_mul_i32 %s, s2, 393216" % s(S_T0))
        e("s_mul_i32 %s, s2, 98304" % s(S_T1))
        e("s_waitcnt lgkmcnt(0)")
        srd(e, R_F1, S_F1, 98304, s(S_T1))
        srd(e, R_F0, S_F0, 393216, s(S_T0))
        srd(e, R_WS, S_WS, WS_SIZE)
        self.stamp(e, 0)
        cyc = self.a.stamps == "cyc"
        if cyc:
            self.stamp(e, 1)
        self.issue(e, "F", 0, [])
        e("s_movk_i32 %s, 0x1000" % s(S_T0))
        for st in range(6):
            e.vmem("qk", "buffer_load_dwordx4 %s, %s, %s, %s offen offset:%d" % (
                v(V_QK + 4 * st, 4), v(V_LANE16), s(R_WS, 4), s(S_T0) if st >= 4 else "0", WS_QK + (st % 4) * 1024))
        self.issue(e, "R0", 0, [])
        self.lds_read_addrs(e)
        self.consts(e)
        self.epilogue_addrs(e)
        e("s_mov_b32 %s, %s" % (s(S_THR), fl(THR)))
        if self.a.push not in ("end2", "mid2", "mixf"):
            self.issue(e, "R1", 0, [])
        if not cyc:
            self.stamp(e, 1)
        e("s_mul_i32 %s, %s, 18432" % (s(60), s(S_WAVE)))
        extra = []
        for j in range(18):
            def ld(j=j):
                if j % 4 == 0:
                    e("s_add_u32 %s, %s, %d" % (s(61), s(60), WS_WVO + j * 1024))
                e.vmem("wvo", "buffer_load_dwordx4 %s, %s, %s, %s offen offset:%d" % (
                    v(V_W + 4 * j, 4), v(V_LANE16), s(R_WS, 4), s(61), (j % 4) * 1024))
            extra.append(ld)
        for k in range(4):
            self.phase_f(e, k, extra if k > 0 else [])
            if k == 0 and not cyc:
                self.stamp(e, 2)
            self.phase_r(e, k, 0, extra)
            if k == 3:
                if not cyc:
                    self.stamp(e, 5)
                e.wait_vm(("R1", 3))
                self.stamp(e, 2 if cyc else 6)
            self.inner = cyc and k == 3
            self.phase_r(e, k, 1, extra)
            self.inner = False
            if k in (0, 1) and not cyc:
                self.stamp(e, 3 + k)
        assert not extra
        self.stamp(e, 7)
        e("s_lshl_b32 %s, %s, 15" % (s(S_T0), s(S_WAVE)))
        e("s_lshl_b32 %s, s2, 7" % s(S_T1))
        e("s_add_u32 %s, %s, %s" % (s(S_T0), s(S_T0), s(S_T1)))
        e("s_add_u32 %s, %s, %d" % (s(S_T0), s(S_T0), WS_PART))
        self.epilogue(e)
        self.stamp(e, 8)
        if self.a.stamps:
            e("s_waitcnt vmcnt(0)")
            self.stamp(e, 9)
            self.stamp(e, 10)
        self.write_stamps(e)
        e("L_main_end:")
        e("s_endpgm")
        e.lines = fix_hazards(e.lines, "main", self.a.verbose)
        self.rare(e)
        e("L_main_codeend:")
        return e.lines

    def k_prep(self):
        e = Emit()
        e("s_cmp_ge_u32 s2, 25")
        e("s_cbranch_scc1 L_prep_end")
        e("s_load_dwordx16 s[4:19], s[0:1], 0")
        e("s_load_dwordx4 s[20:23], s[0:1], 64")
        self.lane_ids(e)
        e("s_waitcnt lgkmcnt(0)")
        srd(e, R_WS, S_WS, WS_SIZE)
        e("s_cmp_eq_u32 s2, 24")
        e("s_cbranch_scc1 L_prep_qk")
        e("s_cmp_lg_u32 %s, 0" % s(S_WAVE))
        e("s_cbranch_scc1 L_prep_end")
        head = e.lines
        a = Emit()
        self.wvo_role(a)
        a("s_endpgm")
        b = Emit()
        b("L_prep_qk:")
        self.qk_role(b)
        b("L_prep_end:")
        b("s_endpgm")
        return fix_hazards(head + a.lines, "prep_wvo", self.a.verbose) + fix_hazards(b.lines, "prep_qk", self.a.verbose)

    def wvo_role(self, e):
        SW, SS_ = 62, 63
        e("s_mul_i32 %s, s2, 43" % s(SW))
        e("s_lshr_b32 %s, %s, 8" % (s(SW), s(SW)))
        e("s_mul_i32 %s, %s, 6" % (s(S_T0), s(SW)))
        e("s_sub_u32 %s, s2, %s" % (s(SS_), s(S_T0)))
        srd(e, R_A, S_WV, 73728)
        srd(e, R_B, S_WO, 73728)
        DO, WA, AV, BF, D = 16, 20, 184, 76, 160
        for e0 in range(3):
            e("v_add_u32 %s, %d, v0" % (v(T), 64 * e0))
            e("v_mul_u32_u24 %s, 10923, %s" % (v(T), v(T)))
            e("v_lshrrev_b32 %s, 16, %s" % (v(T), v(T)))
            e("v_mul_u32_u24 %s, 288, %s" % (v(T), v(T)))
            e("v_add_u32 %s, %s, %s" % (v(DO + e0), v(T), v(V_LANE16)))
        e("s_mul_i32 %s, %s, 96" % (s(S_T1), s(SW)))
        for j in range(18):
            if j % 3 == 0:
                e("s_mov_b32 m0, %d" % (L_SP + j * 1024))
                if j:
                    e("s_add_u32 %s, %s, 12288" % (s(S_T1), s(S_T1)))
                else:
                    e("s_nop 0")
            e.vmem("wo", "buffer_load_dwordx4 %s, %s, %s offen offset:%d lds" % (v(DO + j % 3), s(R_B, 4), s(S_T1), (j % 3) * 1024))
        e("v_bfe_u32 %s, v0, 2, 2" % v(T))
        e("v_and_b32 %s, 3, v0" % v(T + 1))
        e("v_lshl_add_u32 %s, %s, 3, %s" % (v(T), v(T), v(T + 1)))
        e("v_mul_u32_u24 %s, 384, %s" % (v(T), v(T)))
        e("v_and_b32 %s, 48, v0" % v(T + 1))
        e("v_add_u32 %s, %s, %s" % (v(WA), v(T), v(T + 1)))
        e("s_mul_i32 %s, %s, 12288" % (s(S_T2), s(SS_)))
        for h in range(2):
            for k in range(6):
                e.vmem("wv", "buffer_load_dwordx4 %s, %s, %s, %s offen offset:%d" % (
                    v(AV + (h * 6 + k) * 4, 4), v(WA), s(R_A, 4), s(S_T2), h * 1536 + k * 64))
        e("v_lshrrev_b32 %s, 4, v0" % v(T))
        e("v_bfe_u32 %s, v0, 2, 2" % v(T + 1))
        e("v_lshl_add_u32 %s, %s, 3, %s" % (v(T), v(T), v(T + 1)))
        e("v_mul_u32_u24 %s, 96, %s" % (v(T), v(T)))
        e("v_and_b32 %s, 3, v0" % v(T + 1))
        e("v_mul_u32_u24 %s, 24, %s" % (v(T + 1), v(T + 1)))
        e("v_add_u32 %s, %s, %s" % (v(T), v(T), v(T + 1)))
        e("v_add_u32 %s, %d, %s" % (v(WA + 1), L_SP, v(T)))
        e.wait_vm("wo")
        for t in range(3):
            for k in range(6):
                for h in range(2):
                    e.lds(("b", t, k), "ds_read_b64_tr_b16 %s, %s offset:%d" % (
                        v(BF + (t * 6 + k) * 4 + 2 * h, 2), v(WA + 1), (32 * k + 4 * h) * 96 + 8 * t))
        e.wait_vm("wv")
        for t in range(3):
            for k in range(6):
                e.wait_ds(("b", t, k))
                for h in range(2):
                    d = D + (t * 2 + h) * 4
                    self.mfma(e, v(d, 4), v(AV + (h * 6 + k) * 4, 4), v(BF + (t * 6 + k) * 4, 4), v(d, 4) if k else "0")
        e("s_mul_i32 %s, %s, 18432" % (s(S_T0), s(SW)))
        e("s_lshl_b32 %s, %s, 10" % (s(S_T1), s(SS_)))
        e("s_add_u32 %s, %s, %s" % (s(S_T0), s(S_T0), s(S_T1)))
        e("s_add_u32 %s, %s, %d" % (s(S_T0), s(S_T0), WS_WVO))
        for t in range(3):
            for j in range(4):
                e("v_cvt_pk_bf16_f32 %s, %s, %s" % (v(AV + 4 * t + j), v(D + t * 8 + 2 * j), v(D + t * 8 + 2 * j + 1)))
            e.vmem("st", "buffer_store_dwordx4 %s, %s, %s, %s offen" % (v(AV + 4 * t, 4), v(V_LANE16), s(R_WS, 4), s(S_T0)))
            if t < 2:
                e("s_add_u32 %s, %s, 6144" % (s(S_T0), s(S_T0)))

    def qk_role(self, e):
        QF, AF, KF, D, CS, XW, RA = 136, 160, 76, 16, 28, 40, 44
        srd(e, R_A, S_WQ, 73728)
        srd(e, R_B, S_WK, 73728)
        srd(e, R_C, S_Q, 6144)
        self.dma_f_offsets(e)
        e("s_mul_i32 %s, %s, 18432" % (s(S_T1), s(S_WAVE)))
        for j in range(18):
            ee = j % 6
            if ee == 0 and j:
                e("s_add_u32 %s, %s, 6144" % (s(S_T1), s(S_T1)))
            if ee % 4 == 0:
                e("s_add_u32 m0, %s, %d" % (s(S_T1), L_R1 + ee * 1024))
                e("s_nop 0")
            e.vmem("wq", "buffer_load_dwordx4 %s, %s, %s offen offset:%d lds" % (v(V_DF + ee), s(R_A, 4), s(S_T1), (ee % 4) * 1024))
        e("v_and_b32 %s, 15, v0" % v(T))
        e("v_mul_u32_u24 %s, 384, %s" % (v(T), v(T)))
        e("v_and_b32 %s, 48, v0" % v(T + 1))
        e("v_add_u32 %s, %s, %s" % (v(RA), v(T), v(T + 1)))
        for k in range(6):
            e.vmem("q", "buffer_load_dwordx4 %s, %s, %s, 0 offen offset:%d" % (v(QF + 4 * k, 4), v(RA), s(R_C, 4), 64 * k))
        e("s_mul_i32 %s, %s, 18432" % (s(S_T1), s(S_WAVE)))
        for t in range(3):
            for k in range(6):
                e.vmem("wk", "buffer_load_dwordx4 %s, %s, %s, %s offen offset:%d" % (
                    acc(KF + (t * 6 + k) * 4, 4), v(RA), s(R_B, 4), s(S_T1), 64 * k))
            if t < 2:
                e("s_add_u32 %s, %s, 6144" % (s(S_T1), s(S_T1)))
        self.consts(e)
        self.xch_write_addr(e, XW, L_XA)
        TA = 46
        e("v_lshrrev_b32 %s, 4, v0" % v(T))
        e("v_bfe_u32 %s, v0, 2, 2" % v(T + 1))
        e("v_lshl_add_u32 %s, %s, 3, %s" % (v(T + 2), v(T), v(T + 1)))
        e("v_mul_u32_u24 %s, 384, %s" % (v(T + 2), v(T + 2)))
        e("v_and_b32 %s, 1, v0" % v(T + 3))
        e("v_lshl_add_u32 %s, %s, 3, %s" % (v(T + 2), v(T + 3), v(T + 2)))
        e("v_add_u32 %s, %d, %s" % (v(T + 2), L_R1, v(T + 2)))
        e("v_and_b32 %s, 2, %s" % (v(T + 1), v(T + 1)))
        e("v_and_or_b32 %s, %s, 1, %s" % (v(T + 1), v(T), v(T + 1)))
        e("v_bfe_u32 %s, v0, 1, 1" % v(T + 3))
        e("v_xor_b32 %s, %s, %s" % (v(T + 1), v(T + 1), v(T + 3)))
        e("s_mul_i32 %s, %s, 6" % (s(S_T0), s(S_WAVE)))
        for t in range(3):
            e("s_add_u32 %s, %s, %d" % (s(S_T1), s(S_T0), 2 * t))
            e("v_xor_b32 %s, %s, %s" % (v(T + 3), s(S_T1), v(T + 1)))
            e("v_lshl_add_u32 %s, %s, 4, %s" % (v(TA + 2 * t), v(T + 3), v(T + 2)))
            e("v_xor_b32 %s, 64, %s" % (v(TA + 2 * t + 1), v(TA + 2 * t)))
        e.wait_vm("q")
        G_, M_, SQ = 88, 92, 96
        for k in range(6):
            self.mfma(e, v(G_, 4), v(QF + 4 * k, 4), v(QF + 4 * k, 4), v(G_, 4) if k else "0")
            self.mfma(e, v(M_, 4), v(V_ONES, 4), v(QF + 4 * k, 4), v(M_, 4) if k else "0")
        e("s_barrier")
        for t in range(3):
            for k in range(6):
                for h in range(2):
                    e.lds(("a", t, k), "ds_read_b64_tr_b16 %s, %s offset:%d" % (
                        v(AF + (t * 6 + k) * 4 + 2 * h, 2), v(TA + 2 * t + h), 12288 * k + 1536 * h))
        flush(self.diag(e, G_, None, T + 2))
        e("v_mfma_f32_16x16x4_f32 %s, %s, %s, %s" % (v(SQ, 4), v(V_C192), v(T + 2), v(V_EPS, 4)))
        for t in range(3):
            for k in range(6):
                e.wait_ds(("a", t, k))
                af = v(AF + (t * 6 + k) * 4, 4)
                self.mfma(e, v(D + 4 * t, 4), af, v(QF + 4 * k, 4), v(D + 4 * t, 4) if k else "0")
                self.mfma(e, v(CS + 4 * t, 4), af, v(V_ONES, 4), v(CS + 4 * t, 4) if k else "0")
        e("v_fma_f32 %s, -%s, %s, %s" % (v(T + 4), v(M_), v(M_), v(SQ)))
        e("v_max_f32 %s, %s, %s" % (v(T + 4), v(T + 4), v(V_EPS)))
        e("v_rsq_f32 %s, %s" % (v(T + 4), v(T + 4)))
        e("v_mul_f32 %s, %s, %s" % (v(T + 5), fl(1.0 / 192), v(M_)))
        e("v_mul_f32 %s, %s, %s" % (v(T + 4), v(V_C192), v(T + 4)))
        for j in range(12):
            e("v_fma_f32 %s, -%s, %s, %s" % (v(D + j), v(T + 5), v(CS + j), v(D + j)))
        for j in range(12):
            e("v_mul_f32 %s, %s, %s" % (v(D + j), v(D + j), v(T + 4)))
        for t in range(3):
            e("v_cvt_pk_bf16_f32 %s, %s, %s" % (v(CS + 2 * t), v(D + 4 * t), v(D + 4 * t + 1)))
            e("v_cvt_pk_bf16_f32 %s, %s, %s" % (v(CS + 2 * t + 1), v(D + 4 * t + 2), v(D + 4 * t + 3)))
            e.lds("x", "ds_write_b64 %s, %s offset:%d" % (v(XW), v(CS + 2 * t, 2), t * 512))
        e("v_add_u32 %s, %d, %s" % (v(T + 6), L_XA, v(V_LANE16)))
        e.wait_ds_all()
        e("s_barrier")
        for k in range(6):
            e.lds(("b", k), "ds_read_b128 %s, %s offset:%d" % (v(QF + 4 * k, 4), v(T + 6), 1024 * k))
        e.wait_vm("wk")
        for k in range(6):
            e.wait_ds(("b", k))
            for t in range(3):
                self.mfma(e, v(D + 4 * t, 4), acc(KF + (t * 6 + k) * 4, 4), v(QF + 4 * k, 4), v(D + 4 * t, 4) if k else "0")
        for j in range(12):
            e("v_mul_f32 %s, %s, %s" % (v(D + j), fl(QSCALE), v(D + j)))
        for t in range(3):
            e("v_cvt_pk_bf16_f32 %s, %s, %s" % (v(CS + 2 * t), v(D + 4 * t), v(D + 4 * t + 1)))
            e("v_cvt_pk_bf16_f32 %s, %s, %s" % (v(CS + 2 * t + 1), v(D + 4 * t + 2), v(D + 4 * t + 3)))
            e.lds("x", "ds_write_b64 %s, %s offset:%d" % (v(XW), v(CS + 2 * t, 2), (L_XB - L_XA) + t * 512))
        e("v_lshrrev_b32 %s, 5, v0" % v(T))
        e("v_bfe_u32 %s, v0, 4, 1" % v(T + 1))
        e("v_lshl_or_b32 %s, %s, 1, %s" % (v(T), v(T + 1), v(T)))
        e("v_and_b32 %s, 15, v0" % v(T + 1))
        e("v_lshlrev_b32 %s, 4, %s" % (v(T + 1), v(T + 1)))
        e("v_lshl_add_u32 %s, %s, 8, %s" % (v(T), v(T), v(T + 1)))
        e("v_add_u32 %s, %d, %s" % (v(T), L_XB, v(T)))
        e.wait_ds_all()
        e("s_barrier")
        e("s_cmp_lg_u32 %s, 0" % s(S_WAVE))
        e("s_cbranch_scc1 L_prep_end")
        for k in range(6):
            e.lds("c", "ds_read_b128 %s, %s offset:%d" % (v(QF + 4 * k, 4), v(T), 1024 * k))
        e.wait_ds_all()
        e("s_movk_i32 %s, 0x1000" % s(S_T0))
        for k in range(6):
            e.vmem("st", "buffer_store_dwordx4 %s, %s, %s, %s offen offset:%d" % (
                v(QF + 4 * k, 4), v(V_LANE16), s(R_WS, 4), s(S_T0) if k >= 4 else "0", WS_QK + (k % 4) * 1024))

    def k_comb(self):
        e = Emit()
        DT, LAM, AC, X = 16, 48, 56, 64
        e("s_cmp_ge_u32 s2, 64")
        e("s_cbranch_scc1 L_comb_end")
        e("s_load_dwordx2 s[4:5], s[0:1], 0")
        e("s_load_dwordx2 s[18:19], s[0:1], 56")
        e("s_load_dwordx2 s[22:23], s[0:1], 72")
        self.lane_ids(e)
        e("s_lshl_b32 %s, s2, 15" % s(S_T0))
        e("s_lshl_b32 %s, %s, 13" % (s(S_T1), s(S_WAVE)))
        e("s_add_u32 %s, %s, %s" % (s(S_T0), s(S_T0), s(S_T1)))
        e("s_add_u32 %s, %s, %d" % (s(S_T0), s(S_T0), WS_PART))
        e("s_add_u32 %s, %s, 4096" % (s(S_T1), s(S_T0)))
        e("s_waitcnt lgkmcnt(0)")
        srd(e, R_WS, S_WS, WS_SIZE)
        for t in range(8):
            e.vmem(("d", t), "buffer_load_dwordx4 %s, %s, %s, %s offen offset:%d" % (
                v(DT + 4 * t, 4), v(V_LANE16), s(R_WS, 4), s(S_T0 + t // 4), (t % 4) * 1024))
        srd(e, R_A, S_Q, 6144)
        srd(e, R_B, S_OUT, 6144)
        e("v_mul_u32_u24 %s, 43, v0" % v(T))
        e("v_lshrrev_b32 %s, 7, %s" % (v(T), v(T)))
        e("v_mul_u32_u24 %s, 3, %s" % (v(T + 1), v(T)))
        e("v_sub_u32 %s, v0, %s" % (v(T + 1), v(T + 1)))
        e("v_and_b32 %s, 3, %s" % (v(T + 2), v(T)))
        e("v_mul_u32_u24 %s, 6, %s" % (v(T + 2), v(T + 2)))
        e("v_lshrrev_b32 %s, 2, %s" % (v(T + 3), v(T)))
        e("v_mul_u32_u24 %s, 3, %s" % (v(T + 3), v(T + 3)))
        e("v_add3_u32 %s, %s, %s, %s" % (v(T + 2), v(T + 2), v(T + 3), v(T + 1)))
        e("v_lshlrev_b32 %s, 2, %s" % (v(T + 2), v(T + 2)))
        e("v_lshlrev_b32 %s, 5, %s" % (v(T), v(T)))
        e("v_lshl_add_u32 %s, %s, 3, %s" % (v(T + 4), v(T + 1), v(T)))
        e("v_cmp_gt_u32 vcc, 24, v0")
        e("v_mov_b32 %s, 0x10000" % v(T + 3))
        e("s_mul_i32 %s, s2, 96" % s(S_T2))
        e("v_cndmask_b32 %s, %s, %s, vcc" % (v(T + 2), v(T + 3), v(T + 2)))
        e.vmem("q", "buffer_load_dword %s, %s, %s, %s offen" % (v(T + 5), v(T + 2), s(R_A, 4), s(S_T2)))
        e.wait_vm(("d", 7))
        MX = T + 6
        e("v_max3_f32 %s, %s, %s, %s" % (v(MX), v(DT + 3), v(DT + 7), v(DT + 11)))
        e("v_max3_f32 %s, %s, %s, %s" % (v(MX), v(MX), v(DT + 15), v(DT + 19)))
        e("v_max3_f32 %s, %s, %s, %s" % (v(MX), v(MX), v(DT + 23), v(DT + 27)))
        e("v_max_f32 %s, %s, %s" % (v(MX), v(MX), v(DT + 31)))
        e("v_max_f32_dpp %s, %s, %s row_ror:8 row_mask:0xf bank_mask:0xf" % (v(MX), v(MX), v(MX)))
        for sw in ("32", "16"):
            e("v_mov_b32 %s, %s" % (v(MX + 1), v(MX)))
            e("v_permlane%s_swap_b32 %s, %s" % (sw, v(MX), v(MX + 1)))
            e("v_max_f32 %s, %s, %s" % (v(MX), v(MX), v(MX + 1)))
        for t in range(8):
            e("v_sub_f32 %s, %s, %s" % (v(LAM + t), v(DT + 4 * t + 3), v(MX)))
        for t in range(8):
            e("v_exp_f32 %s, %s" % (v(LAM + t), v(LAM + t)))
        for t in range(8):
            for j in range(3):
                e("v_lshlrev_b32 %s, 16, %s" % (v(X + 2 * j), v(DT + 4 * t + j)))
                e("v_and_b32 %s, 0xffff0000, %s" % (v(X + 2 * j + 1), v(DT + 4 * t + j)))
            for j in range(6):
                e("%s %s, %s, %s" % ("v_fmac_f32" if t else "v_mul_f32", v(AC + j), v(X + j), v(LAM + t)))
            if t:
                e("v_add_f32 %s, %s, %s" % (v(LAM), v(LAM), v(LAM + t)))
        e("v_mov_b32 %s, %s" % (v(AC + 6), v(LAM)))
        e("v_mov_b32 %s, %s" % (v(AC + 7), v(MX)))
        for j in range(7):
            e("v_add_f32_dpp %s, %s, %s row_ror:8 row_mask:0xf bank_mask:0xf" % (v(AC + j), v(AC + j), v(AC + j)))
        for sw in ("16", "32"):
            for j in range(7):
                e("v_mov_b32 %s, %s" % (v(X + j), v(AC + j)))
            for j in range(7):
                e("v_permlane%s_swap_b32 %s, %s" % (sw, v(AC + j), v(X + j)))
            for j in range(7):
                e("v_add_f32 %s, %s, %s" % (v(AC + j), v(AC + j), v(X + j)))
        e("v_lshlrev_b32 %s, 5, v0" % v(X))
        e("s_lshl_b32 %s, %s, 8" % (s(S_T0), s(S_WAVE)))
        e("v_add_u32 %s, %s, %s" % (v(X), s(S_T0), v(X)))
        e("s_mov_b64 exec, 0xff")
        e.lds("w", "ds_write_b128 %s, %s" % (v(X), v(AC, 4)))
        e.lds("w", "ds_write_b128 %s, %s offset:16" % (v(X), v(AC + 4, 4)))
        e("s_mov_b64 exec, -1")
        e.wait_ds_all()
        e("s_barrier")
        e("s_cmp_lg_u32 %s, 0" % s(S_WAVE))
        e("s_cbranch_scc1 L_comb_end")
        e("v_and_b32 %s, 0xff, %s" % (v(T + 4), v(T + 4)))
        e("v_mov_b32 %s, 24" % v(T))
        for w in range(4):
            e.lds("r", "ds_read_b64 %s, %s offset:%d" % (v(DT + 2 * w, 2), v(T + 4), 256 * w))
            e.lds("r", "ds_read_b64 %s, %s offset:%d" % (v(DT + 8 + 2 * w, 2), v(T), 256 * w))
        e.wait_ds_all()
        e("v_max3_f32 %s, %s, %s, %s" % (v(MX), v(DT + 9), v(DT + 11), v(DT + 13)))
        e("v_max_f32 %s, %s, %s" % (v(MX), v(MX), v(DT + 15)))
        for w in range(4):
            e("v_sub_f32 %s, %s, %s" % (v(LAM + w), v(DT + 9 + 2 * w), v(MX)))
        for w in range(4):
            e("v_exp_f32 %s, %s" % (v(LAM + w), v(LAM + w)))
        for w in range(4):
            op = "v_fmac_f32" if w else "v_mul_f32"
            e("%s %s, %s, %s" % (op, v(AC + 2), v(DT + 8 + 2 * w), v(LAM + w)))
            e("%s %s, %s, %s" % (op, v(AC), v(DT + 2 * w), v(LAM + w)))
            e("%s %s, %s, %s" % (op, v(AC + 1), v(DT + 2 * w + 1), v(LAM + w)))
        e("v_rcp_f32 %s, %s" % (v(AC + 2), v(AC + 2)))
        e.wait_vm("q")
        e("v_lshlrev_b32 %s, 16, %s" % (v(X), v(T + 5)))
        e("v_and_b32 %s, 0xffff0000, %s" % (v(X + 1), v(T + 5)))
        e("v_fmac_f32 %s, %s, %s" % (v(X), v(AC), v(AC + 2)))
        e("v_fmac_f32 %s, %s, %s" % (v(X + 1), v(AC + 1), v(AC + 2)))
        e("v_cvt_pk_bf16_f32 %s, %s, %s" % (v(X), v(X), v(X + 1)))
        e.vmem("o", "buffer_store_dword %s, %s, %s, %s offen" % (v(X), v(T + 2), s(R_B, 4), s(S_T2)))
        e("L_comb_end:")
        e("s_endpgm")
        return fix_hazards(e.lines, "comb", self.a.verbose)

    def k_touch(self):
        e = Emit()
        e("s_load_dwordx16 s[4:19], s[0:1], 0")
        e("s_load_dwordx4 s[20:23], s[0:1], 64")
        e("v_lshlrev_b32 v1, 19, v0")
        e("v_lshlrev_b32 v2, 7, v0")
        e("v_lshlrev_b32 v3, 14, v0")
        e("s_waitcnt lgkmcnt(0)")
        lvl = self.a.touch
        if "f" in lvl:
            srd(e, 24, S_F0, 100663296)
            srd(e, 28, S_F1, 25165824)
            e("buffer_load_dword v4, v1, s[24:27], 0 offen nt")
            e("buffer_load_dword v5, v1, s[28:31], 0 offen nt")
        if "w" in lvl:
            for j, p in enumerate([S_Q, S_WQ, S_WK, S_WV, S_WO, S_OUT]):
                srd(e, 32 + 4 * j, p, 128)
                e("buffer_load_dword v%d, v2, %s, 0 offen" % (6 + j, s(32 + 4 * j, 4)))
            srd(e, 60, S_WS, WS_SIZE)
            e("buffer_load_dword v12, v3, s[60:63], 0 offen nt")
        e("s_waitcnt vmcnt(0)")
        e("s_endpgm")
        return e.lines

    def build(self):
        ks = [("prep_kernel", self.k_prep(), 25, L_END, 256, 512),
              ("main_kernel", self.k_main(), 256, L_END, 256, 448),
              ("comb_kernel", self.k_comb(), 64, 1024, 72, 72)]
        o = [HDR]
        if self.a.empty_first:
            ks = [("nil0_kernel", ["s_endpgm"], 1, 0, 8, 8)] + ks
        if self.a.touch:
            ks = [("touch_kernel", self.k_touch(), 64, 0, 16, 16)] + ks
        if self.a.empty_last:
            ks = ks + [("nil1_kernel", ["s_endpgm"], 1, 0, 8, 8)]
        for n, _, g, lds, _, _ in ks:
            for _ in range(2 if n.startswith(self.a.repeat or "-") else 1):
                o.append("; @launch kernel=%s grid=(%d,1,1) block=(256,1,1) lds=%d" % (n, g, lds))
        o.append('.amdgcn_target "amdgcn-amd-amdhsa--gfx950"')
        o.append(".text")
        for n, lines, _, _, _, _ in ks:
            o.append(".p2align 8")
            o.append("%s:" % n)
            o += [("    " + x if not x.endswith(":") else x) for x in lines]
        o.append('.section .rodata,"a"')
        for n, _, _, _, ao, nv in ks:
            o.append(".p2align 6")
            o.append(".amdhsa_kernel %s" % n)
            o.append("  .amdhsa_next_free_vgpr %d" % nv)
            o.append("  .amdhsa_next_free_sgpr 102")
            o.append("  .amdhsa_accum_offset %d" % ao)
            o.append("  .amdhsa_group_segment_fixed_size 0")
            o.append("  .amdhsa_kernarg_size 80")
            o.append("  .amdhsa_user_sgpr_count 2")
            o.append("  .amdhsa_user_sgpr_kernarg_segment_ptr 1")
            o.append("  .amdhsa_system_sgpr_workgroup_id_x 1")
            o.append("  .amdhsa_float_denorm_mode_32 3")
            o.append(".end_amdhsa_kernel")
        return "\n".join(o) + "\n"


if __name__ == "__main__":
    ap = argparse.ArgumentParser()
    ap.add_argument("-o", default="v1.s")
    ap.add_argument("--pol", default="nt")
    ap.add_argument("--stamps", default=None)
    ap.add_argument("--verbose", action="store_true")
    ap.add_argument("--repeat", default=None)
    ap.add_argument("--bar", default="none")
    ap.add_argument("--push", default="mid3")
    ap.add_argument("--touch", default=None)
    ap.add_argument("--empty_first", action="store_true")
    ap.add_argument("--empty_last", action="store_true")
    args = ap.parse_args()
    open(args.o, "w").write(Gen(args).build())
```

```python
import re


class Emit:
    def __init__(self):
        self.lines = []
        self.vm = []
        self.vm_done = 0
        self.ds = []
        self.ds_done = 0
        self.opt = {}
        self.smem = False

    def __call__(self, s):
        self.lines.append(s)

    def raw(self, s):
        self.lines.append(s)

    def vmem(self, tag, s, role=None):
        self.lines.append(s)
        self.vm.append(tag)
        if role:
            self.opt[len(self.vm) - 1] = role

    def lds(self, tag, s):
        self.lines.append(s)
        self.ds.append(tag)

    def _need(self, lst, done, tags):
        if isinstance(tags, (str, tuple)):
            tags = [tags]
        idx = [i for i, t in enumerate(lst) if t in tags]
        assert idx, "no such tag %r" % (tags,)
        last = max(idx)
        if last < done:
            return None
        return len(lst) - 1 - last

    def wait_vm(self, tags, role=None):
        n = self._need(self.vm, self.vm_done, tags)
        if n is None:
            return
        last = len(self.vm) - 1 - n
        n -= sum(1 for i, r in self.opt.items() if i > last and r != role)
        self.lines.append("s_waitcnt vmcnt(%d)" % min(n, 63))
        if role is None:
            self.vm_done = max(self.vm_done, last + 1)

    def wait_ds(self, tags):
        n = self._need(self.ds, self.ds_done, tags)
        if n is None:
            return
        n = 0 if self.smem else min(n, 15)
        self.smem = False
        self.lines.append("s_waitcnt lgkmcnt(%d)" % n)
        self.ds_done = max(self.ds_done, len(self.ds) - n)

    def wait_ds_all(self):
        if self.ds_done < len(self.ds) or self.smem:
            self.lines.append("s_waitcnt lgkmcnt(0)")
            self.ds_done = len(self.ds)
            self.smem = False

    def wait_vm_all(self):
        self.lines.append("s_waitcnt vmcnt(0)")
        self.vm_done = len(self.vm)

    def text(self):
        return "\n".join(self.lines) + "\n"


def v(a, n=1):
    return "v%d" % a if n == 1 else "v[%d:%d]" % (a, a + n - 1)


def acc(a, n=1):
    return "a%d" % a if n == 1 else "a[%d:%d]" % (a, a + n - 1)


def s(a, n=1):
    return "s%d" % a if n == 1 else "s[%d:%d]" % (a, a + n - 1)


_REG = re.compile(r"^-?(?:abs\()?\|?([vas])(?:(\d+)|\[(\d+):(\d+)\])\)?\|?$")
TRANS = ("v_exp_f32", "v_log_f32", "v_rcp_f32", "v_rsq_f32", "v_sqrt_f32", "v_sin_f32", "v_cos_f32")


def regs(op):
    op = op.strip()
    if op == "vcc":
        return {("s", "vcc")}
    if op == "m0":
        return {("s", "m0")}
    if op == "exec":
        return {("s", "exec")}
    m = _REG.match(op)
    if not m:
        return set()
    k = m.group(1)
    if m.group(2) is not None:
        return {(k, int(m.group(2)))}
    return {(k, i) for i in range(int(m.group(3)), int(m.group(4)) + 1)}


class Ins:
    def __init__(self, text):
        self.text = text
        t = text.split(";")[0].strip()
        parts = t.split(None, 1)
        self.op = parts[0]
        rest = parts[1] if len(parts) > 1 else ""
        ops = [x.strip() for x in rest.split(",")] if rest else []
        if ops:
            tail = ops[-1].split()
            ops[-1] = tail[0] if tail else ""
            self.mods = " ".join(tail[1:])
        else:
            self.mods = ""
        self.ops = ops
        op = self.op
        self.kind = "other"
        self.w, self.r = set(), set()
        self.a = self.b = self.c = set()
        R = [regs(x) for x in ops]
        if op.startswith("v_mfma"):
            self.kind = "mfma"
            self.w = R[0]
            self.a, self.b, self.c = R[1], R[2], R[3]
            self.r = self.a | self.b | self.c
            self.sgemm = op.endswith("_f32") and "bf16" not in op
            self.passes = 8 if (self.sgemm or "32x32" in op) else 4
        elif op.startswith("v_"):
            self.kind = "valu"
            self.w = set(R[0])
            self.r = set().union(*R[1:]) if len(R) > 1 else set()
            if op.startswith(("v_fmac", "v_permlane", "v_dot2c", "v_writelane")) or "dpp" in op:
                self.r |= R[0]
            if op.startswith("v_permlane"):
                self.w |= R[1]
            if op.startswith(("v_add_co", "v_addc_co", "v_sub_co")):
                self.w |= R[1]
            if op.startswith("v_cndmask") and len(ops) == 3:
                self.r |= {("s", "vcc")}
            self.trans = op.split("_e32")[0].split("_e64")[0] in TRANS
            self.dpp = "dpp" in op or "row_" in self.mods or "quad_perm" in self.mods
        elif op.startswith("ds_"):
            self.kind = "ds"
            if op.startswith("ds_read"):
                self.w, self.r = R[0], R[1]
            else:
                self.r = set().union(*R)
        elif op.startswith(("buffer_", "global_")):
            self.kind = "vmem"
            self.ldsdma = " lds" in (" " + self.mods) or "load_lds" in op
            if op in ("buffer_inv", "buffer_wbl2"):
                pass
            elif "load" in op and not self.ldsdma:
                self.w = R[0]
                self.r = set().union(*R[1:])
            elif "atomic" in op and "sc0" in self.mods:
                self.w = R[0]
                self.r = set().union(*R)
            else:
                self.r = set().union(*R)
            if self.ldsdma:
                self.r |= {("s", "m0")}
            self.widestore = "store" in op and ("x3" in op or "x4" in op)
            self.data = set()
            if "store" in op:
                self.data = R[0] if op.startswith("buffer") else R[1]
        elif op.startswith("s_"):
            self.kind = "salu"
            if op.startswith(("s_cmp", "s_cbranch", "s_branch", "s_waitcnt", "s_barrier", "s_nop", "s_endpgm",
                              "s_sleep", "s_setprio", "s_setpc")):
                self.r = set().union(*R) if R else set()
            else:
                self.w = R[0] if R else set()
                self.r = set().union(*R[1:]) if len(R) > 1 else set()
        self.states = 1
        if op == "s_nop":
            self.states = int(ops[0], 0) + 1


def lint(lines, name="", short=None):
    ins = []
    where = []
    for k, ln in enumerate(lines):
        t = ln.split(";")[0].strip()
        if not t or t.endswith(":") or t.startswith("."):
            continue
        ins.append(Ins(t))
        where.append(k)
    probs = []

    def bad(i, j, need, have, why):
        if short is not None:
            short[where[i]] = max(short.get(where[i], 0), need - have)
            return
        probs.append("%s: need %d have %d [%s]\n    %s\n    %s" % (name, need, have, why, ins[j].text, ins[i].text))
    vmq, dsq, smq = [], [], set()
    for i, x in enumerate(ins):
        touched = x.r | x.w
        if x.op == "s_waitcnt":
            m = re.search(r"vmcnt\((\d+)\)", x.text)
            if m:
                n = int(m.group(1))
                vmq = vmq[len(vmq) - n:] if n < len(vmq) else vmq
                if n == 0:
                    vmq = []
            m = re.search(r"lgkmcnt\((\d+)\)", x.text)
            if m:
                n = int(m.group(1))
                dsq = dsq[len(dsq) - n:] if n < len(dsq) else dsq
                if n == 0:
                    dsq = []
                    smq = set()
        else:
            for q, nm in ((vmq, "vm"), (dsq, "ds")) if "nolint" not in lines[where[i]] else ():
                for (j, w) in q:
                    if w & touched:
                        probs.append("%s: pending %s load\n    %s\n    %s" % (name, nm, ins[j].text, x.text))
            if smq & touched:
                probs.append("%s: pending smem load\n    %s" % (name, x.text))
        if x.kind == "vmem" and x.op not in ("buffer_inv", "buffer_wbl2"):
            vmq.append((i, x.w))
        if x.kind == "ds":
            dsq.append((i, x.w))
        if x.op.startswith(("s_load", "s_memrealtime", "s_memtime")):
            smq |= x.w
            dsq.append((i, set()))
            dsq.append((i, set()))
        have = 0
        j = i - 1
        while j >= 0 and have < 24:
            p = ins[j]
            vw = {r for r in p.w if r[0] in "va"}
            sw = {r for r in p.w if r[0] == "s"}
            if p.kind == "valu":
                if x.kind == "mfma" and vw & x.r and have < 2:
                    bad(i, j, 2, have, "valu->mfma")
                if x.kind == "valu":
                    if p.trans and not x.trans and vw & x.r and have < 1:
                        bad(i, j, 1, have, "trans->valu")
                    if (x.dpp or x.op.startswith("v_permlane")) and vw & x.r and have < 2:
                        bad(i, j, 2, have, "valu->dpp/permlane")
                    if x.op.startswith(("v_readfirstlane", "v_readlane")) and vw & x.r and have < 1:
                        bad(i, j, 1, have, "valu->readlane")
                    if sw & x.r and have < 2:
                        bad(i, j, 2, have, "valu sgpr->valu const")
                if p.op.startswith("v_dot") and have < 3 and x.kind in ("valu", "mfma", "ds", "vmem") and vw & (x.r | x.w):
                    if not (x.op == p.op and not vw & (regs(x.ops[1]) | regs(x.ops[2]))):
                        bad(i, j, 3, have, "dot->use")
                if x.kind == "vmem" and sw & x.r and have < 5:
                    bad(i, j, 5, have, "valu sgpr->vmem")
                if p.trans and x.kind in ("mfma", "ds", "vmem") and vw & x.r and have < 1:
                    bad(i, j, 1, have, "trans->use")
            if p.kind == "mfma":
                need_v = {(False, 4): 8, (False, 8): 12, (True, 8): 10}[(p.sgemm, p.passes)]
                if x.kind in ("valu", "ds", "vmem") and p.w & (x.r | x.w) and have < need_v:
                    bad(i, j, need_v, have, "mfma D->valu/mem")
                if x.kind == "mfma":
                    if p.w & (x.a | x.b) and have < need_v:
                        bad(i, j, need_v, have, "mfma D->A/B")
                    if p.w & x.c:
                        exact = p.w == x.c and p.op == x.op
                        if not exact:
                            need = 0 if (p.sgemm and not x.sgemm) else (8 if p.sgemm else {4: 6, 8: 10}[p.passes])
                            if have < need:
                                bad(i, j, need, have, "mfma D->C overlap")
                    if p.w & x.w and not (p.w & x.c) and p.op != x.op and have < need_v:
                        bad(i, j, need_v, have, "mfma WAW")
                if x.kind == "valu" and not p.sgemm and p.c & x.w and have < {4: 3, 8: 7}[p.passes]:
                    bad(i, j, {4: 3, 8: 7}[p.passes], have, "mfma C WAR")
            if p.kind == "salu" and ("s", "m0") in p.w and x.kind == "vmem" and x.ldsdma and have < 1:
                bad(i, j, 1, have, "m0->ldsdma")
            if p.kind == "vmem" and getattr(p, "widestore", False) and p.data & x.w and have < 2:
                bad(i, j, 2, have, "store data WAR")
            have += p.states
            j -= 1
    return probs


def fix_hazards(lines, name="", verbose=False):
    lines = list(lines)
    total = 0
    while True:
        short = {}
        probs = lint(lines, name, short)
        if probs:
            raise SystemExit("\n".join(probs))
        if not short:
            break
        k = min(short)
        n = short[k]
        if verbose:
            print("%s: nop %d before: %s" % (name, n, lines[k]))
        total += n
        lines.insert(k, "s_nop %d" % (n - 1))
    assert not lint(lines, name)
    if verbose:
        print("%s: %d wait states inserted" % (name, total))
    return lines
```

```python
import sys, argparse, struct
sys.path.insert(0, "tools")
from asmlib import Emit, v, acc, s, fix_hazards

NAME = "standalone__detection_seg_dino__vision"
HDR = open("/code/%s.s.ref" % NAME).read().split("; Override launch")[0].rstrip()


def f2u(x):
    return struct.unpack("<I", struct.pack("<f", x))[0]


def fl(x):
    return "0x%08x" % f2u(x)


LOG2E = 1.4426950408889634
QSCALE = 192 ** -0.5 * LOG2E * 192.0
EPSQ_VAL = 1e-5 * 192 * 192
THR = 24.0

WS_QK, WS_WVO, WS_PART, WS_STAMP, WS_SIZE = 0, 8192, 131072, 4 << 20, 8 << 20
L_F, L_R0, L_R1, L_SP, L_XA, L_XB, L_ST, L_END = 0, 24576, 73728, 122880, 147456, 153600, 159744, 163840

S_WAVE = 3
S_Q, S_F0, S_F1, S_WQ, S_WK, S_WV, S_WO, S_OUT, S_DBG, S_WS = 4, 6, 8, 10, 12, 14, 16, 18, 20, 22
R_F0, R_F1, R_WS, R_A, R_B, R_C = 24, 28, 32, 64, 68, 72
S_OF, S_OR, S_LF, S_LR0, S_LR1 = 36, 37, 40, 41, 42
S_MASK = 44
S_THR, S_RET, S_T0, S_T1, S_T2, S_T3 = 52, 54, 56, 57, 58, 59
S_STAMP = 76

T = 1
V_DF, V_DR = 16, 22
V_FA, V_FT, V_XA, V_XT = 34, 36, 40, 44
V_ONES, V_EPS = 52, 56
V_C192, V_CQ, V_NEGM, V_L, V_PM, V_LANE16 = 60, 61, 62, 63, 64, 65
V_PFB, V_PF, V_P = 66, 68, 72
V_S1, V_M1, V_G1 = 76, 80, 84
V_TILE = [88, 104]
V_SS = [120, 124]
V_RS = [128, 132]
V_QK, V_W = 136, 160
V_JUNK = 232
V_E = 236
A_O, A_FA, A_FT, A_XA, A_XT = 0, 48, 72, 96, 144


def srd(e, r, base, size, add=None):
    if add is None:
        e("s_mov_b32 %s, %s" % (s(r), s(base)))
        e("s_mov_b32 %s, %s" % (s(r + 1), s(base + 1)))
    else:
        e("s_add_u32 %s, %s, %s" % (s(r), s(base), add))
        e("s_addc_u32 %s, %s, 0" % (s(r + 1), s(base + 1)))
    e("s_mov_b32 %s, %d" % (s(r + 2), size))
    e("s_mov_b32 %s, 0x20000" % s(r + 3))


def weave(e, mfmas, fillers, start=0, per_gap=2):
    fillers = list(fillers)
    for i, m in enumerate(mfmas):
        m()
        if i >= start:
            budget = per_gap
            while fillers and fillers[0][1] <= budget:
                fn, c = fillers.pop(0)
                fn()
                budget -= c
    return fillers


def flush(fillers):
    for fn, _ in fillers:
        fn()


def I(e, text, cost=1):
    return (lambda: e(text), cost)


class Gen:
    def __init__(self, args):
        self.a = args
        self.pol = args.pol
        self.nstamp = 0
        self.inner = False

    def stamp(self, e, idx):
        if self.a.stamps:
            e("%s %s" % ("s_memtime" if self.a.stamps == "cyc" and idx not in (0, 10) else "s_memrealtime", s(S_STAMP + 2 * idx, 2)))
            e.smem = True
            self.nstamp = max(self.nstamp, idx + 1)

    def mfma(self, e, d, a, b, c):
        e("v_mfma_f32_16x16x32_bf16 %s, %s, %s, %s" % (d, a, b, c))

    def lane_ids(self, e):
        e("v_lshrrev_b32 %s, 6, v0" % v(T))
        e("v_and_b32 v0, 63, v0")
        e("v_readfirstlane_b32 %s, %s" % (s(S_WAVE), v(T)))
        e("v_lshlrev_b32 %s, 4, v0" % v(V_LANE16))

    def dma_f_offsets(self, e):
        e("v_lshrrev_b32 %s, 2, v0" % v(T))
        e("v_and_b32 %s, 14, %s" % (v(T), v(T)))
        for e0 in range(3):
            k = sum((((8 * e0 + h) // 3) >> 1) << (2 * h) for h in range(8))
            e("s_mov_b32 %s, 0x%x" % (s(S_T0), k))
            e("v_bfe_u32 %s, %s, %s, 2" % (v(T + 1), s(S_T0), v(T)))
            e("v_lshlrev_b32 %s, 5, %s" % (v(T + 1), v(T + 1)))
            e("v_xor_b32 %s, %s, %s" % (v(V_DF + e0), v(V_LANE16), v(T + 1)))
        e("v_xor_b32 %s, 16, %s" % (v(V_DF + 3), v(V_DF)))
        e("v_xor_b32 %s, 0x1010, %s" % (v(V_DF + 4), v(V_DF + 1)))
        e("v_xor_b32 %s, 0x1010, %s" % (v(V_DF + 5), v(V_DF + 2)))

    def dma_r_offsets(self, e):
        e("v_lshrrev_b32 %s, 3, v0" % v(T))
        e("v_and_b32 %s, 6, %s" % (v(T), v(T)))
        for e0 in range(3):
            k = sum(((4 * e0 + g) // 3) << (2 * g) for g in range(4))
            e("s_mov_b32 %s, 0x%x" % (s(S_T0), k))
            e("v_bfe_u32 %s, %s, %s, 2" % (v(T + 1), s(S_T0), v(T)))
            e("v_lshlrev_b32 %s, 5, %s" % (v(T + 1), v(T + 1)))
            e("v_xor_b32 %s, %s, %s" % (v(V_DR + e0), v(V_LANE16), v(T + 1)))
        for ee in range(3, 12):
            c = [0, 128, 16, 144][ee // 3] | ((ee - ee % 4) * 1024)
            e("v_xor_b32 %s, 0x%x, %s" % (v(V_DR + ee), c, v(V_DR + ee % 3)))

    def lds_read_addrs(self, e):
        i_, g_, pg, rho, lo, t0, t1 = T, T + 1, T + 2, T + 3, T + 4, T + 5, T + 6
        e("v_and_b32 %s, 15, v0" % v(i_))
        e("v_lshrrev_b32 %s, 4, v0" % v(g_))
        e("v_lshrrev_b32 %s, 1, %s" % (v(t0), v(g_)))
        e("v_and_b32 %s, 1, %s" % (v(pg), v(g_)))
        e("v_lshl_or_b32 %s, %s, 1, %s" % (v(pg), v(pg), v(t0)))
        e("v_lshrrev_b32 %s, 2, v0" % v(rho))
        e("v_bfe_u32 %s, v0, 1, 1" % v(lo))
        e("v_lshrrev_b32 %s, 3, %s" % (v(t0), v(i_)))
        e("v_and_or_b32 %s, %s, 6, %s" % (v(t0), v(i_), v(t0)))
        e("v_xor_b32 %s, %s, %s" % (v(t0), v(t0), v(pg)))
        e("v_mul_u32_u24 %s, 384, %s" % (v(t1), v(i_)))
        e("v_lshl_add_u32 %s, %s, 4, %s" % (v(t0), v(t0), v(t1)))
        e("v_add_u32 %s, %s, %s" % (v(V_FA), s(S_LF), v(t0)))
        e("v_xor_b32 %s, 64, %s" % (v(V_FA + 1), v(V_FA)))
        e("v_lshrrev_b32 %s, 3, %s" % (v(t0), v(i_)))
        e("v_and_b32 %s, 7, %s" % (v(t1), v(i_)))
        e("v_lshl_or_b32 %s, %s, 1, %s" % (v(t0), v(t1), v(t0)))
        e("v_xor_b32 %s, %s, %s" % (v(t0), v(t0), v(pg)))
        e("v_mul_u32_u24 %s, 768, %s" % (v(t1), v(i_)))
        e("v_lshl_add_u32 %s, %s, 4, %s" % (v(t0), v(t0), v(t1)))
        e("v_add_u32 %s, %s, %s" % (v(V_XA), s(S_LR0), v(t0)))
        for x in range(1, 4):
            e("v_xor_b32 %s, 0x%x, %s" % (v(V_XA + x), x * 64, v(V_XA)))
        e("v_and_b32 %s, 1, v0" % v(g_))
        e("v_lshlrev_b32 %s, 3, %s" % (v(g_), v(g_)))
        e("v_lshrrev_b32 %s, 3, %s" % (v(t0), v(rho)))
        e("v_and_or_b32 %s, %s, 6, %s" % (v(t0), v(rho), v(t0)))
        e("v_xor_b32 %s, %s, %s" % (v(t0), v(t0), v(lo)))
        e("v_mul_u32_u24 %s, 384, %s" % (v(t1), v(rho)))
        e("v_lshl_add_u32 %s, %s, 4, %s" % (v(t0), v(t0), v(t1)))
        e("v_add3_u32 %s, %s, %s, %s" % (v(V_FT), s(S_LF), v(t0), v(g_)))
        for x in range(1, 4):
            e("v_xor_b32 %s, 0x%x, %s" % (v(V_FT + x), x * 32, v(V_FT)))
        e("v_lshrrev_b32 %s, 3, %s" % (v(t0), v(rho)))
        e("v_and_b32 %s, 7, %s" % (v(t1), v(rho)))
        e("v_lshl_or_b32 %s, %s, 1, %s" % (v(t0), v(t1), v(t0)))
        e("v_xor_b32 %s, %s, %s" % (v(t0), v(t0), v(lo)))
        e("v_mul_u32_u24 %s, 768, %s" % (v(t1), v(rho)))
        e("v_lshl_add_u32 %s, %s, 4, %s" % (v(t0), v(t0), v(t1)))
        e("v_add3_u32 %s, %s, %s, %s" % (v(V_XT), s(S_LR0), v(t0), v(g_)))
        for x in range(1, 8):
            e("v_xor_b32 %s, 0x%x, %s" % (v(V_XT + x), x * 32, v(V_XT)))

    def consts(self, e):
        for r in range(4):
            e("v_mov_b32 %s, 0x3f803f80" % v(V_ONES + r))
            e("v_mov_b32 %s, %s" % (v(V_EPS + r), fl(EPSQ_VAL)))
            e("s_mov_b32 %s, 0x%x" % (s(S_MASK + 2 * r), (1 + (1 << 20)) << r))
            e("s_mov_b32 %s, 0x%x" % (s(S_MASK + 2 * r + 1), ((1 << 8) + (1 << 28)) << r))
        e("v_mov_b32 %s, %s" % (v(V_C192), fl(192.0)))

    def xch_write_addr(self, e, dst, base):
        e("v_lshrrev_b32 %s, 5, v0" % v(T))
        e("v_lshlrev_b32 %s, 8, %s" % (v(T), v(T)))
        e("v_and_b32 %s, 15, v0" % v(T + 1))
        e("v_lshl_add_u32 %s, %s, 4, %s" % (v(T), v(T + 1), v(T)))
        e("v_bfe_u32 %s, v0, 4, 1" % v(T + 1))
        e("v_lshl_add_u32 %s, %s, 3, %s" % (v(T), v(T + 1), v(T)))
        e("s_mul_i32 %s, %s, 1536" % (s(S_T0), s(S_WAVE)))
        e("s_add_u32 %s, %s, %d" % (s(S_T0), s(S_T0), base))
        e("v_add_u32 %s, %s, %s" % (v(dst), s(S_T0), v(T)))

    def diag(self, e, g, h, out):
        f = []
        for r in range(4):
            if h is not None:
                f.append(I(e, "v_fma_f32 %s, %s, 2.0, %s" % (v(g + r), v(h + r), v(g + r))))
        f.append(I(e, "v_cndmask_b32 %s, 0, %s, %s" % (v(out), v(g), s(S_MASK, 2))))
        for r in range(1, 4):
            f.append(I(e, "v_cndmask_b32 %s, %s, %s, %s" % (v(out), v(out), v(g + r), s(S_MASK + 2 * r, 2))))
        return f

    def dma_list(self, e, kind, k):
        out = []
        if kind == "F":
            n, voff, rs, lb, so, add = 6, V_DF, R_F1, S_LF, S_OF, k * 24576
        else:
            rho = int(kind[1])
            n, voff, rs, lb, so, add = 12, V_DR, R_F0, (S_LR0, S_LR1)[rho], S_OR, k * 49152 + rho * 196608
        sreg = {"F": S_T1, "R0": S_T2, "R1": S_T3}[kind]

        def one(ee):
            def fn():
                if ee % 4 == 0:
                    e("s_add_u32 m0, %s, %d" % (s(lb), ee * 1024))
                if ee == 0:
                    e("s_add_u32 %s, %s, %d" % (s(sreg), s(so), add))
                e.vmem((kind, k), "buffer_load_dwordx4 %s, %s, %s offen offset:%d %s lds" % (
                    v(voff + ee), s(rs, 4), s(sreg), (ee % 4) * 1024, self.pol))
            return fn
        for ee in range(n):
            out.append(one(ee))
        return out

    def issue(self, e, kind, k, extra):
        if self.a.bar == "all" and (kind, k) != ("F", 0) or self.a.bar == "r" and kind != "F" \
                or self.a.bar == "late" and k >= 2 or self.a.bar == "f" and kind == "F" and k:
            e("s_barrier")
        for j, fn in enumerate(self.dma_list(e, kind, k)):
            fn()
            if j % 2 == 1 and extra:
                extra.pop(0)()

    ITEMS = [(kind, k) for k in range(4) for kind in ("F", "R0", "R1")]

    def push(self, e, n, where, extra):
        pol = self.a.push
        if pol == "mid3":
            tgt = n + 3 if where == "mid" else None
        elif pol == "end3":
            tgt = n + 3 if where == "end" else None
        elif pol == "end2":
            tgt = n + 2 if where == "end" else None
        elif pol == "mid2":
            tgt = n + 2 if where == "mid" else None
        elif pol == "end3l":
            tgt = (n + 3 if n < 8 else (11 if n == 9 else None)) if where == "end" else None
        elif pol == "mid3l":
            if n < 7:
                tgt = n + 3 if where == "mid" else None
            else:
                tgt = {7: 10, 9: 11}.get(n) if where == "end" else None
        elif pol == "mixf":
            if where != "end":
                tgt = None
            else:
                tgt = {0: n + 2, 1: n + 3, 2: None}[n % 3]
                if n % 3 == 1 and n + 2 < 12:
                    self.issue(e, *self.ITEMS[n + 2], extra)
        if tgt is not None and tgt < 12:
            self.issue(e, *self.ITEMS[tgt], extra)

    def phase_f(self, e, k, extra):
        e.wait_vm(("F", k))
        for st in range(6):
            e.lds(("fa", st), "ds_read_b128 %s, %s offset:%d" % (acc(A_FA + 4 * st, 4), v(V_FA + (st & 1)), (st >> 1) * 128))
        tr = []
        for n in range(12):
            tr.append((lambda n=n: e.lds("ft", "ds_read_b64_tr_b16 %s, %s offset:%d" % (
                acc(A_FT + 2 * n, 2), v(V_FT + (n & 3)), (n >> 2) * 128)), 1))
        ms = []
        for st in range(6):
            fa = acc(A_FA + 4 * st, 4)

            def g(st=st, fa=fa):
                e.wait_ds(("fa", st))
                self.mfma(e, v(V_G1, 4), fa, fa, v(V_G1, 4) if st else "0")
            ms.append(g)
            ms.append(lambda st=st, fa=fa: self.mfma(e, v(V_M1, 4), fa, v(V_ONES, 4), v(V_M1, 4) if st else "0"))
        flush(weave(e, ms, tr, 0, 2))
        e.wait_ds_all()
        self.push(e, 3 * k, "mid", extra)
        if k == 0:
            self.finish_qk(e)
        for st in range(6):
            self.mfma(e, v(V_S1, 4), acc(A_FA + 4 * st, 4), v(V_QK + 4 * st, 4), v(V_S1, 4) if st else "0")
        self.push(e, 3 * k, "end", extra)

    def soft_a(self, e, t):
        S_, M_ = V_TILE[t], V_TILE[t] + 4
        f = []
        for r in range(4):
            f.append(I(e, "v_fma_f32 %s, -%s, %s, %s" % (v(V_RS[t] + r), v(M_ + r), v(M_ + r), v(V_SS[t] + r))))
        for r in range(4):
            f.append(I(e, "v_max_f32 %s, %s, %s" % (v(V_RS[t] + r), v(V_RS[t] + r), v(V_EPS))))
        for r in range(4):
            f.append(I(e, "v_rsq_f32 %s, %s" % (v(V_RS[t] + r), v(V_RS[t] + r)), 2))
        return f

    def soft_b(self, e, t, first):
        S_, M_ = V_TILE[t], V_TILE[t] + 4
        f = []
        for r in range(4):
            f.append(I(e, "v_fma_f32 %s, -%s, %s, %s" % (v(S_ + r), v(M_ + r), v(V_CQ), v(S_ + r))))
        for r in range(4):
            if first:
                f.append(I(e, "v_mul_f32 %s, %s, %s" % (v(S_ + r), v(S_ + r), v(V_RS[t] + r))))
            else:
                f.append(I(e, "v_fma_f32 %s, %s, %s, %s" % (v(S_ + r), v(S_ + r), v(V_RS[t] + r), v(V_NEGM))))
        f.append(I(e, "v_max3_f32 %s, %s, %s, %s" % (v(T), v(S_), v(S_ + 1), v(S_ + 2))))
        f.append(I(e, "v_max_f32 %s, %s, %s" % (v(T), v(T), v(S_ + 3))))
        if first:
            for sw in ("32", "16"):
                f.append(I(e, "v_mov_b32 %s, %s" % (v(T + 1), v(T))))
                f.append(I(e, "v_permlane%s_swap_b32 %s, %s" % (sw, v(T), v(T + 1))))
                f.append(I(e, "v_max_f32 %s, %s, %s" % (v(T), v(T), v(T + 1))))
            f.append(I(e, "v_sub_f32 %s, 0, %s" % (v(V_NEGM), v(T))))
            for r in range(4):
                f.append(I(e, "v_sub_f32 %s, %s, %s" % (v(S_ + r), v(S_ + r), v(T))))
        else:
            site = len(self.sites)
            self.sites.append(t)

            def chk():
                e("v_cmp_lt_f32 vcc, %s, %s" % (s(S_THR), v(T)))
                e("s_cbranch_vccnz L_site%d" % site)
                e("L_back%d:" % site)
            f.append((chk, 2))
        return f

    def soft_c(self, e, t, first, rho):
        S_, M_ = V_TILE[t], V_TILE[t] + 4
        P_ = V_TILE[t] + 8
        crit, late = [], []
        for r in range(4):
            crit.append(I(e, "v_exp_f32 %s, %s" % (v(P_ + r), v(S_ + r)), 2))
        for r in range(4):
            crit.append(I(e, "v_mul_f32 %s, %s, %s" % (v(S_ + r), v(P_ + r), v(V_RS[t] + r))))
        for r in range(4):
            if first and r == 0:
                late.append(I(e, "v_mov_b32 %s, %s" % (v(V_L), v(P_))))
                late.append(I(e, "v_mul_f32 %s, %s, %s" % (v(V_PM), v(S_), v(M_))))
            else:
                late.append(I(e, "v_add_f32 %s, %s, %s" % (v(V_L), v(V_L), v(P_ + r))))
                late.append(I(e, "v_fmac_f32 %s, %s, %s" % (v(V_PM), v(S_ + r), v(M_ + r))))
        for r in range(4):
            if rho == 0 and t == 0:
                late.append(I(e, "v_mov_b32 %s, %s" % (v(V_PF + r), v(S_ + r))))
            else:
                late.append(I(e, "v_add_f32 %s, %s, %s" % (v(V_PF + r), v(V_PF + r), v(S_ + r))))
        return crit, late

    def phase_r(self, e, k, rho, extra):
        kind = "R%d" % rho
        base = rho * (L_R1 - L_R0)
        first = (k == 0 and rho == 0)
        e.wait_vm((kind, k))
        for t in range(2):
            for st in range(6):
                v0 = 24 * t + 4 * st
                e.lds(("xa", t, st), "ds_read_b128 %s, %s offset:%d" % (
                    acc(A_XA + 24 * t + 4 * st, 4), v(V_XA + ((v0 & 12) >> 2)), (v0 & ~15) * 16 + base))
        tr = []
        for n in range(12):
            for t in range(2):
                vv = 24 * t + 2 * n
                tr.append((lambda n=n, t=t, vv=vv: e.lds("xt", "ds_read_b64_tr_b16 %s, %s offset:%d" % (
                    acc(A_XT + 4 * n + 2 * t, 2), v(V_XT + ((vv & 14) >> 1)), (vv & ~15) * 16 + base)), 1))

        early = first and hasattr(self, "qk_get")
        if early:
            flush(tr)
            tr = []
            e.wait_ds_all()
            self.job_compute(e)
            self.push(e, 1, "mid", extra)
            self.qk_get(e)
            self.stamp(e, 3)

        def gh(t):
            ms = []
            G_, H_ = V_TILE[t] + 8, V_TILE[t] + 12
            for st in range(6):
                xa = acc(A_XA + 24 * t + 4 * st, 4)

                def g(st=st, xa=xa):
                    e.wait_ds(("xa", t, st))
                    self.mfma(e, v(G_, 4), xa, xa, v(G_ if st else V_G1, 4))
                ms.append(g)
                ms.append(lambda st=st, xa=xa: self.mfma(e, v(H_, 4), xa, acc(A_FA + 4 * st, 4), v(H_, 4) if st else "0"))
            return ms

        def msq(t):
            S_, M_ = V_TILE[t], V_TILE[t] + 4
            ms = []
            for st in range(6):
                ms.append(lambda st=st: self.mfma(e, v(M_, 4), acc(A_XA + 24 * t + 4 * st, 4), v(V_ONES, 4), v(M_ if st else V_M1, 4)))
            for st in range(6):
                ms.append(lambda st=st: self.mfma(e, v(S_, 4), acc(A_XA + 24 * t + 4 * st, 4), v(V_QK + 4 * st, 4), v(S_ if st else V_S1, 4)))
            return ms

        def ssm(t):
            return (lambda: e("v_mfma_f32_16x16x4_f32 %s, %s, %s, %s" % (v(V_SS[t], 4), v(T + 2 + t), v(V_C192), v(V_EPS, 4))), 2)

        def dg(t):
            return self.diag(e, V_TILE[t] + 8, V_TILE[t] + 12, T + 2 + t)

        left = weave(e, gh(0), tr, 0, 2)
        left = weave(e, msq(0), left + [(lambda: None, 0)] + dg(0) + [I(e, "s_nop 0"), I(e, "s_nop 0"), ssm(0)], 3 if not left else 0, 2)
        flush(left)
        e.wait_ds_all()
        if self.inner:
            self.stamp(e, 3)
        if not early:
            self.push(e, 3 * k + 1 + rho, "mid", extra)
        c0, l0 = self.soft_c(e, 0, first, rho)
        q0 = self.soft_a(e, 0) + self.soft_b(e, 0, first) + c0
        left = weave(e, gh(1), q0, 3, 2)
        nl = sum(c for _, c in left)
        pad = l0[:max(0, 8 - nl)]
        rest = l0[len(pad):]
        left = weave(e, msq(1), left + pad + dg(1) + rest[:2] + [ssm(1)] + rest[2:], 0, 2)
        flush(left)
        if self.inner:
            self.stamp(e, 4)
        c1, l1 = self.soft_c(e, 1, False, rho)
        flush(self.soft_a(e, 1) + self.soft_b(e, 1, False) + c1)
        for t in range(2):
            S_ = V_TILE[t]
            e("v_cvt_pk_bf16_f32 %s, %s, %s" % (v(V_P + 2 * t), v(S_), v(S_ + 1)))
            e("v_cvt_pk_bf16_f32 %s, %s, %s" % (v(V_P + 2 * t + 1), v(S_ + 2), v(S_ + 3)))
        if rho == 1:
            l1 = l1[8:] + [I(e, "v_cvt_pk_bf16_f32 %s, %s, %s" % (v(V_PFB), v(V_PF), v(V_PF + 1))),
                           I(e, "v_cvt_pk_bf16_f32 %s, %s, %s" % (v(V_PFB + 1), v(V_PF + 2), v(V_PF + 3)))] + l1[:8]
        if self.inner:
            self.stamp(e, 5)
        ms = [(lambda n=n: self.mfma(e, acc(A_O + 4 * n, 4), acc(A_XT + 4 * n, 4), v(V_P, 4),
                                     "0" if first else acc(A_O + 4 * n, 4))) for n in range(12)]
        flush(weave(e, ms, l1, 0, 2))
        if self.inner:
            self.stamp(e, 6)
        if rho == 1:
            for n in range(12):
                e("v_mfma_f32_16x16x16_bf16 %s, %s, %s, %s" % (
                    acc(A_O + 4 * n, 4), acc(A_FT + 2 * n, 2), v(V_PFB, 2), acc(A_O + 4 * n, 4)))
        self.push(e, 3 * k + 1 + rho, "end", extra)

    def rare(self, e):
        for site, t in enumerate(self.sites):
            e("L_site%d:" % site)
            e("s_call_b64 %s, L_rare%d" % (s(S_RET, 2), t))
            e("s_branch L_back%d" % site)
        for t in range(2):
            r_ = Emit()
            r_("L_rare%d:" % t)
            r_("s_nop 7")
            r_("s_nop 7")
            for sw in ("32", "16"):
                r_("v_mov_b32 %s, %s" % (v(T + 1), v(T)))
                r_("v_permlane%s_swap_b32 %s, %s" % (sw, v(T), v(T + 1)))
                r_("v_max_f32 %s, %s, %s" % (v(T), v(T), v(T + 1)))
            r_("v_max_f32 %s, 0, %s" % (v(T), v(T)))
            r_("v_sub_f32 %s, %s, %s" % (v(V_NEGM), v(V_NEGM), v(T)))
            for r in range(4):
                r_("v_sub_f32 %s, %s, %s" % (v(V_TILE[t] + r), v(V_TILE[t] + r), v(T)))
            r_("v_sub_f32 %s, 0, %s" % (v(T), v(T)))
            r_("v_exp_f32 %s, %s" % (v(T), v(T)))
            tgt = [V_L, V_PM] + [V_PF + r for r in range(4)]
            if t == 1:
                tgt += [V_TILE[0] + r for r in range(4)]
            for x in tgt:
                r_("v_mul_f32 %s, %s, %s" % (v(x), v(x), v(T)))
            for n in range(48):
                r_("v_accvgpr_read_b32 %s, %s" % (v(T + 1), acc(A_O + n)))
                r_("v_mul_f32 %s, %s, %s" % (v(T + 1), v(T + 1), v(T)))
                r_("v_accvgpr_write_b32 %s, %s" % (acc(A_O + n), v(T + 1)))
            r_("s_nop 3")
            r_("s_setpc_b64 %s" % s(S_RET, 2))
            for ln in fix_hazards(r_.lines, "rare"):
                e(ln)

    def finish_qk(self, e):
        e.wait_vm("qk")
        for st in range(6):
            self.mfma(e, v(V_SS[0], 4), v(V_ONES, 4), v(V_QK + 4 * st, 4), v(V_SS[0], 4) if st else "0")
        e("v_mul_f32 %s, %s, %s" % (v(V_CQ), fl(1.0 / 192), v(V_SS[0])))

    def epilogue(self, e):
        XW, RD, AR = V_E, V_E + 1, V_E + 2
        ST = 16
        OT = 76
        FV, LS, PS, ONE = 32, 36, 40, 44
        for n in range(12):
            e.lds("x1", "ds_write_b128 %s, %s offset:%d" % (v(AR), acc(A_O + 4 * n, 4), n * 1024))
        e.lds("x1", "ds_write_b128 %s, %s" % (v(AR + 1), v(V_NEGM, 4)))
        e("v_mov_b32 %s, 1.0" % v(ONE))
        e.wait_ds_all()
        e("s_barrier")
        for w in range(4):
            e.lds(("st", w), "ds_read_b128 %s, %s offset:%d" % (v(ST + 4 * w, 4), v(AR + 2), w * 1024))
        for w in range(4):
            for t in range(3):
                e.lds(("o", w), "ds_read_b128 %s, %s offset:%d" % (v(OT + 12 * w + 4 * t, 4), v(RD), w * 12288 + t * 1024))
        e.wait_ds(("st", 3))
        NM = T + 8
        e("v_min3_f32 %s, %s, %s, %s" % (v(NM), v(ST), v(ST + 4), v(ST + 8)))
        e("v_min_f32 %s, %s, %s" % (v(NM), v(NM), v(ST + 12)))
        for w in range(4):
            e("v_sub_f32 %s, %s, %s" % (v(FV + w), v(NM), v(ST + 4 * w)))
        for w in range(4):
            e("v_exp_f32 %s, %s" % (v(FV + w), v(FV + w)))
        e("v_mul_f32 %s, %s, %s" % (v(T), v(FV), v(ST + 1)))
        e("v_mul_f32 %s, %s, %s" % (v(T + 1), v(FV), v(ST + 2)))
        for w in range(1, 4):
            e("v_fmac_f32 %s, %s, %s" % (v(T), v(FV + w), v(ST + 4 * w + 1)))
            e("v_fmac_f32 %s, %s, %s" % (v(T + 1), v(FV + w), v(ST + 4 * w + 2)))
        e.wait_ds(("o", 0))
        for j in range(2):
            e("v_mul_f32 %s, %s, %s" % (v(OT + j), v(OT + j), v(FV)))
        e("v_mfma_f32_16x16x4_f32 %s, %s, %s, 0" % (v(LS, 4), v(ONE), v(T)))
        e("v_mfma_f32_16x16x4_f32 %s, %s, %s, 0" % (v(PS, 4), v(ONE), v(T + 1)))
        for j in range(2, 12):
            e("v_mul_f32 %s, %s, %s" % (v(OT + j), v(OT + j), v(FV)))
        for w in range(1, 4):
            e.wait_ds(("o", w))
            for j in range(12):
                e("v_fmac_f32 %s, %s, %s" % (v(OT + j), v(OT + 12 * w + j), v(FV + w)))
            if w == 1:
                e("v_rcp_f32 %s, %s" % (v(T + 2), v(LS)))
                e("v_log_f32 %s, %s" % (v(T + 3), v(LS)))
            if w == 2:
                e("v_mul_f32 %s, %s, %s" % (v(T + 4), v(V_C192), v(T + 2)))
                e("v_mul_f32 %s, %s, %s" % (v(T + 5), v(PS), v(T + 2)))
                e("v_sub_f32 %s, %s, %s" % (v(T + 3), v(T + 3), v(NM)))
        for j in range(12):
            e("v_fma_f32 %s, %s, %s, -%s" % (v(OT + j), v(OT + j), v(T + 4), v(T + 5)))
        for t in range(3):
            e("v_cvt_pk_bf16_f32 %s, %s, %s" % (v(OT + 12 + 2 * t), v(OT + 4 * t), v(OT + 4 * t + 1)))
            e("v_cvt_pk_bf16_f32 %s, %s, %s" % (v(OT + 13 + 2 * t), v(OT + 4 * t + 2), v(OT + 4 * t + 3)))
            e.lds("x2", "ds_write_b64 %s, %s offset:%d" % (v(XW), v(OT + 12 + 2 * t, 2), t * 512))
        e.wait_vm("wvo")
        e.wait_ds_all()
        e("s_barrier")
        B = V_QK
        for st in range(6):
            e.lds(("b", st), "ds_read_b128 %s, %s offset:%d" % (v(B + 4 * st, 4), v(AR + 3), st * 1024))
        D = 16
        for st in range(6):
            e.wait_ds(("b", st))
            for t in range(3):
                self.mfma(e, v(D + 4 * t, 4), v(V_W + (t * 6 + st) * 4, 4), v(B + 4 * st, 4), v(D + 4 * t, 4) if st else "0")
        self.publish(e, D, T + 3)

    def publish(self, e, D, LAM):
        AR = V_E + 2
        O_ = 32
        e("v_mov_b32 %s, %s" % (v(O_ + 3), v(T + 3)))
        e("v_mov_b32 %s, %s" % (v(O_ + 7), v(T + 3)))
        for j in range(6):
            e("v_cvt_pk_bf16_f32 %s, %s, %s" % (v(O_ + j + j // 3), v(D + 2 * j), v(D + 2 * j + 1)))
        e.vmem("out", "buffer_store_dwordx4 %s, %s, %s, %s offen" % (v(O_, 4), v(AR + 4), s(R_WS, 4), s(S_T0)))
        e.vmem("out", "buffer_store_dwordx4 %s, %s, %s, %s offen offset:64" % (v(O_ + 4, 4), v(AR + 4), s(R_WS, 4), s(S_T0)))

    def epilogue_addrs(self, e):
        XW, RD, AR = V_E, V_E + 1, V_E + 2
        self.xch_write_addr(e, XW, L_XA)
        e("s_mul_i32 %s, %s, 3072" % (s(S_T0), s(S_WAVE)))
        e("s_add_u32 %s, %s, %d" % (s(S_T0), s(S_T0), L_R0))
        e("v_add_u32 %s, %s, %s" % (v(RD), s(S_T0), v(V_LANE16)))
        e("v_add_u32 %s, %s, %s" % (v(AR), s(S_LR0), v(V_LANE16)))
        e("s_lshl_b32 %s, %s, 10" % (s(S_T0), s(S_WAVE)))
        e("v_add_u32 %s, %d, %s" % (v(AR + 2), L_ST, v(V_LANE16)))
        e("v_add_u32 %s, %s, %s" % (v(AR + 1), s(S_T0), v(AR + 2)))
        e("v_add_u32 %s, %d, %s" % (v(AR + 3), L_XA, v(V_LANE16)))
        e("v_and_b32 %s, 15, v0" % v(T))
        e("v_lshlrev_b32 %s, 17, %s" % (v(T), v(T)))
        e("v_and_b32 %s, 48, v0" % v(T + 1))
        e("v_add_u32 %s, %s, %s" % (v(AR + 4), v(T), v(T + 1)))

    def code_prefetch(self, e, start, end):
        e("s_getpc_b64 %s" % s(S_RET, 2))
        e("L_pc_%s:" % start)
        e("v_lshlrev_b32 %s, 7, v0" % v(V_JUNK + 1))
        e("v_min_u32 %s, %s - L_pc_%s - 4, %s" % (v(V_JUNK + 1), end, start, v(V_JUNK + 1)))
        e.vmem("pf", "global_load_dword %s, %s, %s" % (v(V_JUNK), v(V_JUNK + 1), s(S_RET, 2)))

    def write_stamps(self, e):
        if not self.a.stamps:
            return
        n = getattr(self, "nslots", 12)
        e.wait_ds_all()
        e("s_getreg_b32 %s, hwreg(HW_REG_XCC_ID)" % s(S_T1))
        for j in range(n):
            src = s(S_STAMP + 2 * j) if j < self.nstamp else "0"
            if j == n - 1:
                src = s(S_T1)
            src = getattr(self, "slotsrc", {}).get(j, src)
            e("v_mov_b32 %s, %s" % (v(200 + j), src))
        e("s_lshl_b32 %s, s2, 2" % s(S_T1))
        e("s_add_u32 %s, %s, %s" % (s(S_T1), s(S_T1), s(S_WAVE)))
        e("s_mul_i32 %s, %s, %d" % (s(S_T1), s(S_T1), n * 4))
        e("s_add_u32 %s, %s, %d" % (s(S_T1), s(S_T1), WS_STAMP))
        e("v_mov_b32 %s, 0" % v(T))
        e("v_cmp_eq_u32 vcc, 0, v0")
        e("s_and_saveexec_b64 %s, vcc" % s(S_RET, 2))
        for j in range(n // 4):
            e("buffer_store_dwordx4 %s, %s, %s, %s offen offset:%d" % (v(200 + 4 * j, 4), v(T), s(R_WS, 4), s(S_T1), 16 * j))

    def k_main(self):
        e = Emit()
        self.sites = []
        self.nstamp = 0
        e("s_cmp_ge_u32 s2, 256")
        e("s_cbranch_scc1 L_main_end")
        e("s_load_dwordx16 s[4:19], s[0:1], 0")
        e("s_load_dwordx4 s[20:23], s[0:1], 64")
        self.code_prefetch(e, "main", "L_main_codeend")
        self.lane_ids(e)
        self.dma_f_offsets(e)
        self.dma_r_offsets(e)
        e("s_mul_i32 %s, %s, 6144" % (s(S_OF), s(S_WAVE)))
        e("s_mul_i32 %s, %s, 12288" % (s(S_OR), s(S_WAVE)))
        e("s_add_u32 %s, %s, %d" % (s(S_LF), s(S_OF), L_F))
        e("s_add_u32 %s, %s, %d" % (s(S_LR0), s(S_OR), L_R0))
        e("s_add_u32 %s, %s, %d" % (s(S_LR1), s(S_OR), L_R1))
        e("s_mul_i32 %s, s2, 393216" % s(S_T0))
        e("s_mul_i32 %s, s2, 98304" % s(S_T1))
        e("s_waitcnt lgkmcnt(0)")
        srd(e, R_F1, S_F1, 98304, s(S_T1))
        srd(e, R_F0, S_F0, 393216, s(S_T0))
        srd(e, R_WS, S_WS, WS_SIZE)
        self.stamp(e, 0)
        cyc = self.a.stamps == "cyc"
        if cyc:
            self.stamp(e, 1)
        self.issue(e, "F", 0, [])
        e("s_movk_i32 %s, 0x1000" % s(S_T0))
        for st in range(6):
            e.vmem("qk", "buffer_load_dwordx4 %s, %s, %s, %s offen offset:%d" % (
                v(V_QK + 4 * st, 4), v(V_LANE16), s(R_WS, 4), s(S_T0) if st >= 4 else "0", WS_QK + (st % 4) * 1024))
        self.issue(e, "R0", 0, [])
        self.lds_read_addrs(e)
        self.consts(e)
        self.epilogue_addrs(e)
        e("s_mov_b32 %s, %s" % (s(S_THR), fl(THR)))
        if self.a.push not in ("end2", "mid2", "mixf"):
            self.issue(e, "R1", 0, [])
        if not cyc:
            self.stamp(e, 1)
        e("s_mul_i32 %s, %s, 18432" % (s(60), s(S_WAVE)))
        extra = []
        for j in range(18):
            def ld(j=j):
                if j % 4 == 0:
                    e("s_add_u32 %s, %s, %d" % (s(61), s(60), WS_WVO + j * 1024))
                e.vmem("wvo", "buffer_load_dwordx4 %s, %s, %s, %s offen offset:%d" % (
                    v(V_W + 4 * j, 4), v(V_LANE16), s(R_WS, 4), s(61), (j % 4) * 1024))
            extra.append(ld)
        for k in range(4):
            self.phase_f(e, k, extra if k > 0 else [])
            if k == 0 and not cyc:
                self.stamp(e, 2)
            self.phase_r(e, k, 0, extra)
            if k == 3:
                if not cyc:
                    self.stamp(e, 5)
                e.wait_vm(("R1", 3))
                self.stamp(e, 2 if cyc else 6)
            self.inner = cyc and k == 3
            self.phase_r(e, k, 1, extra)
            self.inner = False
            if k in (0, 1) and not cyc:
                self.stamp(e, 3 + k)
        assert not extra
        self.stamp(e, 7)
        e("s_lshl_b32 %s, %s, 15" % (s(S_T0), s(S_WAVE)))
        e("s_lshl_b32 %s, s2, 7" % s(S_T1))
        e("s_add_u32 %s, %s, %s" % (s(S_T0), s(S_T0), s(S_T1)))
        e("s_add_u32 %s, %s, %d" % (s(S_T0), s(S_T0), WS_PART))
        self.epilogue(e)
        self.stamp(e, 8)
        if self.a.stamps:
            e("s_waitcnt vmcnt(0)")
            self.stamp(e, 9)
            self.stamp(e, 10)
        self.write_stamps(e)
        e("L_main_end:")
        e("s_endpgm")
        e.lines = fix_hazards(e.lines, "main", self.a.verbose)
        self.rare(e)
        e("L_main_codeend:")
        return e.lines

    def k_prep(self):
        e = Emit()
        e("s_cmp_ge_u32 s2, 25")
        e("s_cbranch_scc1 L_prep_end")
        e("s_load_dwordx16 s[4:19], s[0:1], 0")
        e("s_load_dwordx4 s[20:23], s[0:1], 64")
        self.lane_ids(e)
        e("s_waitcnt lgkmcnt(0)")
        srd(e, R_WS, S_WS, WS_SIZE)
        e("s_cmp_eq_u32 s2, 24")
        e("s_cbranch_scc1 L_prep_qk")
        e("s_cmp_lg_u32 %s, 0" % s(S_WAVE))
        e("s_cbranch_scc1 L_prep_end")
        head = e.lines
        a = Emit()
        self.wvo_role(a)
        a("s_endpgm")
        b = Emit()
        b("L_prep_qk:")
        self.qk_role(b)
        b("L_prep_end:")
        b("s_endpgm")
        return fix_hazards(head + a.lines, "prep_wvo", self.a.verbose) + fix_hazards(b.lines, "prep_qk", self.a.verbose)

    def wvo_role(self, e):
        SW, SS_ = 62, 63
        e("s_mul_i32 %s, s2, 43" % s(SW))
        e("s_lshr_b32 %s, %s, 8" % (s(SW), s(SW)))
        e("s_mul_i32 %s, %s, 6" % (s(S_T0), s(SW)))
        e("s_sub_u32 %s, s2, %s" % (s(SS_), s(S_T0)))
        srd(e, R_A, S_WV, 73728)
        srd(e, R_B, S_WO, 73728)
        DO, WA, AV, BF, D = 16, 20, 184, 76, 160
        for e0 in range(3):
            e("v_add_u32 %s, %d, v0" % (v(T), 64 * e0))
            e("v_mul_u32_u24 %s, 10923, %s" % (v(T), v(T)))
            e("v_lshrrev_b32 %s, 16, %s" % (v(T), v(T)))
            e("v_mul_u32_u24 %s, 288, %s" % (v(T), v(T)))
            e("v_add_u32 %s, %s, %s" % (v(DO + e0), v(T), v(V_LANE16)))
        e("s_mul_i32 %s, %s, 96" % (s(S_T1), s(SW)))
        for j in range(18):
            if j % 3 == 0:
                e("s_mov_b32 m0, %d" % (L_SP + j * 1024))
                if j:
                    e("s_add_u32 %s, %s, 12288" % (s(S_T1), s(S_T1)))
                else:
                    e("s_nop 0")
            e.vmem("wo", "buffer_load_dwordx4 %s, %s, %s offen offset:%d lds" % (v(DO + j % 3), s(R_B, 4), s(S_T1), (j % 3) * 1024))
        e("v_bfe_u32 %s, v0, 2, 2" % v(T))
        e("v_and_b32 %s, 3, v0" % v(T + 1))
        e("v_lshl_add_u32 %s, %s, 3, %s" % (v(T), v(T), v(T + 1)))
        e("v_mul_u32_u24 %s, 384, %s" % (v(T), v(T)))
        e("v_and_b32 %s, 48, v0" % v(T + 1))
        e("v_add_u32 %s, %s, %s" % (v(WA), v(T), v(T + 1)))
        e("s_mul_i32 %s, %s, 12288" % (s(S_T2), s(SS_)))
        for h in range(2):
            for k in range(6):
                e.vmem("wv", "buffer_load_dwordx4 %s, %s, %s, %s offen offset:%d" % (
                    v(AV + (h * 6 + k) * 4, 4), v(WA), s(R_A, 4), s(S_T2), h * 1536 + k * 64))
        e("v_lshrrev_b32 %s, 4, v0" % v(T))
        e("v_bfe_u32 %s, v0, 2, 2" % v(T + 1))
        e("v_lshl_add_u32 %s, %s, 3, %s" % (v(T), v(T), v(T + 1)))
        e("v_mul_u32_u24 %s, 96, %s" % (v(T), v(T)))
        e("v_and_b32 %s, 3, v0" % v(T + 1))
        e("v_mul_u32_u24 %s, 24, %s" % (v(T + 1), v(T + 1)))
        e("v_add_u32 %s, %s, %s" % (v(T), v(T), v(T + 1)))
        e("v_add_u32 %s, %d, %s" % (v(WA + 1), L_SP, v(T)))
        e.wait_vm("wo")
        for t in range(3):
            for k in range(6):
                for h in range(2):
                    e.lds(("b", t, k), "ds_read_b64_tr_b16 %s, %s offset:%d" % (
                        v(BF + (t * 6 + k) * 4 + 2 * h, 2), v(WA + 1), (32 * k + 4 * h) * 96 + 8 * t))
        e.wait_vm("wv")
        for t in range(3):
            for k in range(6):
                e.wait_ds(("b", t, k))
                for h in range(2):
                    d = D + (t * 2 + h) * 4
                    self.mfma(e, v(d, 4), v(AV + (h * 6 + k) * 4, 4), v(BF + (t * 6 + k) * 4, 4), v(d, 4) if k else "0")
        e("s_mul_i32 %s, %s, 18432" % (s(S_T0), s(SW)))
        e("s_lshl_b32 %s, %s, 10" % (s(S_T1), s(SS_)))
        e("s_add_u32 %s, %s, %s" % (s(S_T0), s(S_T0), s(S_T1)))
        e("s_add_u32 %s, %s, %d" % (s(S_T0), s(S_T0), WS_WVO))
        for t in range(3):
            for j in range(4):
                e("v_cvt_pk_bf16_f32 %s, %s, %s" % (v(AV + 4 * t + j), v(D + t * 8 + 2 * j), v(D + t * 8 + 2 * j + 1)))
            e.vmem("st", "buffer_store_dwordx4 %s, %s, %s, %s offen" % (v(AV + 4 * t, 4), v(V_LANE16), s(R_WS, 4), s(S_T0)))
            if t < 2:
                e("s_add_u32 %s, %s, 6144" % (s(S_T0), s(S_T0)))

    def qk_role(self, e):
        QF, AF, KF, D, CS, XW, RA = 136, 160, 76, 16, 28, 40, 44
        srd(e, R_A, S_WQ, 73728)
        srd(e, R_B, S_WK, 73728)
        srd(e, R_C, S_Q, 6144)
        self.dma_f_offsets(e)
        e("s_mul_i32 %s, %s, 18432" % (s(S_T1), s(S_WAVE)))
        for j in range(18):
            ee = j % 6
            if ee == 0 and j:
                e("s_add_u32 %s, %s, 6144" % (s(S_T1), s(S_T1)))
            if ee % 4 == 0:
                e("s_add_u32 m0, %s, %d" % (s(S_T1), L_R1 + ee * 1024))
                e("s_nop 0")
            e.vmem("wq", "buffer_load_dwordx4 %s, %s, %s offen offset:%d lds" % (v(V_DF + ee), s(R_A, 4), s(S_T1), (ee % 4) * 1024))
        e("v_and_b32 %s, 15, v0" % v(T))
        e("v_mul_u32_u24 %s, 384, %s" % (v(T), v(T)))
        e("v_and_b32 %s, 48, v0" % v(T + 1))
        e("v_add_u32 %s, %s, %s" % (v(RA), v(T), v(T + 1)))
        for k in range(6):
            e.vmem("q", "buffer_load_dwordx4 %s, %s, %s, 0 offen offset:%d" % (v(QF + 4 * k, 4), v(RA), s(R_C, 4), 64 * k))
        e("s_mul_i32 %s, %s, 18432" % (s(S_T1), s(S_WAVE)))
        for t in range(3):
            for k in range(6):
                e.vmem("wk", "buffer_load_dwordx4 %s, %s, %s, %s offen offset:%d" % (
                    acc(KF + (t * 6 + k) * 4, 4), v(RA), s(R_B, 4), s(S_T1), 64 * k))
            if t < 2:
                e("s_add_u32 %s, %s, 6144" % (s(S_T1), s(S_T1)))
        self.consts(e)
        self.xch_write_addr(e, XW, L_XA)
        TA = 46
        e("v_lshrrev_b32 %s, 4, v0" % v(T))
        e("v_bfe_u32 %s, v0, 2, 2" % v(T + 1))
        e("v_lshl_add_u32 %s, %s, 3, %s" % (v(T + 2), v(T), v(T + 1)))
        e("v_mul_u32_u24 %s, 384, %s" % (v(T + 2), v(T + 2)))
        e("v_and_b32 %s, 1, v0" % v(T + 3))
        e("v_lshl_add_u32 %s, %s, 3, %s" % (v(T + 2), v(T + 3), v(T + 2)))
        e("v_add_u32 %s, %d, %s" % (v(T + 2), L_R1, v(T + 2)))
        e("v_and_b32 %s, 2, %s" % (v(T + 1), v(T + 1)))
        e("v_and_or_b32 %s, %s, 1, %s" % (v(T + 1), v(T), v(T + 1)))
        e("v_bfe_u32 %s, v0, 1, 1" % v(T + 3))
        e("v_xor_b32 %s, %s, %s" % (v(T + 1), v(T + 1), v(T + 3)))
        e("s_mul_i32 %s, %s, 6" % (s(S_T0), s(S_WAVE)))
        for t in range(3):
            e("s_add_u32 %s, %s, %d" % (s(S_T1), s(S_T0), 2 * t))
            e("v_xor_b32 %s, %s, %s" % (v(T + 3), s(S_T1), v(T + 1)))
            e("v_lshl_add_u32 %s, %s, 4, %s" % (v(TA + 2 * t), v(T + 3), v(T + 2)))
            e("v_xor_b32 %s, 64, %s" % (v(TA + 2 * t + 1), v(TA + 2 * t)))
        e.wait_vm("q")
        G_, M_, SQ = 88, 92, 96
        for k in range(6):
            self.mfma(e, v(G_, 4), v(QF + 4 * k, 4), v(QF + 4 * k, 4), v(G_, 4) if k else "0")
            self.mfma(e, v(M_, 4), v(V_ONES, 4), v(QF + 4 * k, 4), v(M_, 4) if k else "0")
        e("s_barrier")
        for t in range(3):
            for k in range(6):
                for h in range(2):
                    e.lds(("a", t, k), "ds_read_b64_tr_b16 %s, %s offset:%d" % (
                        v(AF + (t * 6 + k) * 4 + 2 * h, 2), v(TA + 2 * t + h), 12288 * k + 1536 * h))
        flush(self.diag(e, G_, None, T + 2))
        e("v_mfma_f32_16x16x4_f32 %s, %s, %s, %s" % (v(SQ, 4), v(V_C192), v(T + 2), v(V_EPS, 4)))
        for t in range(3):
            for k in range(6):
                e.wait_ds(("a", t, k))
                af = v(AF + (t * 6 + k) * 4, 4)
                self.mfma(e, v(D + 4 * t, 4), af, v(QF + 4 * k, 4), v(D + 4 * t, 4) if k else "0")
                self.mfma(e, v(CS + 4 * t, 4), af, v(V_ONES, 4), v(CS + 4 * t, 4) if k else "0")
        e("v_fma_f32 %s, -%s, %s, %s" % (v(T + 4), v(M_), v(M_), v(SQ)))
        e("v_max_f32 %s, %s, %s" % (v(T + 4), v(T + 4), v(V_EPS)))
        e("v_rsq_f32 %s, %s" % (v(T + 4), v(T + 4)))
        e("v_mul_f32 %s, %s, %s" % (v(T + 5), fl(1.0 / 192), v(M_)))
        e("v_mul_f32 %s, %s, %s" % (v(T + 4), v(V_C192), v(T + 4)))
        for j in range(12):
            e("v_fma_f32 %s, -%s, %s, %s" % (v(D + j), v(T + 5), v(CS + j), v(D + j)))
        for j in range(12):
            e("v_mul_f32 %s, %s, %s" % (v(D + j), v(D + j), v(T + 4)))
        for t in range(3):
            e("v_cvt_pk_bf16_f32 %s, %s, %s" % (v(CS + 2 * t), v(D + 4 * t), v(D + 4 * t + 1)))
            e("v_cvt_pk_bf16_f32 %s, %s, %s" % (v(CS + 2 * t + 1), v(D + 4 * t + 2), v(D + 4 * t + 3)))
            e.lds("x", "ds_write_b64 %s, %s offset:%d" % (v(XW), v(CS + 2 * t, 2), t * 512))
        e("v_add_u32 %s, %d, %s" % (v(T + 6), L_XA, v(V_LANE16)))
        e.wait_ds_all()
        e("s_barrier")
        for k in range(6):
            e.lds(("b", k), "ds_read_b128 %s, %s offset:%d" % (v(QF + 4 * k, 4), v(T + 6), 1024 * k))
        e.wait_vm("wk")
        for k in range(6):
            e.wait_ds(("b", k))
            for t in range(3):
                self.mfma(e, v(D + 4 * t, 4), acc(KF + (t * 6 + k) * 4, 4), v(QF + 4 * k, 4), v(D + 4 * t, 4) if k else "0")
        for j in range(12):
            e("v_mul_f32 %s, %s, %s" % (v(D + j), fl(QSCALE), v(D + j)))
        for t in range(3):
            e("v_cvt_pk_bf16_f32 %s, %s, %s" % (v(CS + 2 * t), v(D + 4 * t), v(D + 4 * t + 1)))
            e("v_cvt_pk_bf16_f32 %s, %s, %s" % (v(CS + 2 * t + 1), v(D + 4 * t + 2), v(D + 4 * t + 3)))
            e.lds("x", "ds_write_b64 %s, %s offset:%d" % (v(XW), v(CS + 2 * t, 2), (L_XB - L_XA) + t * 512))
        e("v_lshrrev_b32 %s, 5, v0" % v(T))
        e("v_bfe_u32 %s, v0, 4, 1" % v(T + 1))
        e("v_lshl_or_b32 %s, %s, 1, %s" % (v(T), v(T + 1), v(T)))
        e("v_and_b32 %s, 15, v0" % v(T + 1))
        e("v_lshlrev_b32 %s, 4, %s" % (v(T + 1), v(T + 1)))
        e("v_lshl_add_u32 %s, %s, 8, %s" % (v(T), v(T), v(T + 1)))
        e("v_add_u32 %s, %d, %s" % (v(T), L_XB, v(T)))
        e.wait_ds_all()
        e("s_barrier")
        e("s_cmp_lg_u32 %s, 0" % s(S_WAVE))
        e("s_cbranch_scc1 L_prep_end")
        for k in range(6):
            e.lds("c", "ds_read_b128 %s, %s offset:%d" % (v(QF + 4 * k, 4), v(T), 1024 * k))
        e.wait_ds_all()
        e("s_movk_i32 %s, 0x1000" % s(S_T0))
        for k in range(6):
            e.vmem("st", "buffer_store_dwordx4 %s, %s, %s, %s offen offset:%d" % (
                v(QF + 4 * k, 4), v(V_LANE16), s(R_WS, 4), s(S_T0) if k >= 4 else "0", WS_QK + (k % 4) * 1024))

    def k_comb(self):
        e = Emit()
        DT, LAM, AC, X = 16, 48, 56, 64
        e("s_cmp_ge_u32 s2, 64")
        e("s_cbranch_scc1 L_comb_end")
        e("s_load_dwordx2 s[4:5], s[0:1], 0")
        e("s_load_dwordx2 s[18:19], s[0:1], 56")
        e("s_load_dwordx2 s[22:23], s[0:1], 72")
        self.lane_ids(e)
        e("s_lshl_b32 %s, s2, 15" % s(S_T0))
        e("s_lshl_b32 %s, %s, 13" % (s(S_T1), s(S_WAVE)))
        e("s_add_u32 %s, %s, %s" % (s(S_T0), s(S_T0), s(S_T1)))
        e("s_add_u32 %s, %s, %d" % (s(S_T0), s(S_T0), WS_PART))
        e("s_add_u32 %s, %s, 4096" % (s(S_T1), s(S_T0)))
        e("s_waitcnt lgkmcnt(0)")
        srd(e, R_WS, S_WS, WS_SIZE)
        for t in range(8):
            e.vmem(("d", t), "buffer_load_dwordx4 %s, %s, %s, %s offen offset:%d" % (
                v(DT + 4 * t, 4), v(V_LANE16), s(R_WS, 4), s(S_T0 + t // 4), (t % 4) * 1024))
        srd(e, R_A, S_Q, 6144)
        srd(e, R_B, S_OUT, 6144)
        e("v_mul_u32_u24 %s, 43, v0" % v(T))
        e("v_lshrrev_b32 %s, 7, %s" % (v(T), v(T)))
        e("v_mul_u32_u24 %s, 3, %s" % (v(T + 1), v(T)))
        e("v_sub_u32 %s, v0, %s" % (v(T + 1), v(T + 1)))
        e("v_and_b32 %s, 3, %s" % (v(T + 2), v(T)))
        e("v_mul_u32_u24 %s, 6, %s" % (v(T + 2), v(T + 2)))
        e("v_lshrrev_b32 %s, 2, %s" % (v(T + 3), v(T)))
        e("v_mul_u32_u24 %s, 3, %s" % (v(T + 3), v(T + 3)))
        e("v_add3_u32 %s, %s, %s, %s" % (v(T + 2), v(T + 2), v(T + 3), v(T + 1)))
        e("v_lshlrev_b32 %s, 2, %s" % (v(T + 2), v(T + 2)))
        e("v_lshlrev_b32 %s, 5, %s" % (v(T), v(T)))
        e("v_lshl_add_u32 %s, %s, 3, %s" % (v(T + 4), v(T + 1), v(T)))
        e("v_cmp_gt_u32 vcc, 24, v0")
        e("v_mov_b32 %s, 0x10000" % v(T + 3))
        e("s_mul_i32 %s, s2, 96" % s(S_T2))
        e("v_cndmask_b32 %s, %s, %s, vcc" % (v(T + 2), v(T + 3), v(T + 2)))
        e.vmem("q", "buffer_load_dword %s, %s, %s, %s offen" % (v(T + 5), v(T + 2), s(R_A, 4), s(S_T2)))
        e.wait_vm(("d", 7))
        MX = T + 6
        e("v_max3_f32 %s, %s, %s, %s" % (v(MX), v(DT + 3), v(DT + 7), v(DT + 11)))
        e("v_max3_f32 %s, %s, %s, %s" % (v(MX), v(MX), v(DT + 15), v(DT + 19)))
        e("v_max3_f32 %s, %s, %s, %s" % (v(MX), v(MX), v(DT + 23), v(DT + 27)))
        e("v_max_f32 %s, %s, %s" % (v(MX), v(MX), v(DT + 31)))
        e("v_max_f32_dpp %s, %s, %s row_ror:8 row_mask:0xf bank_mask:0xf" % (v(MX), v(MX), v(MX)))
        for sw in ("32", "16"):
            e("v_mov_b32 %s, %s" % (v(MX + 1), v(MX)))
            e("v_permlane%s_swap_b32 %s, %s" % (sw, v(MX), v(MX + 1)))
            e("v_max_f32 %s, %s, %s" % (v(MX), v(MX), v(MX + 1)))
        for t in range(8):
            e("v_sub_f32 %s, %s, %s" % (v(LAM + t), v(DT + 4 * t + 3), v(MX)))
        for t in range(8):
            e("v_exp_f32 %s, %s" % (v(LAM + t), v(LAM + t)))
        for t in range(8):
            for j in range(3):
                e("v_lshlrev_b32 %s, 16, %s" % (v(X + 2 * j), v(DT + 4 * t + j)))
                e("v_and_b32 %s, 0xffff0000, %s" % (v(X + 2 * j + 1), v(DT + 4 * t + j)))
            for j in range(6):
                e("%s %s, %s, %s" % ("v_fmac_f32" if t else "v_mul_f32", v(AC + j), v(X + j), v(LAM + t)))
            if t:
                e("v_add_f32 %s, %s, %s" % (v(LAM), v(LAM), v(LAM + t)))
        e("v_mov_b32 %s, %s" % (v(AC + 6), v(LAM)))
        e("v_mov_b32 %s, %s" % (v(AC + 7), v(MX)))
        for j in range(7):
            e("v_add_f32_dpp %s, %s, %s row_ror:8 row_mask:0xf bank_mask:0xf" % (v(AC + j), v(AC + j), v(AC + j)))
        for sw in ("16", "32"):
            for j in range(7):
                e("v_mov_b32 %s, %s" % (v(X + j), v(AC + j)))
            for j in range(7):
                e("v_permlane%s_swap_b32 %s, %s" % (sw, v(AC + j), v(X + j)))
            for j in range(7):
                e("v_add_f32 %s, %s, %s" % (v(AC + j), v(AC + j), v(X + j)))
        e("v_lshlrev_b32 %s, 5, v0" % v(X))
        e("s_lshl_b32 %s, %s, 8" % (s(S_T0), s(S_WAVE)))
        e("v_add_u32 %s, %s, %s" % (v(X), s(S_T0), v(X)))
        e("s_mov_b64 exec, 0xff")
        e.lds("w", "ds_write_b128 %s, %s" % (v(X), v(AC, 4)))
        e.lds("w", "ds_write_b128 %s, %s offset:16" % (v(X), v(AC + 4, 4)))
        e("s_mov_b64 exec, -1")
        e.wait_ds_all()
        e("s_barrier")
        e("s_cmp_lg_u32 %s, 0" % s(S_WAVE))
        e("s_cbranch_scc1 L_comb_end")
        e("v_and_b32 %s, 0xff, %s" % (v(T + 4), v(T + 4)))
        e("v_mov_b32 %s, 24" % v(T))
        for w in range(4):
            e.lds("r", "ds_read_b64 %s, %s offset:%d" % (v(DT + 2 * w, 2), v(T + 4), 256 * w))
            e.lds("r", "ds_read_b64 %s, %s offset:%d" % (v(DT + 8 + 2 * w, 2), v(T), 256 * w))
        e.wait_ds_all()
        e("v_max3_f32 %s, %s, %s, %s" % (v(MX), v(DT + 9), v(DT + 11), v(DT + 13)))
        e("v_max_f32 %s, %s, %s" % (v(MX), v(MX), v(DT + 15)))
        for w in range(4):
            e("v_sub_f32 %s, %s, %s" % (v(LAM + w), v(DT + 9 + 2 * w), v(MX)))
        for w in range(4):
            e("v_exp_f32 %s, %s" % (v(LAM + w), v(LAM + w)))
        for w in range(4):
            op = "v_fmac_f32" if w else "v_mul_f32"
            e("%s %s, %s, %s" % (op, v(AC + 2), v(DT + 8 + 2 * w), v(LAM + w)))
            e("%s %s, %s, %s" % (op, v(AC), v(DT + 2 * w), v(LAM + w)))
            e("%s %s, %s, %s" % (op, v(AC + 1), v(DT + 2 * w + 1), v(LAM + w)))
        e("v_rcp_f32 %s, %s" % (v(AC + 2), v(AC + 2)))
        e.wait_vm("q")
        e("v_lshlrev_b32 %s, 16, %s" % (v(X), v(T + 5)))
        e("v_and_b32 %s, 0xffff0000, %s" % (v(X + 1), v(T + 5)))
        e("v_fmac_f32 %s, %s, %s" % (v(X), v(AC), v(AC + 2)))
        e("v_fmac_f32 %s, %s, %s" % (v(X + 1), v(AC + 1), v(AC + 2)))
        e("v_cvt_pk_bf16_f32 %s, %s, %s" % (v(X), v(X), v(X + 1)))
        e.vmem("o", "buffer_store_dword %s, %s, %s, %s offen" % (v(X), v(T + 2), s(R_B, 4), s(S_T2)))
        e("L_comb_end:")
        e("s_endpgm")
        return fix_hazards(e.lines, "comb", self.a.verbose)

    def k_touch(self):
        e = Emit()
        e("s_load_dwordx16 s[4:19], s[0:1], 0")
        e("s_load_dwordx4 s[20:23], s[0:1], 64")
        e("v_lshlrev_b32 v1, 19, v0")
        e("v_lshlrev_b32 v2, 7, v0")
        e("v_lshlrev_b32 v3, 14, v0")
        e("s_waitcnt lgkmcnt(0)")
        lvl = self.a.touch
        if "f" in lvl:
            srd(e, 24, S_F0, 100663296)
            srd(e, 28, S_F1, 25165824)
            e("buffer_load_dword v4, v1, s[24:27], 0 offen nt")
            e("buffer_load_dword v5, v1, s[28:31], 0 offen nt")
        if "w" in lvl:
            for j, p in enumerate([S_Q, S_WQ, S_WK, S_WV, S_WO, S_OUT]):
                srd(e, 32 + 4 * j, p, 128)
                e("buffer_load_dword v%d, v2, %s, 0 offen" % (6 + j, s(32 + 4 * j, 4)))
            srd(e, 60, S_WS, WS_SIZE)
            e("buffer_load_dword v12, v3, s[60:63], 0 offen nt")
        e("s_waitcnt vmcnt(0)")
        e("s_endpgm")
        return e.lines

    def build(self):
        ks = [("prep_kernel", self.k_prep(), 25, L_END, 256, 512),
              ("main_kernel", self.k_main(), 256, L_END, 256, 448),
              ("comb_kernel", self.k_comb(), 64, 1024, 72, 72)]
        o = [HDR]
        if self.a.empty_first:
            ks = [("nil0_kernel", ["s_endpgm"], 1, 0, 8, 8)] + ks
        if self.a.touch:
            ks = [("touch_kernel", self.k_touch(), 64, 0, 16, 16)] + ks
        if self.a.empty_last:
            ks = ks + [("nil1_kernel", ["s_endpgm"], 1, 0, 8, 8)]
        for n, _, g, lds, _, _ in ks:
            for _ in range(2 if n.startswith(self.a.repeat or "-") else 1):
                o.append("; @launch kernel=%s grid=(%d,1,1) block=(256,1,1) lds=%d" % (n, g, lds))
        o.append('.amdgcn_target "amdgcn-amd-amdhsa--gfx950"')
        o.append(".text")
        for n, lines, _, _, _, _ in ks:
            o.append(".p2align 8")
            o.append("%s:" % n)
            o += [("    " + x if not x.endswith(":") else x) for x in lines]
        o.append('.section .rodata,"a"')
        for n, _, _, _, ao, nv in ks:
            o.append(".p2align 6")
            o.append(".amdhsa_kernel %s" % n)
            o.append("  .amdhsa_next_free_vgpr %d" % nv)
            o.append("  .amdhsa_next_free_sgpr 102")
            o.append("  .amdhsa_accum_offset %d" % ao)
            o.append("  .amdhsa_group_segment_fixed_size 0")
            o.append("  .amdhsa_kernarg_size 80")
            o.append("  .amdhsa_user_sgpr_count 2")
            o.append("  .amdhsa_user_sgpr_kernarg_segment_ptr 1")
            o.append("  .amdhsa_system_sgpr_workgroup_id_x 1")
            o.append("  .amdhsa_float_denorm_mode_32 3")
            o.append(".end_amdhsa_kernel")
        return "\n".join(o) + "\n"


if __name__ == "__main__":
    ap = argparse.ArgumentParser()
    ap.add_argument("-o", default="v1.s")
    ap.add_argument("--pol", default="nt")
    ap.add_argument("--stamps", default=None)
    ap.add_argument("--verbose", action="store_true")
    ap.add_argument("--repeat", default=None)
    ap.add_argument("--bar", default="none")
    ap.add_argument("--push", default="mid3")
    ap.add_argument("--touch", default=None)
    ap.add_argument("--empty_first", action="store_true")
    ap.add_argument("--empty_last", action="store_true")
    args = ap.parse_args()
    open(args.o, "w").write(Gen(args).build())
```

```python
import sys, argparse
sys.path.insert(0, "tools")
from asmlib import Emit, v, acc, s, fix_hazards
import gen
from gen import *

WS_EPOCH, WS_FLAG, WS_QK, WS_PART, WS_WVO = 0, 128, 16384, 65536, 65536 + (2 << 20)
NP, J0, NJ, C0, NC, JW = 3, 128, 72, 64, 64, 3
SPIN = 1 << 16
S_E, S_N, S_JOB, S_CNT = 38, 39, 43, 53
V_PQ = 120
V_FL, V_FLA = 244, 245
PEND = [24, 26, 28, 30, 44, 46, 48, 50]
OKM = [6, 8, 10, 12, 14, 16, 36, 40]
DEN_MAX = 2.0 ** 40


class Gen2(Gen):
    nslots = 16
    slotsrc = {12: "s62", 13: "s63", 14: "s53"}
    def nonce(self, e):
        e("s_mul_i32 %s, %s, 0x9e3779b1" % (s(S_N), s(S_E)))
        e("s_add_u32 %s, %s, 0x7f4a7c16" % (s(S_N), s(S_N)))
        e("s_or_b32 %s, %s, 1" % (s(S_N), s(S_N)))

    def load_epoch(self, e):
        e("s_load_dword %s, %s, %d" % (s(S_E), s(S_WS, 2), WS_EPOCH))
        e.smem = True

    def chunk_dma(self, e, tag, rs, soff, ldsbase, role=None, pol=""):
        for ee in range(6):
            if ee % 4 == 0:
                if ldsbase[0] is None:
                    e("s_mov_b32 m0, %d" % (ldsbase[1] + ee * 1024))
                else:
                    e("s_add_u32 m0, %s, %d" % (s(ldsbase[0]), ldsbase[1] + ee * 1024))
            e.vmem(tag, "buffer_load_dwordx4 %s, %s, %s offen offset:%d %s lds" % (
                v(V_DF + ee), s(rs, 4), soff, (ee % 4) * 1024, pol), role)

    def setup2(self, e):
        self.lds_read_addrs(e)
        self.consts(e)
        self.epilogue_addrs(e)
        e("s_mov_b32 %s, %s" % (s(S_THR), fl(THR)))

    def weight_prefetch(self, e):
        e("s_and_b32 %s, s2, 7" % s(S_T0))
        e("s_cmp_ge_u32 %s, %d" % (s(S_T0), NP))
        e("s_cbranch_scc1 L_nopf")
        e("s_cmp_eq_u32 %s, 3" % s(S_WAVE))
        e("s_cbranch_scc1 L_nopf")
        e("s_lshr_b32 %s, s2, 3" % s(S_T1))
        e("s_mul_i32 %s, %s, 24576" % (s(S_T0), s(S_T0)))
        e("s_cmp_eq_u32 %s, 1" % s(S_WAVE))
        e("s_cselect_b32 %s, %s, %s" % (s(R_A), s(S_WK), s(S_WQ)))
        e("s_cselect_b32 %s, %s, %s" % (s(R_A + 1), s(S_WK + 1), s(S_WQ + 1)))
        e("s_cselect_b32 %s, %s, 0" % (s(S_T0), s(S_T0)))
        e("s_cselect_b32 %s, 6, 18" % s(S_T2))
        e("s_mov_b32 %s, 73728" % s(R_A + 2))
        e("s_cmp_eq_u32 %s, 2" % s(S_WAVE))
        e("s_cselect_b32 %s, %s, %s" % (s(R_A), s(S_Q), s(R_A)))
        e("s_cselect_b32 %s, %s, %s" % (s(R_A + 1), s(S_Q + 1), s(R_A + 1)))
        e("s_cselect_b32 %s, 6144, %s" % (s(R_A + 2), s(R_A + 2)))
        e("s_cselect_b32 %s, 2, %s" % (s(S_T2), s(S_T2)))
        e("s_mov_b32 %s, 0x20000" % s(R_A + 3))
        e("s_mul_i32 %s, %s, %s" % (s(S_T1), s(S_T1), s(S_T2)))
        e("s_sub_u32 %s, %s, 1" % (s(S_T2), s(S_T2)))
        e("v_min_u32 %s, %s, v0" % (v(T), s(S_T2)))
        e("v_add_u32 %s, %s, %s" % (v(T), s(S_T1), v(T)))
        e("v_lshlrev_b32 %s, 7, %s" % (v(T), v(T)))
        e.vmem("pf", "buffer_load_dword %s, %s, %s, %s offen" % (v(V_JUNK + 2), v(T), s(R_A, 4), s(S_T0)), "pf")
        e("L_nopf:")

    def producer(self, e):
        QF, AF, KF = V_QK, V_W, A_XA
        D, CS, G_, M_, SQ = 88, 100, 112, 116, 120
        TA, KA, QA, XW = 124, 130, 132, 134
        srd(e, R_A, S_WQ, 73728)
        srd(e, R_B, S_WK, 73728)
        srd(e, R_C, S_Q, 6144)
        e("s_cmp_lg_u32 %s, 0" % s(S_WAVE))
        e("s_cbranch_scc1 L_p_noq")
        self.chunk_dma(e, "q", R_C, "0", (None, L_XA), "q")
        e("L_p_noq:")
        e("s_mul_i32 %s, %s, 18432" % (s(S_T0), s(S_WAVE)))
        for j in range(3):
            if j:
                e("s_add_u32 %s, %s, 6144" % (s(S_T0), s(S_T0)))
            self.chunk_dma(e, "wq", R_A, s(S_T0), (S_T0, L_R1))
        e("s_lshl_b32 %s, s2, 2" % s(S_T3))
        e("s_add_u32 %s, %s, %s" % (s(S_T3), s(S_T3), s(S_WAVE)))
        e("s_mul_i32 %s, %s, 6144" % (s(S_T0), s(S_T3)))
        e("s_lshl_b32 %s, %s, 10" % (s(S_JOB), s(S_T3)))
        self.chunk_dma(e, "wk", R_B, s(S_T0), (S_LR0, 6144))
        self.issue(e, "F", 0, [], bar=False)
        self.setup2(e)
        self.xch_write_addr(e, XW, L_XB)
        e("v_bfe_u32 %s, v0, 4, 1" % v(T))
        e("v_lshrrev_b32 %s, 5, v0" % v(T + 4))
        e("v_lshl_or_b32 %s, %s, 1, %s" % (v(T), v(T), v(T + 4)))
        e("v_bfe_u32 %s, v0, 2, 2" % v(T + 1))
        e("v_lshl_add_u32 %s, %s, 3, %s" % (v(T + 2), v(T), v(T + 1)))
        e("v_mul_u32_u24 %s, 384, %s" % (v(T + 2), v(T + 2)))
        e("v_and_b32 %s, 1, v0" % v(T + 3))
        e("v_lshl_add_u32 %s, %s, 3, %s" % (v(T + 2), v(T + 3), v(T + 2)))
        e("v_add_u32 %s, %d, %s" % (v(T + 2), L_R1, v(T + 2)))
        e("v_and_or_b32 %s, %s, 2, %s" % (v(T + 1), v(T + 1), v(T + 4)))
        e("v_bfe_u32 %s, v0, 1, 1" % v(T + 3))
        e("v_xor_b32 %s, %s, %s" % (v(T + 1), v(T + 1), v(T + 3)))
        e("s_mul_i32 %s, %s, 6" % (s(S_T0), s(S_WAVE)))
        for t in range(3):
            e("s_add_u32 %s, %s, %d" % (s(S_T1), s(S_T0), 2 * t))
            e("v_xor_b32 %s, %s, %s" % (v(T + 3), s(S_T1), v(T + 1)))
            e("v_lshl_add_u32 %s, %s, 4, %s" % (v(TA + 2 * t), v(T + 3), v(T + 2)))
            e("v_xor_b32 %s, 64, %s" % (v(TA + 2 * t + 1), v(TA + 2 * t)))
        e("s_sub_u32 %s, %d, %s" % (s(S_T0), L_XA, s(S_LF)))
        e("v_add_u32 %s, %s, %s" % (v(QA), s(S_T0), v(V_FA)))
        e("v_xor_b32 %s, 64, %s" % (v(QA + 1), v(QA)))
        e("s_and_b32 %s, %s, 1" % (s(S_T0), s(S_WAVE)))
        e("s_lshl_b32 %s, %s, 2" % (s(S_T0), s(S_T0)))
        e("s_lshr_b32 %s, %s, 1" % (s(S_T1), s(S_WAVE)))
        e("s_mul_i32 %s, %s, 24576" % (s(S_T1), s(S_T1)))
        e("s_add_u32 %s, %s, %d" % (s(S_T1), s(S_T1), L_R0 + 6144))
        e("v_and_b32 %s, 11, v0" % v(T))
        e("v_or_b32 %s, %s, %s" % (v(T), s(S_T0), v(T)))
        e("v_bfe_u32 %s, v0, 3, 1" % v(T + 1))
        e("v_and_or_b32 %s, %s, 6, %s" % (v(T + 1), v(T), v(T + 1)))
        e("v_lshrrev_b32 %s, 4, v0" % v(T + 2))
        e("v_xor_b32 %s, %s, %s" % (v(T + 1), v(T + 1), v(T + 2)))
        e("v_mul_u32_u24 %s, 384, %s" % (v(T), v(T)))
        e("v_lshl_add_u32 %s, %s, 4, %s" % (v(T), v(T + 1), v(T)))
        e("v_bfe_u32 %s, v0, 2, 1" % v(T + 1))
        e("v_mul_u32_u24 %s, 12288, %s" % (v(T + 1), v(T + 1)))
        e("v_add3_u32 %s, %s, %s, %s" % (v(KA), s(S_T1), v(T), v(T + 1)))
        e("v_xor_b32 %s, 64, %s" % (v(KA + 1), v(KA)))
        e("v_add_u32 %s, %d, %s" % (v(T + 6), L_XB, v(V_LANE16)))
        e.wait_vm("wq")
        self.stamp(e, 1)
        e("s_barrier")
        for k in range(6):
            e.lds(("q", k), "ds_read_b128 %s, %s offset:%d" % (v(QF + 4 * k, 4), v(QA + (k & 1)), (k >> 1) * 128))
        rd = []
        for k in range(6):
            for t in range(3):
                for h in range(2):
                    rd.append((lambda t=t, k=k, h=h: e.lds(("a", t, k), "ds_read_b64_tr_b16 %s, %s offset:%d" % (
                        v(AF + (t * 6 + k) * 4 + 2 * h, 2), v(TA + 2 * t + h), 12288 * k + 1536 * h)), 1))
        ms = []
        for k in range(6):
            def g(k=k):
                e.wait_ds(("q", k))
                self.mfma(e, v(G_, 4), v(QF + 4 * k, 4), v(QF + 4 * k, 4), v(G_, 4) if k else "0")
            ms.append(g)
            ms.append(lambda k=k: self.mfma(e, v(M_, 4), v(V_ONES, 4), v(QF + 4 * k, 4), v(M_, 4) if k else "0"))
        flush(rd[:8])
        flush(weave(e, ms, rd[8:], 0, 3))
        ms = []
        for k in range(6):
            for t in range(3):
                af = v(AF + (t * 6 + k) * 4, 4)

                def a(t=t, k=k, af=af):
                    e.wait_ds(("a", t, k))
                    self.mfma(e, v(D + 4 * t, 4), af, v(QF + 4 * k, 4), v(D + 4 * t, 4) if k else "0")
                ms.append(a)
                ms.append(lambda t=t, k=k, af=af: self.mfma(e, v(CS + 4 * t, 4), af, v(V_ONES, 4), v(CS + 4 * t, 4) if k else "0"))
        st = self.diag(e, G_, None, T + 2)
        gap = (lambda: None, 1)
        st += [gap] * 4 + [I(e, "v_mfma_f32_16x16x4_f32 %s, %s, %s, %s" % (v(SQ, 4), v(V_C192), v(T + 2), v(V_EPS, 4)), 2)]
        st += [I(e, "v_mul_f32 %s, %s, %s" % (v(T + 5), fl(1.0 / 192), v(M_)))] + [gap] * 21
        st += [I(e, "v_fma_f32 %s, -%s, %s, %s" % (v(T + 4), v(M_), v(M_), v(SQ))),
               I(e, "v_max_f32 %s, %s, %s" % (v(T + 4), v(T + 4), v(V_EPS))),
               I(e, "v_rsq_f32 %s, %s" % (v(T + 4), v(T + 4)), 2),
               I(e, "v_mul_f32 %s, %s, %s" % (v(T + 4), v(V_C192), v(T + 4)))]
        flush(weave(e, ms, st, 4, 2))
        self.load_epoch(e)
        dl = self.dma_list(e, "R0", 0)
        for fn in dl[:6]:
            fn()
        for j in range(12):
            e("v_fma_f32 %s, -%s, %s, %s" % (v(D + j), v(T + 5), v(CS + j), v(D + j)))
        for j in range(12):
            e("v_mul_f32 %s, %s, %s" % (v(D + j), v(D + j), v(T + 4)))
        for t in range(3):
            e("v_cvt_pk_bf16_f32 %s, %s, %s" % (v(CS + 2 * t), v(D + 4 * t), v(D + 4 * t + 1)))
            e("v_cvt_pk_bf16_f32 %s, %s, %s" % (v(CS + 2 * t + 1), v(D + 4 * t + 2), v(D + 4 * t + 3)))
            e.lds("x", "ds_write_b64 %s, %s offset:%d" % (v(XW), v(CS + 2 * t, 2), t * 512))
        e.wait_vm("wk")
        e.wait_ds_all()
        e("s_barrier")
        for k in range(6):
            e.lds(("b", k), "ds_read_b128 %s, %s offset:%d" % (v(QF + 4 * k, 4), v(T + 6), 1024 * k))
            e.lds(("b", k), "ds_read_b128 %s, %s offset:%d" % (acc(KF + 4 * k, 4), v(KA + (k & 1)), (k >> 1) * 128))
        self.nonce(e)
        e("s_add_u32 %s, %s, %d" % (s(S_JOB), s(S_JOB), WS_QK))
        e("v_mov_b32 %s, %s" % (v(CS + 2), s(S_N)))
        e("v_mov_b32 %s, %s" % (v(CS + 3), s(S_N)))
        for k in range(6):
            e.wait_ds(("b", k))
            self.mfma(e, v(D, 4), acc(KF + 4 * k, 4), v(QF + 4 * k, 4), v(D, 4) if k else "0")
        for j in range(4):
            e("v_mul_f32 %s, %s, %s" % (v(D + j), fl(QSCALE), v(D + j)))
        e("v_cvt_pk_bf16_f32 %s, %s, %s" % (v(CS), v(D), v(D + 1)))
        e("v_cvt_pk_bf16_f32 %s, %s, %s" % (v(CS + 1), v(D + 2), v(D + 3)))
        e.vmem("pub", "buffer_store_dwordx4 %s, %s, %s, %s offen sc1" % (v(CS, 4), v(V_LANE16), s(R_WS, 4), s(S_JOB)))
        self.stamp(e, 2)
        e("s_mov_b32 %s, -1" % s(S_JOB))
        e("s_barrier")
        for fn in dl[6:]:
            fn()
        self.issue(e, "R1", 0, [], bar=False)
        e("s_branch L_join")

    def job_loads(self, e):
        SW = S_T0
        e("s_cmp_ge_u32 %s, %d" % (s(S_JOB), NJ))
        e("s_cbranch_scc1 L_j_nold")
        srd(e, R_A, S_WV, 73728)
        srd(e, R_B, S_WO, 73728)
        e("s_mul_i32 %s, %s, 43" % (s(SW), s(S_JOB)))
        e("s_lshr_b32 %s, %s, 8" % (s(SW), s(SW)))
        e("s_mul_i32 %s, %s, 6" % (s(S_T1), s(SW)))
        e("s_sub_u32 %s, %s, %s" % (s(S_T1), s(S_JOB), s(S_T1)))
        e("s_mul_i32 %s, %s, 12288" % (s(S_T1), s(S_T1)))
        self.chunk_dma(e, "job", R_A, s(S_T1), (None, L_SP), "job")
        e("s_add_u32 %s, %s, 6144" % (s(S_T1), s(S_T1)))
        self.chunk_dma(e, "job", R_A, s(S_T1), (None, L_SP + 6144), "job")
        e("v_lshrrev_b32 %s, 1, v0" % v(T))
        e("v_mul_u32_u24 %s, 352, %s" % (v(T), v(T)))
        e("v_add_u32 %s, %s, %s" % (v(T), v(T), v(V_LANE16)))
        e("s_lshl_b32 %s, %s, 5" % (s(SW), s(SW)))
        for j in range(6):
            e("s_mov_b32 m0, %d" % (L_SP + 12288 + j * 1024))
            if j:
                e("s_add_u32 %s, %s, 12288" % (s(SW), s(SW)))
            e.vmem("job", "buffer_load_dwordx4 %s, %s, %s offen lds" % (v(T), s(R_B, 4), s(SW)), "job")
        e("L_j_nold:")

    def job_compute(self, e):
        AV, BF, D, JA, JB = V_W, V_W + 48, 88, 96, 100
        e("s_cmp_ge_u32 %s, %d" % (s(S_JOB), NJ))
        e("s_cbranch_scc1 L_j_nocp")
        e("v_bfe_u32 %s, v0, 2, 1" % v(T))
        e("v_and_b32 %s, 3, v0" % v(T + 1))
        e("v_lshl_or_b32 %s, %s, 3, %s" % (v(T + 1), v(T), v(T + 1)))
        e("v_and_or_b32 %s, v0, 2, %s" % (v(T), v(T)))
        e("v_lshrrev_b32 %s, 4, v0" % v(T + 2))
        e("v_xor_b32 %s, %s, %s" % (v(T), v(T), v(T + 2)))
        e("v_mul_u32_u24 %s, 384, %s" % (v(T + 1), v(T + 1)))
        e("v_lshl_add_u32 %s, %s, 4, %s" % (v(T), v(T), v(T + 1)))
        e("v_bfe_u32 %s, v0, 3, 1" % v(T + 1))
        e("v_mul_u32_u24 %s, 6144, %s" % (v(T + 1), v(T + 1)))
        e("s_mov_b32 %s, %d" % (s(S_T0), L_SP))
        e("v_add3_u32 %s, %s, %s, %s" % (v(JA), s(S_T0), v(T), v(T + 1)))
        e("v_xor_b32 %s, 64, %s" % (v(JA + 1), v(JA)))
        e("v_and_b32 %s, 15, v0" % v(T))
        e("v_lshlrev_b32 %s, 3, %s" % (v(T), v(T)))
        e("v_lshl_add_u32 %s, %s, 8, %s" % (v(T), v(T + 2), v(T)))
        e("v_add_u32 %s, %d, %s" % (v(JB), L_SP + 12288, v(T)))
        e.wait_vm("job", "job")
        for k in range(6):
            for h in range(2):
                e.lds(("j", k), "ds_read_b64_tr_b16 %s, %s offset:%d" % (v(BF + 4 * k + 2 * h, 2), v(JB), 1024 * k + 128 * h))
            for h in range(2):
                e.lds(("j", k), "ds_read_b128 %s, %s offset:%d" % (
                    v(AV + (h * 6 + k) * 4, 4), v(JA + ((k & 1) ^ h)), (k >> 1) * 128 + 1536 * h))
        e("s_lshl_b32 %s, %s, 10" % (s(S_T0), s(S_JOB)))
        e("s_add_u32 %s, %s, %d" % (s(S_T0), s(S_T0), WS_WVO))
        for k in range(6):
            e.wait_ds(("j", k))
            for h in range(2):
                self.mfma(e, v(D + 4 * h, 4), v(AV + (h * 6 + k) * 4, 4), v(BF + 4 * k, 4), v(D + 4 * h, 4) if k else "0")
        for j in range(4):
            e("v_cvt_pk_bf16_f32 %s, %s, %s" % (v(JA + j), v(D + 2 * j), v(D + 2 * j + 1)))
        e.vmem("jst", "buffer_store_dwordx4 %s, %s, %s, %s offen sc1" % (v(JA, 4), v(V_LANE16), s(R_WS, 4), s(S_T0)), "job")
        e("L_j_nocp:")

    def job_flag(self, e):
        e("s_cmp_ge_u32 %s, %d" % (s(S_JOB), NJ))
        e("s_cbranch_scc1 L_j_nofl")
        e("s_lshl_b32 %s, %s, 7" % (s(S_T0), s(S_JOB)))
        e("v_mov_b32 %s, %s" % (v(T), s(S_N)))
        e("v_mov_b32 %s, 0" % v(T + 1))
        e("s_mov_b64 exec, 1")
        e.wait_vm("jst", "job")
        e.vmem("jfl", "buffer_store_dword %s, %s, %s, %s offen offset:%d sc1" % (v(T), v(T + 1), s(R_WS, 4), s(S_T0), WS_FLAG), "job")
        e("s_mov_b64 exec, -1")
        e("L_j_nofl:")

    def qk_loads(self, e, tag="qk"):
        e("s_mul_i32 %s, %s, 3072" % (s(S_T0), s(S_WAVE)))
        e("s_add_u32 %s, %s, %d" % (s(S_T0), s(S_T0), WS_QK))
        for j in range(3):
            e.vmem(tag, "buffer_load_dwordx4 %s, %s, %s, %s offen offset:%d sc1" % (
                v(V_PQ + 4 * j, 4), v(V_LANE16), s(R_WS, 4), s(S_T0), j * 1024))

    def qk_check(self, e):
        e("v_xor_b32 %s, %s, %s" % (v(T), s(S_N), v(V_PQ + 2)))
        e("v_xor_b32 %s, %s, %s" % (v(T + 1), s(S_N), v(V_PQ + 6)))
        e("v_xor_b32 %s, %s, %s" % (v(T + 2), s(S_N), v(V_PQ + 10)))
        e("v_or3_b32 %s, %s, %s, %s" % (v(T), v(T), v(T + 1), v(T + 2)))
        e("v_cmp_ne_u32 vcc, 0, %s" % v(T))

    def qk_get(self, e):
        e("s_mul_i32 %s, %s, 1536" % (s(S_T0), s(S_WAVE)))
        e("v_lshlrev_b32 %s, 3, v0" % v(T + 4))
        e("v_add_u32 %s, %d, %s" % (v(T + 4), L_XB, v(T + 4)))
        e("v_add_u32 %s, %s, %s" % (v(T + 3), s(S_T0), v(T + 4)))
        e.wait_vm("qk")
        self.qk_check(e)
        e("s_cbranch_vccnz L_qk_retry")
        e("L_qk_ok:")
        for j in range(3):
            e.lds("x", "ds_write_b64 %s, %s offset:%d" % (v(T + 3), v(V_PQ + 4 * j, 2), j * 512))
        self.job_flag(e)
        e.wait_ds_all()
        e("s_barrier")
        for st in range(6):
            e.lds(("qk", st), "ds_read2st64_b64 %s, %s offset0:%d offset1:%d" % (v(V_QK + 4 * st, 4), v(T + 4), 2 * st, 2 * st + 1))
        for st in range(6):
            e.wait_ds(("qk", st))
            self.mfma(e, v(V_SS[0], 4), v(V_ONES, 4), v(V_QK + 4 * st, 4), v(V_SS[0], 4) if st else "0")
            self.mfma(e, v(V_S1, 4), acc(A_FA + 4 * st, 4), v(V_QK + 4 * st, 4), v(V_S1, 4) if st else "0")
        e("v_mul_f32 %s, %s, %s" % (v(V_CQ), fl(1.0 / 192), v(V_SS[0])))

    def retry(self, name, loads, check, dbg):
        r = Emit()
        r("L_%s_retry:" % name)
        r("s_mov_b32 %s, 0" % s(S_CNT))
        r("L_%s_again:" % name)
        loads(r)
        r("s_add_u32 %s, %s, 1" % (s(S_CNT), s(S_CNT)))
        if self.a.stamps:
            r("s_mov_b32 %s, %s" % (s(dbg), s(S_CNT)))
        r.wait_vm_all()
        check(r)
        r("s_cbranch_vccz L_%s_ok" % name)
        r("s_cmp_lt_u32 %s, %d" % (s(S_CNT), SPIN))
        r("s_cbranch_scc1 L_%s_again" % name)
        r("s_branch L_%s_ok" % name)
        return fix_hazards(r.lines, name)

    def flag_load(self, e):
        e.vmem("fl", "buffer_load_dword %s, %s, %s, 0 offen offset:%d sc1" % (v(V_FL), v(V_FLA), s(R_WS, 4), WS_FLAG))

    def flag_check(self, e):
        e("v_cmp_ne_u32 vcc, %s, %s" % (s(S_N), v(V_FL)))

    def issue(self, e, kind, k, extra, bar=True):
        if bar:
            e("s_barrier")
        if (kind, k) == ("F", 2):
            self.flag_load(e)
        for j, fn in enumerate(self.dma_list(e, kind, k)):
            fn()
            if j % 3 != 0 and extra:
                extra.pop(0)()

    def push(self, e, n, where, extra):
        pol = self.a.push
        if pol == "mid3":
            tgt = n + 3 if where == "mid" else None
        elif n < 7:
            tgt = n + 3 if where == "mid" else None
        else:
            tgt = {7: 10, 9: 11}.get(n) if where == "end" else None
        if tgt is not None and tgt < 12:
            self.issue(e, *self.ITEMS[tgt], extra if tgt >= 8 else [])

    def phase_f0(self, e):
        e.wait_vm(("F", 0))
        for st in range(6):
            e.lds(("fa", st), "ds_read_b128 %s, %s offset:%d" % (acc(A_FA + 4 * st, 4), v(V_FA + (st & 1)), (st >> 1) * 128))
        tr = []
        for n in range(12):
            tr.append((lambda n=n: e.lds("ft", "ds_read_b64_tr_b16 %s, %s offset:%d" % (
                acc(A_FT + 2 * n, 2), v(V_FT + (n & 3)), (n >> 2) * 128)), 1))
        ms = []
        for st in range(6):
            fa = acc(A_FA + 4 * st, 4)

            def g(st=st, fa=fa):
                e.wait_ds(("fa", st))
                self.mfma(e, v(V_G1, 4), fa, fa, v(V_G1, 4) if st else "0")
            ms.append(g)
            ms.append(lambda st=st, fa=fa: self.mfma(e, v(V_M1, 4), fa, v(V_ONES, 4), v(V_M1, 4) if st else "0"))
        flush(weave(e, ms, tr, 0, 2))
        e.wait_ds_all()
        self.nonce(e)
        self.push(e, 0, "mid", [])
        self.qk_loads(e)

    def epilogue_addrs(self, e):
        XW, RD, AR = V_E, V_E + 1, V_E + 2
        self.xch_write_addr(e, XW, L_XA)
        e("s_mul_i32 %s, %s, 3072" % (s(S_T0), s(S_WAVE)))
        e("s_add_u32 %s, %s, %d" % (s(S_T0), s(S_T0), L_R0))
        e("v_add_u32 %s, %s, %s" % (v(RD), s(S_T0), v(V_LANE16)))
        e("v_add_u32 %s, %s, %s" % (v(AR), s(S_LR0), v(V_LANE16)))
        e("s_lshl_b32 %s, %s, 10" % (s(S_T0), s(S_WAVE)))
        e("v_add_u32 %s, %d, %s" % (v(AR + 2), L_ST, v(V_LANE16)))
        e("v_add_u32 %s, %s, %s" % (v(AR + 1), s(S_T0), v(AR + 2)))
        e("v_add_u32 %s, %d, %s" % (v(AR + 3), L_XA, v(V_LANE16)))
        e("v_bfe_u32 %s, v0, 2, 2" % v(T))
        e("v_lshlrev_b32 %s, 19, %s" % (v(T), v(T)))
        e("v_lshrrev_b32 %s, 4, v0" % v(T + 1))
        e("v_lshl_or_b32 %s, %s, 15, %s" % (v(T), v(T + 1), v(T)))
        e("v_and_b32 %s, 3, v0" % v(T + 1))
        e("v_lshl_or_b32 %s, %s, 4, %s" % (v(AR + 4), v(T + 1), v(T)))
        e("v_xor_b32 %s, 0x70, %s" % (v(AR + 5), v(AR + 4)))
        e("s_mul_i32 %s, %s, 18" % (s(S_T0), s(S_WAVE)))
        e("v_min_u32 %s, 17, v0" % v(T))
        e("v_add_u32 %s, %s, %s" % (v(T), s(S_T0), v(T)))
        e("v_lshlrev_b32 %s, 7, %s" % (v(V_FLA), v(T)))

    def publish(self, e, D, LAM):
        AR, O_ = V_E + 2, 32
        e("v_mov_b32 %s, %s" % (v(O_ + 3), v(LAM)))
        e("v_add_u32 %s, %s, %s" % (v(O_ + 7), s(S_N), v(LAM)))
        for j in range(6):
            e("v_cvt_pk_bf16_f32 %s, %s, %s" % (v(O_ + j + j // 3), v(D + 2 * j), v(D + 2 * j + 1)))
            if j % 3 == 2:
                e.vmem("out", "buffer_store_dwordx4 %s, %s, %s, %s offen sc1" % (
                    v(O_ + 4 * (j // 3), 4), v(AR + 4 + j // 3), s(R_WS, 4), s(S_T0)))

    def consumer(self, e):
        DT, AC, LAM = 76, 16, T + 3
        EXP, NH, REF, OA, QV, C1, C2, X = 40, 41, 42, 43, 44, 45, 46, 48
        SC, SI = S_T2, 60
        e("s_sub_u32 %s, s2, %d" % (s(SC), C0))
        e("s_cmp_ge_u32 %s, %d" % (s(SC), NC))
        e("s_cbranch_scc1 L_fin")
        e("s_lshl_b32 %s, %s, 15" % (s(SI), s(SC)))
        e("s_lshl_b32 %s, %s, 13" % (s(S_T1), s(S_WAVE)))
        e("s_add_u32 %s, %s, %s" % (s(SI), s(SI), s(S_T1)))
        e("s_add_u32 %s, %s, %d" % (s(SI), s(SI), WS_PART))
        e("s_add_u32 %s, %s, 4096" % (s(SI + 1), s(SI)))

        def load(t, note=""):
            e.vmem("d", "buffer_load_dwordx4 %s, %s, %s, %s offen offset:%d sc1%s" % (
                v(DT + 4 * t, 4), v(V_LANE16), s(R_WS, 4), s(SI + t // 4), (t % 4) * 1024, note))
        for t in range(8):
            load(t)
        srd(e, R_A, S_Q, 6144)
        srd(e, R_B, S_OUT, 6144)
        e("v_bfe_u32 %s, v0, 2, 1" % v(X))
        e("v_cmp_eq_u32 vcc, 1, %s" % v(X))
        e("v_mul_u32_u24 %s, 7, %s" % (v(X + 1), v(X)))
        e("v_xor_b32 %s, v0, %s" % (v(X + 1), v(X + 1)))
        e("v_and_b32 %s, 3, %s" % (v(X + 1), v(X + 1)))
        e("s_lshr_b32 %s, %s, 4" % (s(S_T0), s(SC)))
        e("s_lshl_b32 %s, %s, 2" % (s(S_T0), s(S_T0)))
        e("v_add_u32 %s, %s, %s" % (v(X + 1), s(S_T0), v(X + 1)))
        e("v_lshlrev_b32 %s, 2, %s" % (v(X + 2), v(X + 1)))
        e.lds("ref", "ds_bpermute_b32 %s, %s, %s" % (v(REF), v(X + 2), v(LAM)))
        e("v_mov_b32 %s, %s" % (v(EXP), s(S_N)))
        e("v_cndmask_b32 %s, 0, %s, vcc" % (v(NH), v(EXP)))
        e("v_sub_u32 %s, %s, %s" % (v(EXP), v(EXP), v(NH)))
        e("v_sub_u32 %s, %s, %s" % (v(EXP), v(EXP), v(NH)))
        e("v_lshrrev_b32 %s, 4, v0" % v(X + 2))
        e("v_mad_u32_u24 %s, %s, 3, %s" % (v(X + 2), v(X), v(X + 2)))
        e("v_lshrrev_b32 %s, 1, %s" % (v(X + 3), v(X + 2)))
        e("v_and_b32 %s, 1, %s" % (v(X + 2), v(X + 2)))
        e("v_lshlrev_b32 %s, 2, %s" % (v(X + 2), v(X + 2)))
        e("v_lshl_add_u32 %s, %s, 5, %s" % (v(X + 2), v(X + 3), v(X + 2)))
        e("v_bfe_u32 %s, v0, 3, 1" % v(X + 3))
        e("v_lshl_add_u32 %s, %s, 1, %s" % (v(X + 2), v(X + 3), v(X + 2)))
        e("v_mul_u32_u24 %s, 384, %s" % (v(X + 1), v(X + 1)))
        e("s_bfe_u32 %s, %s, 0x20002" % (s(S_T0), s(SC)))
        e("s_mul_i32 %s, %s, 96" % (s(S_T0), s(S_T0)))
        e("s_and_b32 %s, %s, 3" % (s(S_T1), s(SC)))
        e("s_lshl_b32 %s, %s, 3" % (s(S_T1), s(S_T1)))
        e("s_add_u32 %s, %s, %s" % (s(S_T0), s(S_T0), s(S_T1)))
        e("v_add3_u32 %s, %s, %s, %s" % (v(OA), s(S_T0), v(X + 1), v(X + 2)))
        e("v_cmp_gt_u32 vcc, 48, v0")
        e("v_mov_b32 %s, 0x10000" % v(X + 3))
        e("v_cndmask_b32 %s, %s, %s, vcc" % (v(OA), v(X + 3), v(OA)))
        e.vmem("d", "buffer_load_ushort %s, %s, %s, 0 offen" % (v(QV), v(OA), s(R_A, 4)))
        e("s_lshl_b32 %s, %s, 2" % (s(S_T0), s(S_WAVE)))
        e("v_add_u32 %s, %s, %s" % (v(C1), s(S_T0), v(V_LANE16)))
        e("v_and_b32 %s, 0x70, %s" % (v(C2), v(V_LANE16)))
        for j in range(7):
            e("v_mov_b32 %s, 0" % v(AC + j))
        e("s_mov_b32 %s, 0" % s(S_CNT))
        e.wait_ds_all()

        def check(t):
            e("v_sub_u32_dpp %s, %s, %s row_half_mirror row_mask:0xf bank_mask:0xf" % (v(X), v(DT + 4 * t + 3), v(DT + 4 * t + 3)))
            e("v_cmp_eq_u32 vcc, %s, %s" % (v(X), v(EXP)))

        def accum(t, nl=""):
            e("v_sub_u32 %s, %s, %s%s" % (v(X + 1), v(DT + 4 * t + 3), v(NH), nl))
            e("v_sub_f32 %s, %s, %s" % (v(X + 1), v(X + 1), v(REF)))
            e("v_exp_f32 %s, %s" % (v(X + 1), v(X + 1)))
            e("v_cvt_pk_bf16_f32 %s, %s, 0" % (v(X + 1), v(X + 1)))
            e("v_lshlrev_b32 %s, 16, %s" % (v(X + 2), v(X + 1)))
            for j in range(3):
                e("v_dot2_f32_bf16 %s, %s, %s, %s%s" % (v(AC + 2 * j), v(DT + 4 * t + j), v(X + 1), v(AC + 2 * j), nl))
            e("v_add_f32 %s, %s, %s" % (v(AC + 6), v(AC + 6), v(X + 2)))
            for j in range(3):
                e("v_dot2_f32_bf16 %s, %s, %s, %s%s" % (v(AC + 2 * j + 1), v(DT + 4 * t + j), v(X + 2), v(AC + 2 * j + 1), nl))
        NL = " ; nolint"
        e.wait_vm_all()
        self.stamp(e, 9)
        for t in range(8):
            check(t)
            e("s_mov_b64 %s, vcc" % s(OKM[t], 2))
            e("s_not_b64 %s, vcc" % s(PEND[t], 2))
            e("s_cbranch_scc0 L_c_a%d" % t)
            e("s_mov_b64 exec, %s" % s(PEND[t], 2))
            load(t)
            e("s_mov_b64 exec, -1")
            e("L_c_a%d:" % t)
        e("L_c_acc:")
        for t in range(8):
            e("s_mov_b64 exec, %s" % s(OKM[t], 2))
            accum(t, NL)
        e("s_mov_b64 exec, -1")
        e("L_c_loop:")
        e("s_or_b64 vcc, %s, %s" % (s(PEND[0], 2), s(PEND[1], 2)))
        for t in range(2, 8):
            e("s_or_b64 vcc, vcc, %s" % s(PEND[t], 2))
        e("s_cbranch_scc0 L_c_red")
        e("s_add_u32 %s, %s, 1" % (s(S_CNT), s(S_CNT)))
        e("s_cmp_gt_u32 %s, %d" % (s(S_CNT), SPIN))
        e("s_cbranch_scc1 L_c_red")
        e.wait_vm_all()
        for t in range(8):
            e("s_cmp_eq_u64 %s, 0" % s(PEND[t], 2))
            e("s_cbranch_scc1 L_c_b%d" % t)
            check(t)
            e("s_and_b64 %s, vcc, %s" % (s(OKM[0], 2), s(PEND[t], 2)))
            e("s_andn2_b64 %s, %s, vcc" % (s(PEND[t], 2), s(PEND[t], 2)))
            e("s_cbranch_scc0 L_c_n%d" % t)
            e("s_mov_b64 exec, %s" % s(PEND[t], 2))
            load(t)
            e("L_c_n%d:" % t)
            e("s_mov_b64 exec, %s" % s(OKM[0], 2))
            e("s_cbranch_execz L_c_e%d" % t)
            accum(t, NL)
            e("L_c_e%d:" % t)
            e("s_mov_b64 exec, -1")
            e("L_c_b%d:" % t)
        e("s_branch L_c_loop")
        e("L_c_red:")
        e.wait_vm_all()
        self.stamp(e, 10)
        e("v_mov_b32 %s, %s" % (v(AC + 7), v(AC + 6)))
        for j in range(4):
            e("v_permlane32_swap_b32 %s, %s" % (v(AC + j), v(AC + 4 + j)))
        for j in range(4):
            e("v_add_f32 %s, %s, %s" % (v(AC + j), v(AC + j), v(AC + 4 + j)))
        for j in range(2):
            e("v_permlane16_swap_b32 %s, %s" % (v(AC + j), v(AC + 2 + j)))
        for j in range(2):
            e("v_add_f32 %s, %s, %s" % (v(AC + j), v(AC + j), v(AC + 2 + j)))
        e("v_add_f32_dpp %s, %s, %s row_ror:8 row_mask:0xf bank_mask:0x3" % (v(X), v(AC), v(AC)))
        e("v_add_f32_dpp %s, %s, %s row_ror:8 row_mask:0xf bank_mask:0xc" % (v(X), v(AC + 1), v(AC + 1)))
        e.lds("w", "ds_write_b32 %s, %s" % (v(C1), v(X)))
        e.wait_ds_all()
        e("s_barrier")
        e.lds("r", "ds_read_b128 %s, %s offset:768" % (v(X, 4), v(C2)))
        e.lds("r2", "ds_read_b128 %s, %s" % (v(X + 4, 4), v(V_LANE16)))
        e("v_lshlrev_b32 %s, 16, %s" % (v(AC + 2), v(QV)))
        e.wait_ds("r")
        e("v_add_f32 %s, %s, %s" % (v(X), v(X), v(X + 1)))
        e("v_add_f32 %s, %s, %s" % (v(X + 2), v(X + 2), v(X + 3)))
        e("v_add_f32 %s, %s, %s" % (v(X), v(X), v(X + 2)))
        e("v_cmp_nlt_f32 vcc, %s, %s" % (v(X), v(V_JUNK)))
        e("v_rcp_f32 %s, %s" % (v(X), v(X)))
        e.wait_ds("r2")
        e("s_cbranch_vccnz L_c_slow")
        e("L_c_out:")
        e("s_cmp_lg_u32 %s, 0" % s(S_WAVE))
        e("s_cbranch_scc1 L_fin")
        e("v_add_f32 %s, %s, %s" % (v(X + 4), v(X + 4), v(X + 5)))
        e("v_add_f32 %s, %s, %s" % (v(X + 6), v(X + 6), v(X + 7)))
        e("v_add_f32 %s, %s, %s" % (v(X + 4), v(X + 4), v(X + 6)))
        e("v_fmac_f32 %s, %s, %s" % (v(AC + 2), v(X + 4), v(X)))
        e("v_cvt_pk_bf16_f32 %s, %s, %s" % (v(AC + 2), v(AC + 2), v(AC + 2)))
        e.vmem("o", "buffer_store_short %s, %s, %s, 0 offen" % (v(AC + 2), v(OA), s(R_B, 4)))
        e("s_cmp_lg_u32 %s, 0" % s(SC))
        e("s_cbranch_scc1 L_fin")
        e("v_mov_b32 %s, %s" % (v(X), s(S_N)))
        e("v_mov_b32 %s, 0" % v(X + 1))
        e("s_mov_b64 exec, 1")
        e.vmem("o", "buffer_store_dword %s, %s, %s, 0 offen offset:%d sc1" % (v(X), v(X + 1), s(R_WS, 4), WS_EPOCH))
        e("s_mov_b64 exec, -1")

        r = Emit()
        r("L_c_slow:")
        r("s_cmp_eq_u32 %s, 0" % s(S_JOB))
        r("s_cbranch_scc1 L_c_out")
        r("s_mov_b32 %s, 0" % s(S_JOB))
        for t in range(8):
            r("v_sub_u32 %s, %s, %s" % (v(X + 1), v(DT + 4 * t + 3), v(NH)))
            r("v_max_f32 %s, %s, %s" % (v(REF), v(REF), v(X + 1)))
        r("v_max_f32_dpp %s, %s, %s row_ror:8 row_mask:0xf bank_mask:0xf" % (v(REF), v(REF), v(REF)))
        for sw in ("32", "16"):
            r("v_mov_b32 %s, %s" % (v(X), v(REF)))
            r("v_permlane%s_swap_b32 %s, %s" % (sw, v(REF), v(X)))
            r("v_max_f32 %s, %s, %s" % (v(REF), v(REF), v(X)))
        r("s_lshl_b32 %s, %s, 2" % (s(S_T0), s(S_WAVE)))
        r("v_add_u32 %s, %s, %s" % (v(X), s(S_T0), v(C2)))
        r.lds("w", "ds_write_b32 %s, %s offset:1024" % (v(X), v(REF)))
        r.wait_ds_all()
        r("s_barrier")
        r.lds("r", "ds_read_b128 %s, %s offset:1024" % (v(X, 4), v(C2)))
        for j in range(7):
            r("v_mov_b32 %s, 0" % v(AC + j))
        for t in range(8):
            r("s_mov_b64 %s, -1" % s(OKM[t], 2))
            r("s_mov_b64 %s, 0" % s(PEND[t], 2))
        r.wait_ds_all()
        r("v_max3_f32 %s, %s, %s, %s" % (v(REF), v(X), v(X + 1), v(X + 2)))
        r("v_max_f32 %s, %s, %s" % (v(REF), v(REF), v(X + 3)))
        r("s_branch L_c_acc")
        return fix_hazards(r.lines, "slow")

    def k_all(self):
        e = Emit()
        self.sites = []
        self.nstamp = 0
        e("s_cmp_ge_u32 s2, 256")
        e("s_cbranch_scc1 L_end")
        e("s_load_dwordx16 s[4:19], s[0:1], 0")
        e("s_load_dwordx4 s[20:23], s[0:1], 64")
        self.stamp(e, 0)
        if self.a.stamps:
            e("s_mov_b64 s[62:63], 0")
            e("s_mov_b32 s53, 0")
        self.code_prefetch(e, "main", "L_codeend")
        self.lane_ids(e)
        self.dma_f_offsets(e)
        self.dma_r_offsets(e)
        e("s_mul_i32 %s, %s, 6144" % (s(S_OF), s(S_WAVE)))
        e("s_mul_i32 %s, %s, 12288" % (s(S_OR), s(S_WAVE)))
        e("s_add_u32 %s, %s, %d" % (s(S_LF), s(S_OF), L_F))
        e("s_add_u32 %s, %s, %d" % (s(S_LR0), s(S_OR), L_R0))
        e("s_add_u32 %s, %s, %d" % (s(S_LR1), s(S_OR), L_R1))
        e("s_mul_i32 %s, s2, 393216" % s(S_T0))
        e("s_mul_i32 %s, s2, 98304" % s(S_T1))
        e("s_sub_u32 %s, s2, %d" % (s(S_JOB), J0))
        e("s_cmp_eq_u32 %s, %d" % (s(S_WAVE), JW))
        e("s_cselect_b32 %s, %s, -1" % (s(S_JOB), s(S_JOB)))
        e("s_waitcnt lgkmcnt(0)")
        e.smem = False
        srd(e, R_F1, S_F1, 98304, s(S_T1))
        srd(e, R_F0, S_F0, 393216, s(S_T0))
        srd(e, R_WS, S_WS, WS_SIZE)
        self.weight_prefetch(e)
        e("s_cmp_lt_u32 s2, %d" % NP)
        e("s_cbranch_scc1 L_prod")
        head = list(e.lines)

        p = Emit()
        p("L_prod:")
        self.producer(p)
        plines = fix_hazards(head + p.lines, "prod", self.a.verbose)
        plines = plines[plines.index("L_prod:"):]

        self.load_epoch(e)
        self.issue(e, "F", 0, [], bar=False)
        self.issue(e, "R0", 0, [], bar=False)
        self.job_loads(e)
        self.issue(e, "R1", 0, [], bar=False)
        self.setup2(e)
        self.stamp(e, 1)
        self.stamp(e, 2)
        e("L_join:")
        e("s_mul_i32 %s, %s, 18432" % (s(60), s(S_WAVE)))
        extra = []
        for j in range(18):
            def ld(j=j):
                if j % 4 == 0:
                    e("s_add_u32 %s, %s, %d" % (s(61), s(60), WS_WVO + j * 1024))
                e.vmem("wvo", "buffer_load_dwordx4 %s, %s, %s, %s offen offset:%d sc1" % (
                    v(V_W + 4 * j, 4), v(V_LANE16), s(R_WS, 4), s(61), (j % 4) * 1024))
            extra.append(ld)
        for k in range(4):
            if k == 0:
                self.phase_f0(e)
            else:
                self.phase_f(e, k, extra)
            self.phase_r(e, k, 0, extra)
            if k == 1:
                e.wait_vm("fl")
                self.flag_check(e)
                e("s_cbranch_vccnz L_fl_retry")
                e("L_fl_ok:")
            if k == 3:
                e.wait_vm(("R1", 3))
                self.stamp(e, 6)
            self.phase_r(e, k, 1, extra)
            if k in (0, 2):
                self.stamp(e, 4 + k // 2)
        assert not extra
        self.stamp(e, 7)
        e("s_lshl_b32 %s, %s, 17" % (s(S_T0), s(S_WAVE)))
        e("s_lshl_b32 %s, s2, 7" % s(S_T1))
        e("s_add_u32 %s, %s, %s" % (s(S_T0), s(S_T0), s(S_T1)))
        e("s_add_u32 %s, %s, %d" % (s(S_T0), s(S_T0), WS_PART))
        e("v_mov_b32 %s, %s" % (v(V_JUNK), fl(DEN_MAX)))
        e("s_mov_b32 %s, 1" % s(S_JOB))
        self.epilogue(e)
        self.stamp(e, 8)
        if self.a.stamps:
            for j in (9, 10):
                e("s_mov_b64 %s, 0" % s(S_STAMP + 2 * j, 2))
        slow = self.consumer(e)
        e("L_fin:")
        if self.a.stamps:
            e("s_waitcnt vmcnt(0)")
            self.stamp(e, 11)
        self.write_stamps(e)
        e("L_end:")
        e("s_endpgm")
        e.lines = fix_hazards(e.lines, "main", self.a.verbose)
        e.lines += plines + slow
        e.lines += self.retry("qk", lambda r: self.qk_loads(r), self.qk_check, 62)
        e.lines += self.retry("fl", self.flag_load, self.flag_check, 63)
        self.rare(e)
        e("L_codeend:")
        return e.lines

    def build(self):
        n = NAME + "_kernel"
        o = [HDR, "; @launch grid=(256,1,1) block=(256,1,1) lds=%d" % L_END,
             '.amdgcn_target "amdgcn-amd-amdhsa--gfx950"', ".text", ".globl " + n, ".p2align 8",
             ".type %s,@function" % n, n + ":"]
        o += [("    " + x.replace(" ; nolint", "") if not x.endswith(":") else x) for x in self.k_all()]
        o += ['.section .rodata,"a"', ".p2align 6", ".amdhsa_kernel " + n, "  .amdhsa_next_free_vgpr 448",
              "  .amdhsa_next_free_sgpr 102", "  .amdhsa_accum_offset 256", "  .amdhsa_group_segment_fixed_size 0",
              "  .amdhsa_kernarg_size 80", "  .amdhsa_user_sgpr_count 2", "  .amdhsa_user_sgpr_kernarg_segment_ptr 1",
              "  .amdhsa_system_sgpr_workgroup_id_x 1", "  .amdhsa_float_denorm_mode_32 3", ".end_amdhsa_kernel"]
        return "\n".join(o) + "\n"


if __name__ == "__main__":
    ap = argparse.ArgumentParser()
    ap.add_argument("-o", default="v2.s")
    ap.add_argument("--pol", default="nt")
    ap.add_argument("--stamps", default=None)
    ap.add_argument("--verbose", action="store_true")
    ap.add_argument("--push", default="mid3l")
    args = ap.parse_args()
    open(args.o, "w").write(Gen2(args).build())
```

```python
import sys, argparse, struct
sys.path.insert(0, "tools")
from asmlib import Emit, v, acc, s, fix_hazards

NAME = "standalone__detection_seg_dino__vision"
HDR = open("/code/%s.s.ref" % NAME).read().split("; Override launch")[0].rstrip()


def f2u(x):
    return struct.unpack("<I", struct.pack("<f", x))[0]


def fl(x):
    return "0x%08x" % f2u(x)


LOG2E = 1.4426950408889634
QSCALE = 192 ** -0.5 * LOG2E * 192.0
EPSQ_VAL = 1e-5 * 192 * 192
THR = 24.0

WS_QK, WS_WVO, WS_PART, WS_STAMP, WS_SIZE = 0, 8192, 131072, 4 << 20, 8 << 20
L_F, L_R0, L_R1, L_SP, L_XA, L_XB, L_ST, L_END = 0, 24576, 73728, 122880, 147456, 153600, 159744, 163840

S_WAVE = 3
S_Q, S_F0, S_F1, S_WQ, S_WK, S_WV, S_WO, S_OUT, S_DBG, S_WS = 4, 6, 8, 10, 12, 14, 16, 18, 20, 22
R_F0, R_F1, R_WS, R_A, R_B, R_C = 24, 28, 32, 64, 68, 72
S_OF, S_OR, S_LF, S_LR0, S_LR1 = 36, 37, 40, 41, 42
S_MASK = 44
S_THR, S_RET, S_T0, S_T1, S_T2, S_T3 = 52, 54, 56, 57, 58, 59
S_STAMP = 76

T = 1
V_DF, V_DR = 16, 22
V_FA, V_FT, V_XA, V_XT = 34, 36, 40, 44
V_ONES, V_EPS = 52, 56
V_C192, V_CQ, V_NEGM, V_L, V_PM, V_LANE16 = 60, 61, 62, 63, 64, 65
V_PFB, V_PF, V_P = 66, 68, 72
V_S1, V_M1, V_G1 = 76, 80, 84
V_TILE = [88, 104]
V_SS = [120, 124]
V_RS = [128, 132]
V_QK, V_W = 136, 160
V_JUNK = 232
V_E = 236
A_O, A_FA, A_FT, A_XA, A_XT = 0, 48, 72, 96, 144


def srd(e, r, base, size, add=None):
    if add is None:
        e("s_mov_b32 %s, %s" % (s(r), s(base)))
        e("s_mov_b32 %s, %s" % (s(r + 1), s(base + 1)))
    else:
        e("s_add_u32 %s, %s, %s" % (s(r), s(base), add))
        e("s_addc_u32 %s, %s, 0" % (s(r + 1), s(base + 1)))
    e("s_mov_b32 %s, %d" % (s(r + 2), size))
    e("s_mov_b32 %s, 0x20000" % s(r + 3))


def weave(e, mfmas, fillers, start=0, per_gap=2):
    fillers = list(fillers)
    for i, m in enumerate(mfmas):
        m()
        if i >= start:
            budget = per_gap
            while fillers and fillers[0][1] <= budget:
                fn, c = fillers.pop(0)
                fn()
                budget -= c
    return fillers


def flush(fillers):
    for fn, _ in fillers:
        fn()


def I(e, text, cost=1):
    return (lambda: e(text), cost)


class Gen:
    def __init__(self, args):
        self.a = args
        self.pol = args.pol
        self.nstamp = 0
        self.inner = False
        self.shared_ref = False

    def phase_stamp(self, e, n):
        if self.a.stamps == "ph" and 2 <= n <= 11:
            Gen.stamp(self, e, n - 1, True)

    def stamp(self, e, idx, force=False):
        if self.a.stamps == "ph" and idx and not force:
            return
        if self.a.stamps:
            e("%s %s" % ("s_memtime" if self.a.stamps == "cyc" and idx not in (0, 10) else "s_memrealtime", s(S_STAMP + 2 * idx, 2)))
            e.smem = True
            self.nstamp = max(self.nstamp, idx + 1)

    def mfma(self, e, d, a, b, c):
        e("v_mfma_f32_16x16x32_bf16 %s, %s, %s, %s" % (d, a, b, c))

    def lane_ids(self, e):
        e("v_lshrrev_b32 %s, 6, v0" % v(T))
        e("v_and_b32 v0, 63, v0")
        e("v_readfirstlane_b32 %s, %s" % (s(S_WAVE), v(T)))
        e("v_lshlrev_b32 %s, 4, v0" % v(V_LANE16))

    def dma_f_offsets(self, e):
        e("v_lshrrev_b32 %s, 2, v0" % v(T))
        e("v_and_b32 %s, 14, %s" % (v(T), v(T)))
        for e0 in range(3):
            k = sum((((8 * e0 + h) // 3) >> 1) << (2 * h) for h in range(8))
            e("s_mov_b32 %s, 0x%x" % (s(S_T0), k))
            e("v_bfe_u32 %s, %s, %s, 2" % (v(T + 1), s(S_T0), v(T)))
            e("v_lshlrev_b32 %s, 5, %s" % (v(T + 1), v(T + 1)))
            e("v_xor_b32 %s, %s, %s" % (v(V_DF + e0), v(V_LANE16), v(T + 1)))
        e("v_xor_b32 %s, 16, %s" % (v(V_DF + 3), v(V_DF)))
        e("v_xor_b32 %s, 0x1010, %s" % (v(V_DF + 4), v(V_DF + 1)))
        e("v_xor_b32 %s, 0x1010, %s" % (v(V_DF + 5), v(V_DF + 2)))

    def dma_r_offsets(self, e):
        e("v_lshrrev_b32 %s, 3, v0" % v(T))
        e("v_and_b32 %s, 6, %s" % (v(T), v(T)))
        for e0 in range(3):
            k = sum(((4 * e0 + g) // 3) << (2 * g) for g in range(4))
            e("s_mov_b32 %s, 0x%x" % (s(S_T0), k))
            e("v_bfe_u32 %s, %s, %s, 2" % (v(T + 1), s(S_T0), v(T)))
            e("v_lshlrev_b32 %s, 5, %s" % (v(T + 1), v(T + 1)))
            e("v_xor_b32 %s, %s, %s" % (v(V_DR + e0), v(V_LANE16), v(T + 1)))
        for ee in range(3, 12):
            c = [0, 128, 16, 144][ee // 3] | ((ee - ee % 4) * 1024)
            e("v_xor_b32 %s, 0x%x, %s" % (v(V_DR + ee), c, v(V_DR + ee % 3)))

    def lds_read_addrs(self, e):
        i_, g_, pg, rho, lo, t0, t1 = T, T + 1, T + 2, T + 3, T + 4, T + 5, T + 6
        e("v_and_b32 %s, 15, v0" % v(i_))
        e("v_lshrrev_b32 %s, 4, v0" % v(g_))
        e("v_lshrrev_b32 %s, 1, %s" % (v(t0), v(g_)))
        e("v_and_b32 %s, 1, %s" % (v(pg), v(g_)))
        e("v_lshl_or_b32 %s, %s, 1, %s" % (v(pg), v(pg), v(t0)))
        e("v_lshrrev_b32 %s, 2, v0" % v(rho))
        e("v_bfe_u32 %s, v0, 1, 1" % v(lo))
        e("v_lshrrev_b32 %s, 3, %s" % (v(t0), v(i_)))
        e("v_and_or_b32 %s, %s, 6, %s" % (v(t0), v(i_), v(t0)))
        e("v_xor_b32 %s, %s, %s" % (v(t0), v(t0), v(pg)))
        e("v_mul_u32_u24 %s, 384, %s" % (v(t1), v(i_)))
        e("v_lshl_add_u32 %s, %s, 4, %s" % (v(t0), v(t0), v(t1)))
        e("v_add_u32 %s, %s, %s" % (v(V_FA), s(S_LF), v(t0)))
        e("v_xor_b32 %s, 64, %s" % (v(V_FA + 1), v(V_FA)))
        e("v_lshrrev_b32 %s, 3, %s" % (v(t0), v(i_)))
        e("v_and_b32 %s, 7, %s" % (v(t1), v(i_)))
        e("v_lshl_or_b32 %s, %s, 1, %s" % (v(t0), v(t1), v(t0)))
        e("v_xor_b32 %s, %s, %s" % (v(t0), v(t0), v(pg)))
        e("v_mul_u32_u24 %s, 768, %s" % (v(t1), v(i_)))
        e("v_lshl_add_u32 %s, %s, 4, %s" % (v(t0), v(t0), v(t1)))
        e("v_add_u32 %s, %s, %s" % (v(V_XA), s(S_LR0), v(t0)))
        for x in range(1, 4):
            e("v_xor_b32 %s, 0x%x, %s" % (v(V_XA + x), x * 64, v(V_XA)))
        e("v_and_b32 %s, 1, v0" % v(g_))
        e("v_lshlrev_b32 %s, 3, %s" % (v(g_), v(g_)))
        e("v_lshrrev_b32 %s, 3, %s" % (v(t0), v(rho)))
        e("v_and_or_b32 %s, %s, 6, %s" % (v(t0), v(rho), v(t0)))
        e("v_xor_b32 %s, %s, %s" % (v(t0), v(t0), v(lo)))
        e("v_mul_u32_u24 %s, 384, %s" % (v(t1), v(rho)))
        e("v_lshl_add_u32 %s, %s, 4, %s" % (v(t0), v(t0), v(t1)))
        e("v_add3_u32 %s, %s, %s, %s" % (v(V_FT), s(S_LF), v(t0), v(g_)))
        for x in range(1, 4):
            e("v_xor_b32 %s, 0x%x, %s" % (v(V_FT + x), x * 32, v(V_FT)))
        e("v_lshrrev_b32 %s, 3, %s" % (v(t0), v(rho)))
        e("v_and_b32 %s, 7, %s" % (v(t1), v(rho)))
        e("v_lshl_or_b32 %s, %s, 1, %s" % (v(t0), v(t1), v(t0)))
        e("v_xor_b32 %s, %s, %s" % (v(t0), v(t0), v(lo)))
        e("v_mul_u32_u24 %s, 768, %s" % (v(t1), v(rho)))
        e("v_lshl_add_u32 %s, %s, 4, %s" % (v(t0), v(t0), v(t1)))
        e("v_add3_u32 %s, %s, %s, %s" % (v(V_XT), s(S_LR0), v(t0), v(g_)))
        for x in range(1, 8):
            e("v_xor_b32 %s, 0x%x, %s" % (v(V_XT + x), x * 32, v(V_XT)))

    def consts(self, e):
        for r in range(4):
            e("v_mov_b32 %s, 0x3f803f80" % v(V_ONES + r))
            e("v_mov_b32 %s, %s" % (v(V_EPS + r), fl(EPSQ_VAL)))
            e("s_mov_b32 %s, 0x%x" % (s(S_MASK + 2 * r), (1 + (1 << 20)) << r))
            e("s_mov_b32 %s, 0x%x" % (s(S_MASK + 2 * r + 1), ((1 << 8) + (1 << 28)) << r))
        e("v_mov_b32 %s, %s" % (v(V_C192), fl(192.0)))

    def xch_write_addr(self, e, dst, base):
        e("v_lshrrev_b32 %s, 5, v0" % v(T))
        e("v_lshlrev_b32 %s, 8, %s" % (v(T), v(T)))
        e("v_and_b32 %s, 15, v0" % v(T + 1))
        e("v_lshl_add_u32 %s, %s, 4, %s" % (v(T), v(T + 1), v(T)))
        e("v_bfe_u32 %s, v0, 4, 1" % v(T + 1))
        e("v_lshl_add_u32 %s, %s, 3, %s" % (v(T), v(T + 1), v(T)))
        e("s_mul_i32 %s, %s, 1536" % (s(S_T0), s(S_WAVE)))
        e("s_add_u32 %s, %s, %d" % (s(S_T0), s(S_T0), base))
        e("v_add_u32 %s, %s, %s" % (v(dst), s(S_T0), v(T)))

    def diag(self, e, g, h, out):
        f = []
        for r in range(4):
            if h is not None:
                f.append(I(e, "v_fma_f32 %s, %s, 2.0, %s" % (v(g + r), v(h + r), v(g + r))))
        f.append(I(e, "v_cndmask_b32 %s, 0, %s, %s" % (v(out), v(g), s(S_MASK, 2))))
        for r in range(1, 4):
            f.append(I(e, "v_cndmask_b32 %s, %s, %s, %s" % (v(out), v(out), v(g + r), s(S_MASK + 2 * r, 2))))
        return f

    def dma_list(self, e, kind, k):
        out = []
        if kind == "F":
            n, voff, rs, lb, so, add = 6, V_DF, R_F1, S_LF, S_OF, k * 24576
        else:
            rho = int(kind[1])
            n, voff, rs, lb, so, add = 12, V_DR, R_F0, (S_LR0, S_LR1)[rho], S_OR, k * 49152 + rho * 196608
        sreg = {"F": S_T1, "R0": S_T2, "R1": S_T3}[kind]

        def one(ee):
            def fn():
                if ee % 4 == 0:
                    e("s_add_u32 m0, %s, %d" % (s(lb), ee * 1024))
                if ee == 0:
                    e("s_add_u32 %s, %s, %d" % (s(sreg), s(so), add))
                e.vmem((kind, k), "buffer_load_dwordx4 %s, %s, %s offen offset:%d %s lds" % (
                    v(voff + ee), s(rs, 4), s(sreg), (ee % 4) * 1024, self.pol))
            return fn
        for ee in range(n):
            out.append(one(ee))
        return out

    def issue(self, e, kind, k, extra):
        if self.a.bar == "all" and (kind, k) != ("F", 0) or self.a.bar == "r" and kind != "F" \
                or self.a.bar == "late" and k >= 2 or self.a.bar == "f" and kind == "F" and k:
            e("s_barrier")
        for j, fn in enumerate(self.dma_list(e, kind, k)):
            fn()
            if j % 2 == 1 and extra:
                extra.pop(0)()

    ITEMS = [(kind, k) for k in range(4) for kind in ("F", "R0", "R1")]

    def push(self, e, n, where, extra):
        pol = self.a.push
        if pol == "mid3":
            tgt = n + 3 if where == "mid" else None
        elif pol == "end3":
            tgt = n + 3 if where == "end" else None
        elif pol == "end2":
            tgt = n + 2 if where == "end" else None
        elif pol == "mid2":
            tgt = n + 2 if where == "mid" else None
        elif pol == "end3l":
            tgt = (n + 3 if n < 8 else (11 if n == 9 else None)) if where == "end" else None
        elif pol == "mid3l":
            if n < 7:
                tgt = n + 3 if where == "mid" else None
            else:
                tgt = {7: 10, 9: 11}.get(n) if where == "end" else None
        elif pol == "mixf":
            if where != "end":
                tgt = None
            else:
                tgt = {0: n + 2, 1: n + 3, 2: None}[n % 3]
                if n % 3 == 1 and n + 2 < 12:
                    self.issue(e, *self.ITEMS[n + 2], extra)
        if tgt is not None and tgt < 12:
            self.issue(e, *self.ITEMS[tgt], extra)

    def tstamp(self, e, idx):
        pass

    def phase_f(self, e, k, extra, own_ft=True):
        if k == 3:
            self.tstamp(e, 1)
        e.wait_vm(("F", k))
        if k == 3:
            self.tstamp(e, 2)
        self.phase_stamp(e, 3 * k)
        for st in range(6):
            e.lds(("fa", st), "ds_read_b128 %s, %s offset:%d" % (acc(A_FA + 4 * st, 4), v(V_FA + (st & 1)), (st >> 1) * 128))
        tr = []
        for n in range(12 if own_ft else 0):
            tr.append((lambda n=n: e.lds("ft", "ds_read_b64_tr_b16 %s, %s offset:%d" % (
                acc(A_FT + 2 * n, 2), v(V_FT + (n & 3)), (n >> 2) * 128)), 1))
        ms = []
        for st in range(6):
            fa = acc(A_FA + 4 * st, 4)

            def g(st=st, fa=fa):
                e.wait_ds(("fa", st))
                self.mfma(e, v(V_G1, 4), fa, fa, v(V_G1, 4) if st else "0")
            ms.append(g)
            ms.append(lambda st=st, fa=fa: self.mfma(e, v(V_M1, 4), fa, v(V_ONES, 4), v(V_M1, 4) if st else "0"))
        flush(weave(e, ms, tr, 0, 2))
        e.wait_ds_all()
        self.push(e, 3 * k, "mid", extra)
        if k == 0:
            self.finish_qk(e)
        for st in range(6):
            self.mfma(e, v(V_S1, 4), acc(A_FA + 4 * st, 4), v(V_QK + 4 * st, 4), v(V_S1, 4) if st else "0")
        self.push(e, 3 * k, "end", extra)

    def soft_a(self, e, t):
        S_, M_ = V_TILE[t], V_TILE[t] + 4
        f = []
        for r in range(4):
            f.append(I(e, "v_fma_f32 %s, -%s, %s, %s" % (v(V_RS[t] + r), v(M_ + r), v(M_ + r), v(V_SS[t] + r))))
        for r in range(4):
            f.append(I(e, "v_max_f32 %s, %s, %s" % (v(V_RS[t] + r), v(V_RS[t] + r), v(V_EPS))))
        for r in range(4):
            f.append(I(e, "v_rsq_f32 %s, %s" % (v(V_RS[t] + r), v(V_RS[t] + r)), 2))
        return f

    def soft_b(self, e, t, first):
        S_, M_ = V_TILE[t], V_TILE[t] + 4
        f = []
        for r in range(4):
            f.append(I(e, "v_fma_f32 %s, -%s, %s, %s" % (v(S_ + r), v(M_ + r), v(V_CQ), v(S_ + r))))
        for r in range(4):
            if first:
                f.append(I(e, "v_mul_f32 %s, %s, %s" % (v(S_ + r), v(S_ + r), v(V_RS[t] + r))))
            else:
                f.append(I(e, "v_fma_f32 %s, %s, %s, %s" % (v(S_ + r), v(S_ + r), v(V_RS[t] + r), v(V_NEGM))))
        f.append(I(e, "v_max3_f32 %s, %s, %s, %s" % (v(T), v(S_), v(S_ + 1), v(S_ + 2))))
        f.append(I(e, "v_max_f32 %s, %s, %s" % (v(T), v(T), v(S_ + 3))))
        if first:
            for sw in ("32", "16"):
                f.append(I(e, "v_mov_b32 %s, %s" % (v(T + 1), v(T))))
                f.append(I(e, "v_permlane%s_swap_b32 %s, %s" % (sw, v(T), v(T + 1))))
                f.append(I(e, "v_max_f32 %s, %s, %s" % (v(T), v(T), v(T + 1))))
            f.append(I(e, "v_sub_f32 %s, 0, %s" % (v(V_NEGM), v(T))))
            for r in range(4):
                f.append(I(e, "v_sub_f32 %s, %s, %s" % (v(S_ + r), v(S_ + r), v(T))))
        else:
            site = len(self.sites)
            self.sites.append(t + (2 if self.shared_ref else 0))

            def chk():
                e("v_cmp_lt_f32 vcc, %s, %s" % (s(S_THR), v(T)))
                e("s_cbranch_vccnz L_site%d" % site)
                e("L_back%d:" % site)
            f.append((chk, 2))
        return f

    def soft_c(self, e, t, first, rho):
        S_, M_ = V_TILE[t], V_TILE[t] + 4
        P_ = V_TILE[t] + 8
        crit, late = [], []
        for r in range(4):
            crit.append(I(e, "v_exp_f32 %s, %s" % (v(P_ + r), v(S_ + r)), 2))
        for r in range(4):
            crit.append(I(e, "v_mul_f32 %s, %s, %s" % (v(S_ + r), v(P_ + r), v(V_RS[t] + r))))
        for r in range(4):
            if first and r == 0:
                late.append(I(e, "v_mov_b32 %s, %s" % (v(V_L), v(P_))))
                late.append(I(e, "v_mul_f32 %s, %s, %s" % (v(V_PM), v(S_), v(M_))))
            else:
                late.append(I(e, "v_add_f32 %s, %s, %s" % (v(V_L), v(V_L), v(P_ + r))))
                late.append(I(e, "v_fmac_f32 %s, %s, %s" % (v(V_PM), v(S_ + r), v(M_ + r))))
        for r in range(4):
            if rho == 0 and t == 0:
                late.append(I(e, "v_mov_b32 %s, %s" % (v(V_PF + r), v(S_ + r))))
            else:
                late.append(I(e, "v_add_f32 %s, %s, %s" % (v(V_PF + r), v(V_PF + r), v(S_ + r))))
        return crit, late

    def gh(self, e, t):
        ms = []
        G_, H_ = V_TILE[t] + 8, V_TILE[t] + 12
        for st in range(6):
            xa = acc(A_XA + 24 * t + 4 * st, 4)

            def g(st=st, xa=xa):
                e.wait_ds(("xa", t, st))
                self.mfma(e, v(G_, 4), xa, xa, v(G_ if st else V_G1, 4))
            ms.append(g)
            ms.append(lambda st=st, xa=xa: self.mfma(e, v(H_, 4), xa, acc(A_FA + 4 * st, 4), v(H_, 4) if st else "0"))
        return ms

    def msq(self, e, t):
        S_, M_ = V_TILE[t], V_TILE[t] + 4
        ms = []
        for st in range(6):
            ms.append(lambda st=st: self.mfma(e, v(M_, 4), acc(A_XA + 24 * t + 4 * st, 4), v(V_ONES, 4), v(M_ if st else V_M1, 4)))
        for st in range(6):
            ms.append(lambda st=st: self.mfma(e, v(S_, 4), acc(A_XA + 24 * t + 4 * st, 4), v(V_QK + 4 * st, 4), v(S_ if st else V_S1, 4)))
        return ms

    def ssm(self, e, t):
        return (lambda: e("v_mfma_f32_16x16x4_f32 %s, %s, %s, %s" % (v(V_SS[t], 4), v(T + 2 + t), v(V_C192), v(V_EPS, 4))), 2)

    def dg(self, e, t):
        return self.diag(e, V_TILE[t] + 8, V_TILE[t] + 12, T + 2 + t)

    def phase_r(self, e, k, rho, extra):
        kind = "R%d" % rho
        base = rho * (L_R1 - L_R0)
        first = (k == 0 and rho == 0)
        if (k, rho) == (3, 0):
            self.tstamp(e, 3)
        e.wait_vm((kind, k))
        if k == 3:
            self.tstamp(e, 4 + 2 * rho)
        self.phase_stamp(e, 3 * k + 1 + rho)
        for t in range(2):
            for st in range(6):
                v0 = 24 * t + 4 * st
                e.lds(("xa", t, st), "ds_read_b128 %s, %s offset:%d" % (
                    acc(A_XA + 24 * t + 4 * st, 4), v(V_XA + ((v0 & 12) >> 2)), (v0 & ~15) * 16 + base))
        tr = []
        for n in range(12):
            for t in range(2):
                vv = 24 * t + 2 * n
                tr.append((lambda n=n, t=t, vv=vv: e.lds("xt", "ds_read_b64_tr_b16 %s, %s offset:%d" % (
                    acc(A_XT + 4 * n + 2 * t, 2), v(V_XT + ((vv & 14) >> 1)), (vv & ~15) * 16 + base)), 1))

        early = first and hasattr(self, "qk_get")
        if early:
            flush(tr)
            tr = []
            e.wait_ds_all()
            self.job_compute(e)
            self.first_push(e)
            self.qk_get(e)
            self.stamp(e, 3)

        gh, msq, ssm, dg = (lambda t, f=f: f(e, t) for f in (self.gh, self.msq, self.ssm, self.dg))
        left = weave(e, gh(0), tr, 0, 2)
        left = weave(e, msq(0), left + [(lambda: None, 0)] + dg(0) + [I(e, "s_nop 0"), I(e, "s_nop 0"), ssm(0)], 3 if not left else 0, 2)
        flush(left)
        e.wait_ds_all()
        if self.inner:
            self.stamp(e, 3)
        if not early:
            self.push(e, 3 * k + 1 + rho, "mid", extra)
        c0, l0 = self.soft_c(e, 0, first, rho)
        q0 = self.soft_a(e, 0) + self.soft_b(e, 0, first) + c0
        left = weave(e, gh(1), q0, 3, 2)
        nl = sum(c for _, c in left)
        pad = l0[:max(0, 8 - nl)]
        rest = l0[len(pad):]
        left = weave(e, msq(1), left + pad + dg(1) + rest[:2] + [ssm(1)] + rest[2:], 0, 2)
        flush(left)
        if self.inner:
            self.stamp(e, 4)
        c1, l1 = self.soft_c(e, 1, False, rho)
        flush(self.soft_a(e, 1) + self.soft_b(e, 1, False) + c1)
        for t in range(2):
            S_ = V_TILE[t]
            e("v_cvt_pk_bf16_f32 %s, %s, %s" % (v(V_P + 2 * t), v(S_), v(S_ + 1)))
            e("v_cvt_pk_bf16_f32 %s, %s, %s" % (v(V_P + 2 * t + 1), v(S_ + 2), v(S_ + 3)))
        if rho == 1:
            l1 = l1[8:] + [I(e, "v_cvt_pk_bf16_f32 %s, %s, %s" % (v(V_PFB), v(V_PF), v(V_PF + 1))),
                           I(e, "v_cvt_pk_bf16_f32 %s, %s, %s" % (v(V_PFB + 1), v(V_PF + 2), v(V_PF + 3)))] + l1[:8]
        if self.inner:
            self.stamp(e, 5)
        ms = [(lambda n=n: self.mfma(e, acc(A_O + 4 * n, 4), acc(A_XT + 4 * n, 4), v(V_P, 4),
                                     "0" if first else acc(A_O + 4 * n, 4))) for n in range(12)]
        flush(weave(e, ms, l1, 0, 2))
        if self.inner:
            self.stamp(e, 6)
        if rho == 1:
            for n in range(12):
                e("v_mfma_f32_16x16x16_bf16 %s, %s, %s, %s" % (
                    acc(A_O + 4 * n, 4), acc(A_FT + 2 * n, 2), v(V_PFB, 2), acc(A_O + 4 * n, 4)))
        if early:
            self.bg_flush()
        self.push(e, 3 * k + 1 + rho, "end", extra)

    def rare(self, e):
        for site, t in enumerate(self.sites):
            e("L_site%d:" % site)
            e("s_call_b64 %s, L_rare%d" % (s(S_RET, 2), t))
            e("s_branch L_back%d" % site)
        for tt in sorted(set(self.sites)):
            t = tt & 1
            r_ = Emit()
            r_("L_rare%d:" % tt)
            r_("s_nop 7")
            r_("s_nop 7")
            for sw in ("32", "16"):
                r_("v_mov_b32 %s, %s" % (v(T + 1), v(T)))
                r_("v_permlane%s_swap_b32 %s, %s" % (sw, v(T), v(T + 1)))
                r_("v_max_f32 %s, %s, %s" % (v(T), v(T), v(T + 1)))
            r_("v_max_f32 %s, 0, %s" % (v(T), v(T)))
            r_("v_sub_f32 %s, %s, %s" % (v(V_NEGM), v(V_NEGM), v(T)))
            for r in range(4):
                r_("v_sub_f32 %s, %s, %s" % (v(V_TILE[t] + r), v(V_TILE[t] + r), v(T)))
            r_("v_sub_f32 %s, 0, %s" % (v(T), v(T)))
            r_("v_exp_f32 %s, %s" % (v(T), v(T)))
            tgt = [V_L, V_PM] + [V_PF + r for r in range(4)]
            if t == 1:
                tgt += [V_TILE[0] + r for r in range(4)]
            for x in tgt:
                r_("v_mul_f32 %s, %s, %s" % (v(x), v(x), v(T)))
            if tt >= 2:
                self.rare_mark(r_)
            for n in range(48 if tt < 2 else 0):
                r_("v_accvgpr_read_b32 %s, %s" % (v(T + 1), acc(A_O + n)))
                r_("v_mul_f32 %s, %s, %s" % (v(T + 1), v(T + 1), v(T)))
                r_("v_accvgpr_write_b32 %s, %s" % (acc(A_O + n), v(T + 1)))
            r_("s_nop 3")
            r_("s_setpc_b64 %s" % s(S_RET, 2))
            for ln in fix_hazards(r_.lines, "rare"):
                e(ln)

    def finish_qk(self, e):
        e.wait_vm("qk")
        for st in range(6):
            self.mfma(e, v(V_SS[0], 4), v(V_ONES, 4), v(V_QK + 4 * st, 4), v(V_SS[0], 4) if st else "0")
        e("v_mul_f32 %s, %s, %s" % (v(V_CQ), fl(1.0 / 192), v(V_SS[0])))

    def epilogue(self, e):
        XW, RD, AR = V_E, V_E + 1, V_E + 2
        ST = 16
        OT = 76
        FV, LS, PS, ONE = 32, 36, 40, 44
        for n in range(12):
            e.lds("x1", "ds_write_b128 %s, %s offset:%d" % (v(AR), acc(A_O + 4 * n, 4), n * 1024))
        e.lds("x1", "ds_write_b128 %s, %s" % (v(AR + 1), v(V_NEGM, 4)))
        e("v_mov_b32 %s, 1.0" % v(ONE))
        e.wait_ds_all()
        e("s_barrier")
        self.tstamp(e, 8)
        for w in range(4):
            e.lds(("st", w), "ds_read_b128 %s, %s offset:%d" % (v(ST + 4 * w, 4), v(AR + 2), w * 1024))
        for w in range(4):
            for t in range(3):
                e.lds(("o", w), "ds_read_b128 %s, %s offset:%d" % (v(OT + 12 * w + 4 * t, 4), v(RD), w * 12288 + t * 1024))
        e.wait_ds(("st", 3))
        NM = T + 8
        e("v_min3_f32 %s, %s, %s, %s" % (v(NM), v(ST), v(ST + 4), v(ST + 8)))
        e("v_min_f32 %s, %s, %s" % (v(NM), v(NM), v(ST + 12)))
        for w in range(4):
            e("v_sub_f32 %s, %s, %s" % (v(FV + w), v(NM), v(ST + 4 * w)))
        for w in range(4):
            e("v_exp_f32 %s, %s" % (v(FV + w), v(FV + w)))
        e("v_mul_f32 %s, %s, %s" % (v(T), v(FV), v(ST + 1)))
        e("v_mul_f32 %s, %s, %s" % (v(T + 1), v(FV), v(ST + 2)))
        for w in range(1, 4):
            e("v_fmac_f32 %s, %s, %s" % (v(T), v(FV + w), v(ST + 4 * w + 1)))
            e("v_fmac_f32 %s, %s, %s" % (v(T + 1), v(FV + w), v(ST + 4 * w + 2)))
        e.wait_ds(("o", 0))
        for j in range(2):
            e("v_mul_f32 %s, %s, %s" % (v(OT + j), v(OT + j), v(FV)))
        e("v_mfma_f32_16x16x4_f32 %s, %s, %s, 0" % (v(LS, 4), v(ONE), v(T)))
        e("v_mfma_f32_16x16x4_f32 %s, %s, %s, 0" % (v(PS, 4), v(ONE), v(T + 1)))
        for j in range(2, 12):
            e("v_mul_f32 %s, %s, %s" % (v(OT + j), v(OT + j), v(FV)))
        for w in range(1, 4):
            e.wait_ds(("o", w))
            for j in range(12):
                e("v_fmac_f32 %s, %s, %s" % (v(OT + j), v(OT + 12 * w + j), v(FV + w)))
            if w == 1:
                e("v_rcp_f32 %s, %s" % (v(T + 2), v(LS)))
                e("v_log_f32 %s, %s" % (v(T + 3), v(LS)))
            if w == 2:
                e("v_mul_f32 %s, %s, %s" % (v(T + 4), v(V_C192), v(T + 2)))
                e("v_mul_f32 %s, %s, %s" % (v(T + 5), v(PS), v(T + 2)))
                e("v_sub_f32 %s, %s, %s" % (v(T + 3), v(T + 3), v(NM)))
        for j in range(12):
            e("v_fma_f32 %s, %s, %s, -%s" % (v(OT + j), v(OT + j), v(T + 4), v(T + 5)))
        for t in range(3):
            e("v_cvt_pk_bf16_f32 %s, %s, %s" % (v(OT + 12 + 2 * t), v(OT + 4 * t), v(OT + 4 * t + 1)))
            e("v_cvt_pk_bf16_f32 %s, %s, %s" % (v(OT + 13 + 2 * t), v(OT + 4 * t + 2), v(OT + 4 * t + 3)))
            e.lds("x2", "ds_write_b64 %s, %s offset:%d" % (v(XW), v(OT + 12 + 2 * t, 2), t * 512))
        if hasattr(self.a, "nmid"):
            e.wait_vm_all()
        e.wait_vm("wvo")
        e.wait_ds_all()
        e("s_barrier")
        self.tstamp(e, 9)
        B = V_QK
        for st in range(6):
            e.lds(("b", st), "ds_read_b128 %s, %s offset:%d" % (v(B + 4 * st, 4), v(AR + 3), st * 1024))
        D = 16
        for st in range(6):
            e.wait_ds(("b", st))
            for t in range(3):
                self.mfma(e, v(D + 4 * t, 4), v(V_W + (t * 6 + st) * 4, 4), v(B + 4 * st, 4), v(D + 4 * t, 4) if st else "0")
        self.publish(e, D, T + 3)

    def publish(self, e, D, LAM):
        AR = V_E + 2
        O_ = 32
        e("v_mov_b32 %s, %s" % (v(O_ + 3), v(T + 3)))
        e("v_mov_b32 %s, %s" % (v(O_ + 7), v(T + 3)))
        for j in range(6):
            e("v_cvt_pk_bf16_f32 %s, %s, %s" % (v(O_ + j + j // 3), v(D + 2 * j), v(D + 2 * j + 1)))
        e.vmem("out", "buffer_store_dwordx4 %s, %s, %s, %s offen" % (v(O_, 4), v(AR + 4), s(R_WS, 4), s(S_T0)))
        e.vmem("out", "buffer_store_dwordx4 %s, %s, %s, %s offen offset:64" % (v(O_ + 4, 4), v(AR + 4), s(R_WS, 4), s(S_T0)))

    def epilogue_addrs(self, e):
        XW, RD, AR = V_E, V_E + 1, V_E + 2
        self.xch_write_addr(e, XW, L_XA)
        e("s_mul_i32 %s, %s, 3072" % (s(S_T0), s(S_WAVE)))
        e("s_add_u32 %s, %s, %d" % (s(S_T0), s(S_T0), L_R0))
        e("v_add_u32 %s, %s, %s" % (v(RD), s(S_T0), v(V_LANE16)))
        e("v_add_u32 %s, %s, %s" % (v(AR), s(S_LR0), v(V_LANE16)))
        e("s_lshl_b32 %s, %s, 10" % (s(S_T0), s(S_WAVE)))
        e("v_add_u32 %s, %d, %s" % (v(AR + 2), L_ST, v(V_LANE16)))
        e("v_add_u32 %s, %s, %s" % (v(AR + 1), s(S_T0), v(AR + 2)))
        e("v_add_u32 %s, %d, %s" % (v(AR + 3), L_XA, v(V_LANE16)))
        e("v_and_b32 %s, 15, v0" % v(T))
        e("v_lshlrev_b32 %s, 17, %s" % (v(T), v(T)))
        e("v_and_b32 %s, 48, v0" % v(T + 1))
        e("v_add_u32 %s, %s, %s" % (v(AR + 4), v(T), v(T + 1)))

    def code_prefetch(self, e, start, end):
        e("s_getpc_b64 %s" % s(S_RET, 2))
        e("L_pc_%s:" % start)
        e("v_lshlrev_b32 %s, 7, v0" % v(V_JUNK + 1))
        e("v_min_u32 %s, %s - L_pc_%s - 4, %s" % (v(V_JUNK + 1), end, start, v(V_JUNK + 1)))
        e.vmem("pf", "global_load_dword %s, %s, %s" % (v(V_JUNK), v(V_JUNK + 1), s(S_RET, 2)))

    def write_stamps(self, e):
        if not self.a.stamps:
            return
        n = getattr(self, "nslots", 12)
        e.wait_ds_all()
        e("s_getreg_b32 %s, hwreg(HW_REG_XCC_ID)" % s(S_T1))
        for j in range(n):
            src = s(S_STAMP + 2 * j) if j < self.nstamp else "0"
            if j == n - 1:
                src = s(S_T1)
            src = getattr(self, "slotsrc", {}).get(j, src)
            e("v_mov_b32 %s, %s" % (v(200 + j), src))
        e("s_lshl_b32 %s, s2, 2" % s(S_T1))
        e("s_add_u32 %s, %s, %s" % (s(S_T1), s(S_T1), s(S_WAVE)))
        e("s_mul_i32 %s, %s, %d" % (s(S_T1), s(S_T1), n * 4))
        e("s_add_u32 %s, %s, %d" % (s(S_T1), s(S_T1), WS_STAMP))
        e("v_mov_b32 %s, 0" % v(T))
        e("v_cmp_eq_u32 vcc, 0, v0")
        e("s_and_saveexec_b64 %s, vcc" % s(S_RET, 2))
        for j in range(n // 4):
            e("buffer_store_dwordx4 %s, %s, %s, %s offen offset:%d" % (v(200 + 4 * j, 4), v(T), s(R_WS, 4), s(S_T1), 16 * j))

    def k_main(self):
        e = Emit()
        self.sites = []
        self.nstamp = 0
        e("s_cmp_ge_u32 s2, 256")
        e("s_cbranch_scc1 L_main_end")
        e("s_load_dwordx16 s[4:19], s[0:1], 0")
        e("s_load_dwordx4 s[20:23], s[0:1], 64")
        self.code_prefetch(e, "main", "L_main_codeend")
        self.lane_ids(e)
        self.dma_f_offsets(e)
        self.dma_r_offsets(e)
        e("s_mul_i32 %s, %s, 6144" % (s(S_OF), s(S_WAVE)))
        e("s_mul_i32 %s, %s, 12288" % (s(S_OR), s(S_WAVE)))
        e("s_add_u32 %s, %s, %d" % (s(S_LF), s(S_OF), L_F))
        e("s_add_u32 %s, %s, %d" % (s(S_LR0), s(S_OR), L_R0))
        e("s_add_u32 %s, %s, %d" % (s(S_LR1), s(S_OR), L_R1))
        e("s_mul_i32 %s, s2, 393216" % s(S_T0))
        e("s_mul_i32 %s, s2, 98304" % s(S_T1))
        if self.a.stamps == "ph":
            self.stamp(e, 0)
        e("s_waitcnt lgkmcnt(0)")
        srd(e, R_F1, S_F1, 98304, s(S_T1))
        srd(e, R_F0, S_F0, 393216, s(S_T0))
        srd(e, R_WS, S_WS, WS_SIZE)
        if self.a.stamps != "ph":
            self.stamp(e, 0)
        cyc = self.a.stamps == "cyc"
        if cyc:
            self.stamp(e, 1)
        self.issue(e, "F", 0, [])
        e("s_movk_i32 %s, 0x1000" % s(S_T0))
        for st in range(6):
            e.vmem("qk", "buffer_load_dwordx4 %s, %s, %s, %s offen offset:%d" % (
                v(V_QK + 4 * st, 4), v(V_LANE16), s(R_WS, 4), s(S_T0) if st >= 4 else "0", WS_QK + (st % 4) * 1024))
        self.issue(e, "R0", 0, [])
        self.lds_read_addrs(e)
        self.consts(e)
        self.epilogue_addrs(e)
        e("s_mov_b32 %s, %s" % (s(S_THR), fl(THR)))
        if self.a.push not in ("end2", "mid2", "mixf"):
            self.issue(e, "R1", 0, [])
        if not cyc:
            self.stamp(e, 1)
        e("s_mul_i32 %s, %s, 18432" % (s(60), s(S_WAVE)))
        extra = []
        for j in range(18):
            def ld(j=j):
                if j % 4 == 0:
                    e("s_add_u32 %s, %s, %d" % (s(61), s(60), WS_WVO + j * 1024))
                e.vmem("wvo", "buffer_load_dwordx4 %s, %s, %s, %s offen offset:%d" % (
                    v(V_W + 4 * j, 4), v(V_LANE16), s(R_WS, 4), s(61), (j % 4) * 1024))
            extra.append(ld)
        for k in range(4):
            self.phase_f(e, k, extra if k > 0 else [])
            if k == 0 and not cyc:
                self.stamp(e, 2)
            self.phase_r(e, k, 0, extra)
            if k == 3:
                if not cyc:
                    self.stamp(e, 5)
                e.wait_vm(("R1", 3))
                self.stamp(e, 2 if cyc else 6)
            self.inner = cyc and k == 3
            self.phase_r(e, k, 1, extra)
            self.inner = False
            if k in (0, 1) and not cyc:
                self.stamp(e, 3 + k)
        assert not extra
        self.stamp(e, 7)
        e("s_lshl_b32 %s, %s, 15" % (s(S_T0), s(S_WAVE)))
        e("s_lshl_b32 %s, s2, 7" % s(S_T1))
        e("s_add_u32 %s, %s, %s" % (s(S_T0), s(S_T0), s(S_T1)))
        e("s_add_u32 %s, %s, %d" % (s(S_T0), s(S_T0), WS_PART))
        self.epilogue(e)
        self.stamp(e, 8)
        if self.a.stamps:
            e("s_waitcnt vmcnt(0)")
            self.stamp(e, 9)
            self.stamp(e, 10)
        self.write_stamps(e)
        e("L_main_end:")
        e("s_endpgm")
        e.lines = fix_hazards(e.lines, "main", self.a.verbose)
        self.rare(e)
        e("L_main_codeend:")
        return e.lines

    def k_prep(self):
        e = Emit()
        e("s_cmp_ge_u32 s2, 25")
        e("s_cbranch_scc1 L_prep_end")
        e("s_load_dwordx16 s[4:19], s[0:1], 0")
        e("s_load_dwordx4 s[20:23], s[0:1], 64")
        self.lane_ids(e)
        e("s_waitcnt lgkmcnt(0)")
        srd(e, R_WS, S_WS, WS_SIZE)
        e("s_cmp_eq_u32 s2, 24")
        e("s_cbranch_scc1 L_prep_qk")
        e("s_cmp_lg_u32 %s, 0" % s(S_WAVE))
        e("s_cbranch_scc1 L_prep_end")
        head = e.lines
        a = Emit()
        self.wvo_role(a)
        a("s_endpgm")
        b = Emit()
        b("L_prep_qk:")
        self.qk_role(b)
        b("L_prep_end:")
        b("s_endpgm")
        return fix_hazards(head + a.lines, "prep_wvo", self.a.verbose) + fix_hazards(b.lines, "prep_qk", self.a.verbose)

    def wvo_role(self, e):
        SW, SS_ = 62, 63
        e("s_mul_i32 %s, s2, 43" % s(SW))
        e("s_lshr_b32 %s, %s, 8" % (s(SW), s(SW)))
        e("s_mul_i32 %s, %s, 6" % (s(S_T0), s(SW)))
        e("s_sub_u32 %s, s2, %s" % (s(SS_), s(S_T0)))
        srd(e, R_A, S_WV, 73728)
        srd(e, R_B, S_WO, 73728)
        DO, WA, AV, BF, D = 16, 20, 184, 76, 160
        for e0 in range(3):
            e("v_add_u32 %s, %d, v0" % (v(T), 64 * e0))
            e("v_mul_u32_u24 %s, 10923, %s" % (v(T), v(T)))
            e("v_lshrrev_b32 %s, 16, %s" % (v(T), v(T)))
            e("v_mul_u32_u24 %s, 288, %s" % (v(T), v(T)))
            e("v_add_u32 %s, %s, %s" % (v(DO + e0), v(T), v(V_LANE16)))
        e("s_mul_i32 %s, %s, 96" % (s(S_T1), s(SW)))
        for j in range(18):
            if j % 3 == 0:
                e("s_mov_b32 m0, %d" % (L_SP + j * 1024))
                if j:
                    e("s_add_u32 %s, %s, 12288" % (s(S_T1), s(S_T1)))
                else:
                    e("s_nop 0")
            e.vmem("wo", "buffer_load_dwordx4 %s, %s, %s offen offset:%d lds" % (v(DO + j % 3), s(R_B, 4), s(S_T1), (j % 3) * 1024))
        e("v_bfe_u32 %s, v0, 2, 2" % v(T))
        e("v_and_b32 %s, 3, v0" % v(T + 1))
        e("v_lshl_add_u32 %s, %s, 3, %s" % (v(T), v(T), v(T + 1)))
        e("v_mul_u32_u24 %s, 384, %s" % (v(T), v(T)))
        e("v_and_b32 %s, 48, v0" % v(T + 1))
        e("v_add_u32 %s, %s, %s" % (v(WA), v(T), v(T + 1)))
        e("s_mul_i32 %s, %s, 12288" % (s(S_T2), s(SS_)))
        for h in range(2):
            for k in range(6):
                e.vmem("wv", "buffer_load_dwordx4 %s, %s, %s, %s offen offset:%d" % (
                    v(AV + (h * 6 + k) * 4, 4), v(WA), s(R_A, 4), s(S_T2), h * 1536 + k * 64))
        e("v_lshrrev_b32 %s, 4, v0" % v(T))
        e("v_bfe_u32 %s, v0, 2, 2" % v(T + 1))
        e("v_lshl_add_u32 %s, %s, 3, %s" % (v(T), v(T), v(T + 1)))
        e("v_mul_u32_u24 %s, 96, %s" % (v(T), v(T)))
        e("v_and_b32 %s, 3, v0" % v(T + 1))
        e("v_mul_u32_u24 %s, 24, %s" % (v(T + 1), v(T + 1)))
        e("v_add_u32 %s, %s, %s" % (v(T), v(T), v(T + 1)))
        e("v_add_u32 %s, %d, %s" % (v(WA + 1), L_SP, v(T)))
        e.wait_vm("wo")
        for t in range(3):
            for k in range(6):
                for h in range(2):
                    e.lds(("b", t, k), "ds_read_b64_tr_b16 %s, %s offset:%d" % (
                        v(BF + (t * 6 + k) * 4 + 2 * h, 2), v(WA + 1), (32 * k + 4 * h) * 96 + 8 * t))
        e.wait_vm("wv")
        for t in range(3):
            for k in range(6):
                e.wait_ds(("b", t, k))
                for h in range(2):
                    d = D + (t * 2 + h) * 4
                    self.mfma(e, v(d, 4), v(AV + (h * 6 + k) * 4, 4), v(BF + (t * 6 + k) * 4, 4), v(d, 4) if k else "0")
        e("s_mul_i32 %s, %s, 18432" % (s(S_T0), s(SW)))
        e("s_lshl_b32 %s, %s, 10" % (s(S_T1), s(SS_)))
        e("s_add_u32 %s, %s, %s" % (s(S_T0), s(S_T0), s(S_T1)))
        e("s_add_u32 %s, %s, %d" % (s(S_T0), s(S_T0), WS_WVO))
        for t in range(3):
            for j in range(4):
                e("v_cvt_pk_bf16_f32 %s, %s, %s" % (v(AV + 4 * t + j), v(D + t * 8 + 2 * j), v(D + t * 8 + 2 * j + 1)))
            e.vmem("st", "buffer_store_dwordx4 %s, %s, %s, %s offen" % (v(AV + 4 * t, 4), v(V_LANE16), s(R_WS, 4), s(S_T0)))
            if t < 2:
                e("s_add_u32 %s, %s, 6144" % (s(S_T0), s(S_T0)))

    def qk_role(self, e):
        QF, AF, KF, D, CS, XW, RA = 136, 160, 76, 16, 28, 40, 44
        srd(e, R_A, S_WQ, 73728)
        srd(e, R_B, S_WK, 73728)
        srd(e, R_C, S_Q, 6144)
        self.dma_f_offsets(e)
        e("s_mul_i32 %s, %s, 18432" % (s(S_T1), s(S_WAVE)))
        for j in range(18):
            ee = j % 6
            if ee == 0 and j:
                e("s_add_u32 %s, %s, 6144" % (s(S_T1), s(S_T1)))
            if ee % 4 == 0:
                e("s_add_u32 m0, %s, %d" % (s(S_T1), L_R1 + ee * 1024))
                e("s_nop 0")
            e.vmem("wq", "buffer_load_dwordx4 %s, %s, %s offen offset:%d lds" % (v(V_DF + ee), s(R_A, 4), s(S_T1), (ee % 4) * 1024))
        e("v_and_b32 %s, 15, v0" % v(T))
        e("v_mul_u32_u24 %s, 384, %s" % (v(T), v(T)))
        e("v_and_b32 %s, 48, v0" % v(T + 1))
        e("v_add_u32 %s, %s, %s" % (v(RA), v(T), v(T + 1)))
        for k in range(6):
            e.vmem("q", "buffer_load_dwordx4 %s, %s, %s, 0 offen offset:%d" % (v(QF + 4 * k, 4), v(RA), s(R_C, 4), 64 * k))
        e("s_mul_i32 %s, %s, 18432" % (s(S_T1), s(S_WAVE)))
        for t in range(3):
            for k in range(6):
                e.vmem("wk", "buffer_load_dwordx4 %s, %s, %s, %s offen offset:%d" % (
                    acc(KF + (t * 6 + k) * 4, 4), v(RA), s(R_B, 4), s(S_T1), 64 * k))
            if t < 2:
                e("s_add_u32 %s, %s, 6144" % (s(S_T1), s(S_T1)))
        self.consts(e)
        self.xch_write_addr(e, XW, L_XA)
        TA = 46
        e("v_lshrrev_b32 %s, 4, v0" % v(T))
        e("v_bfe_u32 %s, v0, 2, 2" % v(T + 1))
        e("v_lshl_add_u32 %s, %s, 3, %s" % (v(T + 2), v(T), v(T + 1)))
        e("v_mul_u32_u24 %s, 384, %s" % (v(T + 2), v(T + 2)))
        e("v_and_b32 %s, 1, v0" % v(T + 3))
        e("v_lshl_add_u32 %s, %s, 3, %s" % (v(T + 2), v(T + 3), v(T + 2)))
        e("v_add_u32 %s, %d, %s" % (v(T + 2), L_R1, v(T + 2)))
        e("v_and_b32 %s, 2, %s" % (v(T + 1), v(T + 1)))
        e("v_and_or_b32 %s, %s, 1, %s" % (v(T + 1), v(T), v(T + 1)))
        e("v_bfe_u32 %s, v0, 1, 1" % v(T + 3))
        e("v_xor_b32 %s, %s, %s" % (v(T + 1), v(T + 1), v(T + 3)))
        e("s_mul_i32 %s, %s, 6" % (s(S_T0), s(S_WAVE)))
        for t in range(3):
            e("s_add_u32 %s, %s, %d" % (s(S_T1), s(S_T0), 2 * t))
            e("v_xor_b32 %s, %s, %s" % (v(T + 3), s(S_T1), v(T + 1)))
            e("v_lshl_add_u32 %s, %s, 4, %s" % (v(TA + 2 * t), v(T + 3), v(T + 2)))
            e("v_xor_b32 %s, 64, %s" % (v(TA + 2 * t + 1), v(TA + 2 * t)))
        e.wait_vm("q")
        G_, M_, SQ = 88, 92, 96
        for k in range(6):
            self.mfma(e, v(G_, 4), v(QF + 4 * k, 4), v(QF + 4 * k, 4), v(G_, 4) if k else "0")
            self.mfma(e, v(M_, 4), v(V_ONES, 4), v(QF + 4 * k, 4), v(M_, 4) if k else "0")
        e("s_barrier")
        for t in range(3):
            for k in range(6):
                for h in range(2):
                    e.lds(("a", t, k), "ds_read_b64_tr_b16 %s, %s offset:%d" % (
                        v(AF + (t * 6 + k) * 4 + 2 * h, 2), v(TA + 2 * t + h), 12288 * k + 1536 * h))
        flush(self.diag(e, G_, None, T + 2))
        e("v_mfma_f32_16x16x4_f32 %s, %s, %s, %s" % (v(SQ, 4), v(V_C192), v(T + 2), v(V_EPS, 4)))
        for t in range(3):
            for k in range(6):
                e.wait_ds(("a", t, k))
                af = v(AF + (t * 6 + k) * 4, 4)
                self.mfma(e, v(D + 4 * t, 4), af, v(QF + 4 * k, 4), v(D + 4 * t, 4) if k else "0")
                self.mfma(e, v(CS + 4 * t, 4), af, v(V_ONES, 4), v(CS + 4 * t, 4) if k else "0")
        e("v_fma_f32 %s, -%s, %s, %s" % (v(T + 4), v(M_), v(M_), v(SQ)))
        e("v_max_f32 %s, %s, %s" % (v(T + 4), v(T + 4), v(V_EPS)))
        e("v_rsq_f32 %s, %s" % (v(T + 4), v(T + 4)))
        e("v_mul_f32 %s, %s, %s" % (v(T + 5), fl(1.0 / 192), v(M_)))
        e("v_mul_f32 %s, %s, %s" % (v(T + 4), v(V_C192), v(T + 4)))
        for j in range(12):
            e("v_fma_f32 %s, -%s, %s, %s" % (v(D + j), v(T + 5), v(CS + j), v(D + j)))
        for j in range(12):
            e("v_mul_f32 %s, %s, %s" % (v(D + j), v(D + j), v(T + 4)))
        for t in range(3):
            e("v_cvt_pk_bf16_f32 %s, %s, %s" % (v(CS + 2 * t), v(D + 4 * t), v(D + 4 * t + 1)))
            e("v_cvt_pk_bf16_f32 %s, %s, %s" % (v(CS + 2 * t + 1), v(D + 4 * t + 2), v(D + 4 * t + 3)))
            e.lds("x", "ds_write_b64 %s, %s offset:%d" % (v(XW), v(CS + 2 * t, 2), t * 512))
        e("v_add_u32 %s, %d, %s" % (v(T + 6), L_XA, v(V_LANE16)))
        e.wait_ds_all()
        e("s_barrier")
        for k in range(6):
            e.lds(("b", k), "ds_read_b128 %s, %s offset:%d" % (v(QF + 4 * k, 4), v(T + 6), 1024 * k))
        e.wait_vm("wk")
        for k in range(6):
            e.wait_ds(("b", k))
            for t in range(3):
                self.mfma(e, v(D + 4 * t, 4), acc(KF + (t * 6 + k) * 4, 4), v(QF + 4 * k, 4), v(D + 4 * t, 4) if k else "0")
        for j in range(12):
            e("v_mul_f32 %s, %s, %s" % (v(D + j), fl(QSCALE), v(D + j)))
        for t in range(3):
            e("v_cvt_pk_bf16_f32 %s, %s, %s" % (v(CS + 2 * t), v(D + 4 * t), v(D + 4 * t + 1)))
            e("v_cvt_pk_bf16_f32 %s, %s, %s" % (v(CS + 2 * t + 1), v(D + 4 * t + 2), v(D + 4 * t + 3)))
            e.lds("x", "ds_write_b64 %s, %s offset:%d" % (v(XW), v(CS + 2 * t, 2), (L_XB - L_XA) + t * 512))
        e("v_lshrrev_b32 %s, 5, v0" % v(T))
        e("v_bfe_u32 %s, v0, 4, 1" % v(T + 1))
        e("v_lshl_or_b32 %s, %s, 1, %s" % (v(T), v(T + 1), v(T)))
        e("v_and_b32 %s, 15, v0" % v(T + 1))
        e("v_lshlrev_b32 %s, 4, %s" % (v(T + 1), v(T + 1)))
        e("v_lshl_add_u32 %s, %s, 8, %s" % (v(T), v(T), v(T + 1)))
        e("v_add_u32 %s, %d, %s" % (v(T), L_XB, v(T)))
        e.wait_ds_all()
        e("s_barrier")
        e("s_cmp_lg_u32 %s, 0" % s(S_WAVE))
        e("s_cbranch_scc1 L_prep_end")
        for k in range(6):
            e.lds("c", "ds_read_b128 %s, %s offset:%d" % (v(QF + 4 * k, 4), v(T), 1024 * k))
        e.wait_ds_all()
        e("s_movk_i32 %s, 0x1000" % s(S_T0))
        for k in range(6):
            e.vmem("st", "buffer_store_dwordx4 %s, %s, %s, %s offen offset:%d" % (
                v(QF + 4 * k, 4), v(V_LANE16), s(R_WS, 4), s(S_T0) if k >= 4 else "0", WS_QK + (k % 4) * 1024))

    def k_comb(self):
        e = Emit()
        DT, LAM, AC, X = 16, 48, 56, 64
        e("s_cmp_ge_u32 s2, 64")
        e("s_cbranch_scc1 L_comb_end")
        e("s_load_dwordx2 s[4:5], s[0:1], 0")
        e("s_load_dwordx2 s[18:19], s[0:1], 56")
        e("s_load_dwordx2 s[22:23], s[0:1], 72")
        self.lane_ids(e)
        e("s_lshl_b32 %s, s2, 15" % s(S_T0))
        e("s_lshl_b32 %s, %s, 13" % (s(S_T1), s(S_WAVE)))
        e("s_add_u32 %s, %s, %s" % (s(S_T0), s(S_T0), s(S_T1)))
        e("s_add_u32 %s, %s, %d" % (s(S_T0), s(S_T0), WS_PART))
        e("s_add_u32 %s, %s, 4096" % (s(S_T1), s(S_T0)))
        e("s_waitcnt lgkmcnt(0)")
        srd(e, R_WS, S_WS, WS_SIZE)
        for t in range(8):
            e.vmem(("d", t), "buffer_load_dwordx4 %s, %s, %s, %s offen offset:%d" % (
                v(DT + 4 * t, 4), v(V_LANE16), s(R_WS, 4), s(S_T0 + t // 4), (t % 4) * 1024))
        srd(e, R_A, S_Q, 6144)
        srd(e, R_B, S_OUT, 6144)
        e("v_mul_u32_u24 %s, 43, v0" % v(T))
        e("v_lshrrev_b32 %s, 7, %s" % (v(T), v(T)))
        e("v_mul_u32_u24 %s, 3, %s" % (v(T + 1), v(T)))
        e("v_sub_u32 %s, v0, %s" % (v(T + 1), v(T + 1)))
        e("v_and_b32 %s, 3, %s" % (v(T + 2), v(T)))
        e("v_mul_u32_u24 %s, 6, %s" % (v(T + 2), v(T + 2)))
        e("v_lshrrev_b32 %s, 2, %s" % (v(T + 3), v(T)))
        e("v_mul_u32_u24 %s, 3, %s" % (v(T + 3), v(T + 3)))
        e("v_add3_u32 %s, %s, %s, %s" % (v(T + 2), v(T + 2), v(T + 3), v(T + 1)))
        e("v_lshlrev_b32 %s, 2, %s" % (v(T + 2), v(T + 2)))
        e("v_lshlrev_b32 %s, 5, %s" % (v(T), v(T)))
        e("v_lshl_add_u32 %s, %s, 3, %s" % (v(T + 4), v(T + 1), v(T)))
        e("v_cmp_gt_u32 vcc, 24, v0")
        e("v_mov_b32 %s, 0x10000" % v(T + 3))
        e("s_mul_i32 %s, s2, 96" % s(S_T2))
        e("v_cndmask_b32 %s, %s, %s, vcc" % (v(T + 2), v(T + 3), v(T + 2)))
        e.vmem("q", "buffer_load_dword %s, %s, %s, %s offen" % (v(T + 5), v(T + 2), s(R_A, 4), s(S_T2)))
        e.wait_vm(("d", 7))
        MX = T + 6
        e("v_max3_f32 %s, %s, %s, %s" % (v(MX), v(DT + 3), v(DT + 7), v(DT + 11)))
        e("v_max3_f32 %s, %s, %s, %s" % (v(MX), v(MX), v(DT + 15), v(DT + 19)))
        e("v_max3_f32 %s, %s, %s, %s" % (v(MX), v(MX), v(DT + 23), v(DT + 27)))
        e("v_max_f32 %s, %s, %s" % (v(MX), v(MX), v(DT + 31)))
        e("v_max_f32_dpp %s, %s, %s row_ror:8 row_mask:0xf bank_mask:0xf" % (v(MX), v(MX), v(MX)))
        for sw in ("32", "16"):
            e("v_mov_b32 %s, %s" % (v(MX + 1), v(MX)))
            e("v_permlane%s_swap_b32 %s, %s" % (sw, v(MX), v(MX + 1)))
            e("v_max_f32 %s, %s, %s" % (v(MX), v(MX), v(MX + 1)))
        for t in range(8):
            e("v_sub_f32 %s, %s, %s" % (v(LAM + t), v(DT + 4 * t + 3), v(MX)))
        for t in range(8):
            e("v_exp_f32 %s, %s" % (v(LAM + t), v(LAM + t)))
        for t in range(8):
            for j in range(3):
                e("v_lshlrev_b32 %s, 16, %s" % (v(X + 2 * j), v(DT + 4 * t + j)))
                e("v_and_b32 %s, 0xffff0000, %s" % (v(X + 2 * j + 1), v(DT + 4 * t + j)))
            for j in range(6):
                e("%s %s, %s, %s" % ("v_fmac_f32" if t else "v_mul_f32", v(AC + j), v(X + j), v(LAM + t)))
            if t:
                e("v_add_f32 %s, %s, %s" % (v(LAM), v(LAM), v(LAM + t)))
        e("v_mov_b32 %s, %s" % (v(AC + 6), v(LAM)))
        e("v_mov_b32 %s, %s" % (v(AC + 7), v(MX)))
        for j in range(7):
            e("v_add_f32_dpp %s, %s, %s row_ror:8 row_mask:0xf bank_mask:0xf" % (v(AC + j), v(AC + j), v(AC + j)))
        for sw in ("16", "32"):
            for j in range(7):
                e("v_mov_b32 %s, %s" % (v(X + j), v(AC + j)))
            for j in range(7):
                e("v_permlane%s_swap_b32 %s, %s" % (sw, v(AC + j), v(X + j)))
            for j in range(7):
                e("v_add_f32 %s, %s, %s" % (v(AC + j), v(AC + j), v(X + j)))
        e("v_lshlrev_b32 %s, 5, v0" % v(X))
        e("s_lshl_b32 %s, %s, 8" % (s(S_T0), s(S_WAVE)))
        e("v_add_u32 %s, %s, %s" % (v(X), s(S_T0), v(X)))
        e("s_mov_b64 exec, 0xff")
        e.lds("w", "ds_write_b128 %s, %s" % (v(X), v(AC, 4)))
        e.lds("w", "ds_write_b128 %s, %s offset:16" % (v(X), v(AC + 4, 4)))
        e("s_mov_b64 exec, -1")
        e.wait_ds_all()
        e("s_barrier")
        e("s_cmp_lg_u32 %s, 0" % s(S_WAVE))
        e("s_cbranch_scc1 L_comb_end")
        e("v_and_b32 %s, 0xff, %s" % (v(T + 4), v(T + 4)))
        e("v_mov_b32 %s, 24" % v(T))
        for w in range(4):
            e.lds("r", "ds_read_b64 %s, %s offset:%d" % (v(DT + 2 * w, 2), v(T + 4), 256 * w))
            e.lds("r", "ds_read_b64 %s, %s offset:%d" % (v(DT + 8 + 2 * w, 2), v(T), 256 * w))
        e.wait_ds_all()
        e("v_max3_f32 %s, %s, %s, %s" % (v(MX), v(DT + 9), v(DT + 11), v(DT + 13)))
        e("v_max_f32 %s, %s, %s" % (v(MX), v(MX), v(DT + 15)))
        for w in range(4):
            e("v_sub_f32 %s, %s, %s" % (v(LAM + w), v(DT + 9 + 2 * w), v(MX)))
        for w in range(4):
            e("v_exp_f32 %s, %s" % (v(LAM + w), v(LAM + w)))
        for w in range(4):
            op = "v_fmac_f32" if w else "v_mul_f32"
            e("%s %s, %s, %s" % (op, v(AC + 2), v(DT + 8 + 2 * w), v(LAM + w)))
            e("%s %s, %s, %s" % (op, v(AC), v(DT + 2 * w), v(LAM + w)))
            e("%s %s, %s, %s" % (op, v(AC + 1), v(DT + 2 * w + 1), v(LAM + w)))
        e("v_rcp_f32 %s, %s" % (v(AC + 2), v(AC + 2)))
        e.wait_vm("q")
        e("v_lshlrev_b32 %s, 16, %s" % (v(X), v(T + 5)))
        e("v_and_b32 %s, 0xffff0000, %s" % (v(X + 1), v(T + 5)))
        e("v_fmac_f32 %s, %s, %s" % (v(X), v(AC), v(AC + 2)))
        e("v_fmac_f32 %s, %s, %s" % (v(X + 1), v(AC + 1), v(AC + 2)))
        e("v_cvt_pk_bf16_f32 %s, %s, %s" % (v(X), v(X), v(X + 1)))
        e.vmem("o", "buffer_store_dword %s, %s, %s, %s offen" % (v(X), v(T + 2), s(R_B, 4), s(S_T2)))
        e("L_comb_end:")
        e("s_endpgm")
        return fix_hazards(e.lines, "comb", self.a.verbose)

    def k_touch(self):
        e = Emit()
        e("s_load_dwordx16 s[4:19], s[0:1], 0")
        e("s_load_dwordx4 s[20:23], s[0:1], 64")
        e("v_lshlrev_b32 v1, 19, v0")
        e("v_lshlrev_b32 v2, 7, v0")
        e("v_lshlrev_b32 v3, 14, v0")
        e("s_waitcnt lgkmcnt(0)")
        lvl = self.a.touch
        if "f" in lvl:
            srd(e, 24, S_F0, 100663296)
            srd(e, 28, S_F1, 25165824)
            e("buffer_load_dword v4, v1, s[24:27], 0 offen nt")
            e("buffer_load_dword v5, v1, s[28:31], 0 offen nt")
        if "w" in lvl:
            for j, p in enumerate([S_Q, S_WQ, S_WK, S_WV, S_WO, S_OUT]):
                srd(e, 32 + 4 * j, p, 128)
                e("buffer_load_dword v%d, v2, %s, 0 offen" % (6 + j, s(32 + 4 * j, 4)))
            srd(e, 60, S_WS, WS_SIZE)
            e("buffer_load_dword v12, v3, s[60:63], 0 offen nt")
        e("s_waitcnt vmcnt(0)")
        e("s_endpgm")
        return e.lines

    def build(self):
        ks = [("prep_kernel", self.k_prep(), 25, L_END, 256, 512),
              ("main_kernel", self.k_main(), 256, L_END, 256, 448),
              ("comb_kernel", self.k_comb(), 64, 1024, 72, 72)]
        o = [HDR]
        if self.a.empty_first:
            ks = [("nil0_kernel", ["s_endpgm"], 1, 0, 8, 8)] + ks
        if self.a.touch:
            ks = [("touch_kernel", self.k_touch(), 64, 0, 16, 16)] + ks
        if self.a.empty_last:
            ks = ks + [("nil1_kernel", ["s_endpgm"], 1, 0, 8, 8)]
        for n, _, g, lds, _, _ in ks:
            for _ in range(2 if n.startswith(self.a.repeat or "-") else 1):
                o.append("; @launch kernel=%s grid=(%d,1,1) block=(256,1,1) lds=%d" % (n, g, lds))
        o.append('.amdgcn_target "amdgcn-amd-amdhsa--gfx950"')
        o.append(".text")
        for n, lines, _, _, _, _ in ks:
            o.append(".p2align 8")
            o.append("%s:" % n)
            o += [("    " + x if not x.endswith(":") else x) for x in lines]
        o.append('.section .rodata,"a"')
        for n, _, _, _, ao, nv in ks:
            o.append(".p2align 6")
            o.append(".amdhsa_kernel %s" % n)
            o.append("  .amdhsa_next_free_vgpr %d" % nv)
            o.append("  .amdhsa_next_free_sgpr 102")
            o.append("  .amdhsa_accum_offset %d" % ao)
            o.append("  .amdhsa_group_segment_fixed_size 0")
            o.append("  .amdhsa_kernarg_size 80")
            o.append("  .amdhsa_user_sgpr_count 2")
            o.append("  .amdhsa_user_sgpr_kernarg_segment_ptr 1")
            o.append("  .amdhsa_system_sgpr_workgroup_id_x 1")
            o.append("  .amdhsa_float_denorm_mode_32 3")
            o.append(".end_amdhsa_kernel")
        return "\n".join(o) + "\n"


if __name__ == "__main__":
    ap = argparse.ArgumentParser()
    ap.add_argument("-o", default="v1.s")
    ap.add_argument("--pol", default="nt")
    ap.add_argument("--stamps", default=None)
    ap.add_argument("--verbose", action="store_true")
    ap.add_argument("--repeat", default=None)
    ap.add_argument("--bar", default="none")
    ap.add_argument("--push", default="mid3")
    ap.add_argument("--touch", default=None)
    ap.add_argument("--empty_first", action="store_true")
    ap.add_argument("--empty_last", action="store_true")
    args = ap.parse_args()
    open(args.o, "w").write(Gen(args).build())
```

```python
import sys, argparse
sys.path.insert(0, "tools")
from asmlib import Emit, v, acc, s, fix_hazards
import gen
from gen import *

WS_EPOCH, WS_FLAG, WS_QK, WS_PART, WS_WVO = 0, 128, 16384, 65536, 3 << 20
NP, C0, NC = 3, 64, 64
SPIN = 1 << 16
S_E, S_N, S_JOB, S_CNT, S_PC, S_PV = 38, 39, 43, 53, 100, 0
V_PQ = V_QK
V_FL, V_FLA = 244, 245
V_EXP, V_NH, V_OA, V_QV, V_C1, V_C2, V_QI = range(246, 253)
PEND = [24, 26, 28, 30, 44, 46, 48, 50]
OKM = [6, 8, 10, 12, 14, 16, 36, 40]
DEN_MAX = 2.0 ** 40


class Gen2(Gen):
    nvgpr = 448
    nslots = property(lambda self: 12 if self.a.stamps == "ph" else 16)
    slotsrc = {12: "s62", 13: "s63", 14: "s53"}
    def stamp(self, e, idx, mode=None):
        if mode != self.a.focus and not (mode is None and idx in (0, 11)):
            return
        Gen.stamp(self, e, idx)

    def tstamp(self, e, idx):
        self.stamp(e, idx, "t")

    bg, bg_n, bg_every, rest11 = [], 0, 4, []

    def mfma(self, e, d, a, b, c):
        Gen.mfma(self, e, d, a, b, c)
        if self.bg:
            self.bg_n += 1
            if self.bg_n % self.bg_every == 0:
                self.bg.pop(0)()

    def bg_flush(self):
        while self.bg:
            self.bg.pop(0)()

    def first_push(self, e):
        if self.a.start == "old":
            self.qk_loads(e)
            self.push(e, 1, "mid", [])
            return
        self.issue(e, "F", 1, [])
        dl = self.dma_list(e, "R0", 1)
        for fn in dl[:self.a.n0]:
            fn()
        self.bg, self.bg_n, self.bg_every = dl[self.a.n0:], 0, self.a.every

    def nonce(self, e):
        e("s_mul_i32 %s, %s, 0x9e3779b1" % (s(S_N), s(S_E)))
        e("s_add_u32 %s, %s, 0x7f4a7c16" % (s(S_N), s(S_N)))
        e("s_or_b32 %s, %s, 1" % (s(S_N), s(S_N)))

    def load_epoch(self, e):
        e("s_load_dword %s, %s, %d" % (s(S_E), s(S_WS, 2), WS_EPOCH))
        e.smem = True

    def chunk_dma(self, e, tag, rs, soff, ldsbase, role=None, pol=""):
        for ee in range(6):
            if ee % 4 == 0:
                if ldsbase[0] is None:
                    e("s_mov_b32 m0, %d" % (ldsbase[1] + ee * 1024))
                else:
                    e("s_add_u32 m0, %s, %d" % (s(ldsbase[0]), ldsbase[1] + ee * 1024))
            e.vmem(tag, "buffer_load_dwordx4 %s, %s, %s offen offset:%d %s lds" % (
                v(V_DF + ee), s(rs, 4), soff, (ee % 4) * 1024, pol), role)

    def setup2(self, e):
        self.lds_read_addrs(e)
        self.consts(e)
        self.epilogue_addrs(e)
        e("s_mov_b32 %s, %s" % (s(S_THR), fl(THR)))

    def weight_prefetch(self, e):
        e("s_mov_b32 %s, 0" % s(S_PV))
        e("s_and_b32 %s, s2, 7" % s(S_T0))
        e("s_cmp_eq_u32 %s, %d" % (s(S_T0), self.a.xv))
        e("s_cselect_b32 %s, 0, %s" % (s(S_T1), s(S_T0)))
        e("s_cmp_lg_u32 %s, 0" % s(S_T1))
        e("s_cbranch_scc1 L_nopf")
        e("s_cmp_lg_u32 %s, 0" % s(S_T0))
        for r, a_, b_ in ((R_A, S_WO, S_WQ), (R_B, S_WV, S_WK)):
            e("s_cselect_b32 %s, %s, %s" % (s(r), s(a_), s(b_)))
            e("s_cselect_b32 %s, %s, %s" % (s(r + 1), s(a_ + 1), s(b_ + 1)))
        e("s_lshr_b32 %s, s2, 3" % s(S_JOB))
        for r in (R_A, R_B):
            e("s_mov_b32 %s, 73728" % s(r + 2))
            e("s_mov_b32 %s, 0x20000" % s(r + 3))
        srd(e, R_C, S_Q, 6144)
        e("s_mul_i32 %s, %s, 2304" % (s(S_T1), s(S_JOB)))
        e("v_min_u32 %s, 17, v0" % v(T))
        e("v_lshlrev_b32 %s, 7, %s" % (v(T), v(T)))
        e("s_cmp_eq_u32 %s, 0" % s(S_WAVE))
        e("s_cbranch_scc1 L_pf0")
        e("s_cmp_eq_u32 %s, 1" % s(S_WAVE))
        e("s_cbranch_scc0 L_pfdone")
        e("s_lshl_b32 %s, %s, 8" % (s(S_T2), s(S_JOB)))
        e.vmem("pf", "buffer_load_dword %s, %s, %s, %s offen" % (v(V_JUNK + 2), v(T), s(R_B, 4), s(S_T1)), "pf")
        e("v_min_u32 %s, 128, %s" % (v(T + 1), v(T)))
        e.vmem("pf", "buffer_load_dword %s, %s, %s, %s offen" % (v(V_JUNK + 3), v(T + 1), s(R_C, 4), s(S_T2)), "pf")
        e("s_branch L_pfdone")
        e("L_pf0:")
        e.vmem("pf", "buffer_load_dword %s, %s, %s, %s offen ; nolint" % (v(V_JUNK + 2), v(T), s(R_A, 4), s(S_T1)), "pf")
        e("L_pfdone:")
        e("s_cmp_ge_u32 %s, %d" % (s(S_JOB), NP))
        e("s_cbranch_scc1 L_nopf")
        e("s_mov_b32 %s, 1" % s(S_PV))
        e("s_cmp_eq_u32 %s, 0" % s(S_T0))
        e("s_cbranch_scc1 L_prod")
        e("s_branch L_vprod")

    def is_pv(self, e):
        e("s_cmp_eq_u32 %s, 1" % s(S_PV))

    def stage_weights(self, e, fill):
        lines, e.lines = e.lines, []
        fill()
        todo, e.lines = e.lines, lines
        per = -(-len(todo) // 12)

        def chunk(*a):
            l0 = len(e.lines)
            self.chunk_dma(e, *a)
            out, cnt = [], 0
            for ln in e.lines[l0:]:
                out.append(ln)
                if ln.startswith("buffer_load"):
                    cnt += 1
                    if self.nw >= 12:
                        out += todo[:per]
                        del todo[:per]
                    self.nw += 1
            e.lines[l0:] = out
        self.nw = 0
        e("s_mul_i32 %s, %s, 18432" % (s(60), s(S_WAVE)))
        for j in range(3):
            if j:
                e("s_add_u32 %s, %s, 6144" % (s(60), s(60)))
            chunk("wa", R_A, s(60), (60, L_R1))
        e("s_lshl_b32 %s, %s, 2" % (s(61), s(S_JOB)))
        e("s_add_u32 %s, %s, %s" % (s(61), s(61), s(S_WAVE)))
        e("s_mul_i32 %s, %s, 6144" % (s(60), s(61)))
        chunk("wb", R_B, s(60), (S_LR0, 6144))
        e.lines += todo

    def tr_addrs(self, e, TA, perm):
        if perm:
            e("v_bfe_u32 %s, v0, 4, 1" % v(T))
            e("v_lshrrev_b32 %s, 5, v0" % v(T + 4))
            e("v_lshl_or_b32 %s, %s, 1, %s" % (v(T), v(T), v(T + 4)))
        else:
            e("v_lshrrev_b32 %s, 4, v0" % v(T))
            e("v_and_b32 %s, 1, %s" % (v(T + 4), v(T)))
        e("v_bfe_u32 %s, v0, 2, 2" % v(T + 1))
        e("v_lshl_add_u32 %s, %s, 3, %s" % (v(T + 2), v(T), v(T + 1)))
        e("v_mul_u32_u24 %s, 384, %s" % (v(T + 2), v(T + 2)))
        e("v_and_b32 %s, 1, v0" % v(T + 3))
        e("v_lshl_add_u32 %s, %s, 3, %s" % (v(T + 2), v(T + 3), v(T + 2)))
        e("v_add_u32 %s, %d, %s" % (v(T + 2), L_R1, v(T + 2)))
        e("v_and_or_b32 %s, %s, 2, %s" % (v(T + 1), v(T + 1), v(T + 4)))
        e("v_bfe_u32 %s, v0, 1, 1" % v(T + 3))
        e("v_xor_b32 %s, %s, %s" % (v(T + 1), v(T + 1), v(T + 3)))
        e("s_mul_i32 %s, %s, 6" % (s(S_T0), s(S_WAVE)))
        for t in range(3):
            e("s_add_u32 %s, %s, %d" % (s(S_T1), s(S_T0), 2 * t))
            e("v_xor_b32 %s, %s, %s" % (v(T + 3), s(S_T1), v(T + 1)))
            e("v_lshl_add_u32 %s, %s, 4, %s" % (v(TA + 2 * t), v(T + 3), v(T + 2)))
            e("v_xor_b32 %s, 64, %s" % (v(TA + 2 * t + 1), v(TA + 2 * t)))

    def producer(self, e):
        QF, AF, KF = V_QK, V_W, A_XA
        D, CS, G_, M_, SQ = 88, 100, 112, 116, 120
        TA, KA, QA, XW, XR = 124, 130, 132, 134, 135
        e("s_cmp_lg_u32 %s, 0" % s(S_WAVE))
        e("s_cbranch_scc1 L_p_noq")
        self.chunk_dma(e, "q", R_C, "0", (None, L_XA), "q")
        e("L_p_noq:")

        def fill():
            self.consts(e)
            self.xch_write_addr(e, XW, L_XB)
            self.tr_addrs(e, TA, True)
            e("v_and_b32 %s, 15, v0" % v(T + 1))
            e("v_bfe_u32 %s, v0, 3, 1" % v(T + 2))
            e("v_and_or_b32 %s, v0, 6, %s" % (v(T + 3), v(T + 2)))
            e("v_xor_b32 %s, %s, %s" % (v(T + 3), v(T + 3), v(T)))
            e("v_mul_u32_u24 %s, 384, %s" % (v(T + 1), v(T + 1)))
            e("v_lshl_add_u32 %s, %s, 4, %s" % (v(T + 1), v(T + 3), v(T + 1)))
            e("v_add_u32 %s, %d, %s" % (v(QA), L_XA, v(T + 1)))
            e("v_xor_b32 %s, 64, %s" % (v(QA + 1), v(QA)))
            e("s_and_b32 %s, %s, 1" % (s(S_T0), s(S_WAVE)))
            e("s_lshl_b32 %s, %s, 2" % (s(S_T0), s(S_T0)))
            e("s_lshr_b32 %s, %s, 1" % (s(S_T1), s(S_WAVE)))
            e("s_mul_i32 %s, %s, 24576" % (s(S_T1), s(S_T1)))
            e("s_add_u32 %s, %s, %d" % (s(S_T1), s(S_T1), L_R0 + 6144))
            e("v_and_b32 %s, 11, v0" % v(T))
            e("v_or_b32 %s, %s, %s" % (v(T), s(S_T0), v(T)))
            e("v_and_or_b32 %s, %s, 6, %s" % (v(T + 1), v(T), v(T + 2)))
            e("v_lshrrev_b32 %s, 4, v0" % v(T + 2))
            e("v_xor_b32 %s, %s, %s" % (v(T + 1), v(T + 1), v(T + 2)))
            e("v_mul_u32_u24 %s, 384, %s" % (v(T), v(T)))
            e("v_lshl_add_u32 %s, %s, 4, %s" % (v(T), v(T + 1), v(T)))
            e("v_bfe_u32 %s, v0, 2, 1" % v(T + 1))
            e("v_mul_u32_u24 %s, 12288, %s" % (v(T + 1), v(T + 1)))
            e("v_add3_u32 %s, %s, %s, %s" % (v(KA), s(S_T1), v(T), v(T + 1)))
            e("v_xor_b32 %s, 64, %s" % (v(KA + 1), v(KA)))
            e("v_add_u32 %s, %d, %s" % (v(XR), L_XB, v(V_LANE16)))
        self.stage_weights(e, fill)
        self.stamp(e, 1, "p")
        e("s_waitcnt vmcnt(24)")
        e("s_barrier")
        self.stamp(e, 2, "p")
        self.load_epoch(e)
        for k in range(6):
            e.lds(("q", k), "ds_read_b128 %s, %s offset:%d" % (v(QF + 4 * k, 4), v(QA + (k & 1)), (k >> 1) * 128))
        self.issue(e, "F", 0, [], bar=False)
        e.wait_ds_all()
        dl = self.dma_list(e, "R0", 0)
        for k in range(6):
            self.mfma(e, v(G_, 4), v(QF + 4 * k, 4), v(QF + 4 * k, 4), v(G_, 4) if k else "0")
            self.mfma(e, v(M_, 4), v(V_ONES, 4), v(QF + 4 * k, 4), v(M_, 4) if k else "0")
            if k < self.a.pr:
                dl[k]()
        self.nonce(e)
        e("s_lshl_b32 %s, %s, 10" % (s(61), s(61)))
        e("s_add_u32 %s, %s, %d" % (s(61), s(61), WS_QK))
        self.stamp(e, 3, "p")
        e.wait_vm("wa")
        self.stamp(e, 1)
        self.stamp(e, 4, "p")
        e("s_barrier")
        self.stamp(e, 5, "p")
        rd = []
        for k in range(6):
            for t in range(3):
                for h in range(2):
                    rd.append((lambda t=t, k=k, h=h: e.lds(("a", t, k), "ds_read_b64_tr_b16 %s, %s offset:%d" % (
                        v(AF + (t * 6 + k) * 4 + 2 * h, 2), v(TA + 2 * t + h), 12288 * k + 1536 * h)), 1))
        flush(rd[:12])
        flush(self.diag(e, G_, None, T + 2))
        e("v_mul_f32 %s, %s, %s" % (v(T + 5), fl(1.0 / 192), v(M_)))
        flush(rd[12:14])
        e("v_mfma_f32_16x16x4_f32 %s, %s, %s, %s" % (v(SQ, 4), v(V_C192), v(T + 2), v(V_EPS, 4)))
        ms = []
        for k in range(6):
            for t in range(3):
                af = v(AF + (t * 6 + k) * 4, 4)

                def a(t=t, k=k, af=af):
                    e.wait_ds(("a", t, k))
                    self.mfma(e, v(D + 4 * t, 4), af, v(QF + 4 * k, 4), v(D + 4 * t, 4) if k else "0")
                ms.append(a)
                ms.append(lambda t=t, k=k, af=af: self.mfma(e, v(CS + 4 * t, 4), af, v(V_ONES, 4), v(CS + 4 * t, 4) if k else "0"))
        st = [I(e, "v_fma_f32 %s, -%s, %s, %s" % (v(T + 4), v(M_), v(M_), v(SQ))),
              I(e, "v_max_f32 %s, %s, %s" % (v(T + 4), v(T + 4), v(V_EPS))),
              I(e, "v_rsq_f32 %s, %s" % (v(T + 4), v(T + 4))),
              I(e, "v_mov_b32 %s, %s" % (v(SQ + 2), s(S_N))),
              I(e, "v_mul_f32 %s, %s, %s" % (v(T + 4), v(V_C192), v(T + 4))),
              I(e, "v_mov_b32 %s, %s" % (v(SQ + 3), s(S_N)))]
        flush(weave(e, ms, rd[14:] + st, 0, 1))
        self.stamp(e, 6, "p")
        for t in range(3):
            for j in range(4 * t, 4 * t + 4):
                e("v_fma_f32 %s, -%s, %s, %s" % (v(D + j), v(T + 5), v(CS + j), v(D + j)))
            for j in range(4 * t, 4 * t + 4):
                e("v_mul_f32 %s, %s, %s" % (v(D + j), v(D + j), v(T + 4)))
            e("v_cvt_pk_bf16_f32 %s, %s, %s" % (v(G_ + 2 * t), v(D + 4 * t), v(D + 4 * t + 1)))
            e("v_cvt_pk_bf16_f32 %s, %s, %s" % (v(G_ + 2 * t + 1), v(D + 4 * t + 2), v(D + 4 * t + 3)))
            e.lds("x", "ds_write_b64 %s, %s offset:%d" % (v(XW), v(G_ + 2 * t, 2), t * 512))
        e.wait_vm("wb")
        e.wait_ds_all()
        self.stamp(e, 8, "p")
        e("s_barrier")
        self.stamp(e, 9, "p")
        for k in range(6):
            e.lds(("b", k), "ds_read_b128 %s, %s offset:%d" % (v(QF + 4 * k, 4), v(XR), 1024 * k))
            e.lds(("b", k), "ds_read_b128 %s, %s offset:%d" % (acc(KF + 4 * k, 4), v(KA + (k & 1)), (k >> 1) * 128))
        for k in range(6):
            e.wait_ds(("b", k))
            self.mfma(e, v(D + 4 * (k & 1), 4), acc(KF + 4 * k, 4), v(QF + 4 * k, 4), v(D + 4 * (k & 1), 4) if k > 1 else "0")
        for j in range(4):
            e("v_add_f32 %s, %s, %s" % (v(D + j), v(D + j), v(D + 4 + j)))
        for j in range(4):
            e("v_mul_f32 %s, %s, %s" % (v(D + j), fl(QSCALE), v(D + j)))
        e("v_cvt_pk_bf16_f32 %s, %s, %s" % (v(SQ), v(D), v(D + 1)))
        e("v_cvt_pk_bf16_f32 %s, %s, %s" % (v(SQ + 1), v(D + 2), v(D + 3)))
        e.vmem("pub", "buffer_store_dwordx4 %s, %s, %s, %s offen sc1" % (v(SQ, 4), v(V_LANE16), s(R_WS, 4), s(61)))
        self.stamp(e, 2)
        self.stamp(e, 10, "p")
        for fn in dl[self.a.pr:6]:
            fn()
        e("s_barrier")
        for fn in dl[6:]:
            fn()
        self.lds_read_addrs(e)
        self.epilogue_addrs(e)
        e("s_mov_b32 %s, %s" % (s(S_THR), fl(THR)))
        self.issue(e, "R1", 0, [], bar=False)
        e("s_mov_b32 %s, -1" % s(S_JOB))
        e("s_branch L_join")

    def vproducer(self, e):
        BF, AV, D, TA, JA, O_ = V_W, A_XA, 88, 136, 142, 144

        def fill():
            self.tr_addrs(e, TA, False)
            e("v_bfe_u32 %s, v0, 2, 1" % v(T))
            e("v_and_b32 %s, 3, v0" % v(T + 1))
            e("v_lshl_or_b32 %s, %s, 3, %s" % (v(T + 1), v(T), v(T + 1)))
            e("v_and_or_b32 %s, v0, 2, %s" % (v(T), v(T)))
            e("v_lshrrev_b32 %s, 4, v0" % v(T + 2))
            e("v_xor_b32 %s, %s, %s" % (v(T), v(T), v(T + 2)))
            e("v_mul_u32_u24 %s, 384, %s" % (v(T + 1), v(T + 1)))
            e("v_lshl_add_u32 %s, %s, 4, %s" % (v(T), v(T), v(T + 1)))
            e("v_bfe_u32 %s, v0, 3, 1" % v(T + 1))
            e("v_mul_u32_u24 %s, 12288, %s" % (v(T + 1), v(T + 1)))
            e("s_mov_b32 %s, %d" % (s(S_T0), L_R0 + 6144))
            e("v_add3_u32 %s, %s, %s, %s" % (v(JA), s(S_T0), v(T), v(T + 1)))
            e("v_xor_b32 %s, 64, %s" % (v(JA + 1), v(JA)))
        self.stage_weights(e, fill)
        self.stamp(e, 1, "p")
        self.load_epoch(e)
        e("s_barrier")
        self.issue(e, "F", 0, [], bar=False)
        dl = self.dma_list(e, "R0", 0)
        for fn in dl[:3]:
            fn()
        self.stamp(e, 2, "p")
        e.wait_vm("wb")
        e("s_barrier")
        self.stamp(e, 3, "p")
        for sp in range(2):
            for h in range(2):
                for k in range(6):
                    e.lds("a", "ds_read_b128 %s, %s offset:%d" % (
                        acc(AV + ((sp * 2 + h) * 6 + k) * 4, 4), v(JA + ((k & 1) ^ h)), (k >> 1) * 128 + 1536 * h + 24576 * sp))
        for t in range(3):
            for k in range(6):
                for h in range(2):
                    e.lds("b", "ds_read_b64_tr_b16 %s, %s offset:%d" % (
                        v(BF + (t * 6 + k) * 4 + 2 * h, 2), v(TA + 2 * t + h), 12288 * k + 1536 * h))
        e.wait_ds_all()
        self.stamp(e, 4, "p")
        e("s_barrier")
        self.stamp(e, 5, "p")
        dl = dl[3:] + self.dma_list(e, "R1", 0)
        e("s_mul_i32 %s, %s, 18432" % (s(60), s(S_WAVE)))
        e("s_lshl_b32 %s, %s, 11" % (s(61), s(S_JOB)))
        e("s_add_u32 %s, %s, %s" % (s(60), s(60), s(61)))
        e("s_add_u32 %s, %s, %d" % (s(60), s(60), WS_WVO))
        def out(t):
            for sp in range(2):
                o = O_ + 4 * sp + 8 * (t & 1)
                for j in range(4):
                    e("v_cvt_pk_bf16_f32 %s, %s, %s" % (v(o + j), v(D + 16 * t + 8 * sp + 2 * j), v(D + 16 * t + 8 * sp + 2 * j + 1)))
                e.vmem("vst", "buffer_store_dwordx4 %s, %s, %s, %s offen offset:%d sc1" % (
                    v(o, 4), v(V_LANE16), s(R_WS, 4), s(60), sp * 1024))
            if t < 2:
                e("s_add_u32 %s, %s, 6144" % (s(60), s(60)))
        for t in range(3):
            for k in range(6):
                for x in range(4):
                    d = D + 16 * t + 4 * x
                    self.mfma(e, v(d, 4), acc(AV + (x * 6 + k) * 4, 4), v(BF + (t * 6 + k) * 4, 4), v(d, 4) if k else "0")
                if k % 6 != 5:
                    dl.pop(0)()
                if k == 2 and t:
                    out(t - 1)
        self.stamp(e, 6, "p")
        out(2)
        self.v_after = len(dl)
        self.stamp(e, 8, "p")
        self.setup2(e)
        self.stamp(e, 9, "p")
        for fn in dl:
            fn()
        self.stamp(e, 10, "p")
        e("s_branch L_join")

    def job_compute(self, e):
        self.stamp(e, 5, "j")
        e("s_cmp_ge_u32 %s, %d" % (s(S_JOB), NP))
        e("s_cbranch_scc1 L_v_nofl")
        e("s_mul_i32 %s, %s, 3" % (s(S_T0), s(S_WAVE)))
        e("s_add_u32 %s, %s, %s" % (s(S_T0), s(S_T0), s(S_JOB)))
        e("s_lshl_b32 %s, %s, 7" % (s(S_T0), s(S_T0)))
        e("v_mov_b32 %s, %s" % (v(T), s(S_N)))
        e("v_mov_b32 %s, 0" % v(T + 1))
        e("s_mov_b64 exec, 1")
        n = len(e.vm) - e.vm.index(("R1", 0)) - 12 + self.v_after
        e("s_waitcnt vmcnt(%d)" % n)
        e.vmem("vfl", "buffer_store_dword %s, %s, %s, %s offen offset:%d sc1" % (v(T), v(T + 1), s(R_WS, 4), s(S_T0), WS_FLAG), "v")
        e("s_mov_b64 exec, -1")
        e("L_v_nofl:")

    def qk_loads(self, e, tag="qk"):
        e("s_mul_i32 %s, %s, 3072" % (s(S_T0), s(S_WAVE)))
        e("s_add_u32 %s, %s, %d" % (s(S_T0), s(S_T0), WS_QK))
        for j in range(3):
            e.vmem(tag, "buffer_load_dwordx4 %s, %s, %s, %s offen offset:%d sc1" % (
                v(V_PQ + 4 * j, 4), v(V_LANE16), s(R_WS, 4), s(S_T0), j * 1024))

    def qk_check(self, e):
        e("v_xor_b32 %s, %s, %s" % (v(T), s(S_N), v(V_PQ + 2)))
        e("v_xor_b32 %s, %s, %s" % (v(T + 1), s(S_N), v(V_PQ + 6)))
        e("v_xor_b32 %s, %s, %s" % (v(T + 2), s(S_N), v(V_PQ + 10)))
        e("v_or3_b32 %s, %s, %s, %s" % (v(T), v(T), v(T + 1), v(T + 2)))
        e("v_cmp_ne_u32 vcc, 0, %s" % v(T))

    def qk_wait(self, e):
        e.wait_vm("qk")

    def qk_get(self, e):
        e("s_mul_i32 %s, %s, 1536" % (s(S_T0), s(S_WAVE)))
        e("v_lshlrev_b32 %s, 3, v0" % v(T + 4))
        e("v_add_u32 %s, %d, %s" % (v(T + 4), L_XB, v(T + 4)))
        e("v_add_u32 %s, %s, %s" % (v(T + 3), s(S_T0), v(T + 4)))
        self.stamp(e, 6, "j")
        self.qk_wait(e)
        self.stamp(e, 7, "j")
        self.qk_check(e)
        e("s_cbranch_vccnz L_qk_retry")
        e("L_qk_ok:")
        for j in range(3):
            e.lds("x", "ds_write_b64 %s, %s offset:%d" % (v(T + 3), v(V_PQ + 4 * j, 2), j * 512))
        e.wait_ds_all()
        e("s_barrier")
        for st in range(6):
            e.lds(("qk", st), "ds_read2st64_b64 %s, %s offset0:%d offset1:%d" % (v(V_QK + 4 * st, 4), v(T + 4), 2 * st, 2 * st + 1))
        for st in range(6):
            e.wait_ds(("qk", st))
            self.mfma(e, v(V_SS[0], 4), v(V_ONES, 4), v(V_QK + 4 * st, 4), v(V_SS[0], 4) if st else "0")
            self.mfma(e, v(V_S1, 4), acc(A_FA + 4 * st, 4), v(V_QK + 4 * st, 4), v(V_S1, 4) if st else "0")
        e("v_mul_f32 %s, %s, %s" % (v(V_CQ), fl(1.0 / 192), v(V_SS[0])))

    def retry(self, name, loads, check, dbg):
        r = Emit()
        r("L_%s_retry:" % name)
        r("s_mov_b32 %s, 0" % s(S_CNT))
        r("L_%s_again:" % name)
        loads(r)
        r("s_add_u32 %s, %s, 1" % (s(S_CNT), s(S_CNT)))
        if self.a.stamps:
            r("s_mov_b32 %s, %s" % (s(dbg), s(S_CNT)))
        r.wait_vm_all()
        check(r)
        r("s_cbranch_vccz L_%s_ok" % name)
        r("s_cmp_lt_u32 %s, %d" % (s(S_CNT), SPIN))
        r("s_cbranch_scc1 L_%s_again" % name)
        r("s_branch L_%s_ok" % name)
        return fix_hazards(r.lines, name)

    def flag_load(self, e):
        e.vmem("fl", "buffer_load_dword %s, %s, %s, 0 offen offset:%d sc1" % (v(V_FL), v(V_FLA), s(R_WS, 4), WS_FLAG))

    def flag_check(self, e):
        e("v_cmp_ne_u32 vcc, %s, %s" % (s(S_N), v(V_FL)))

    def issue(self, e, kind, k, extra, bar=True):
        if bar:
            e("s_barrier")
        if self.ITEMS.index((kind, k)) == self.a.first - 2:
            self.flag_load(e)
        n = self.ITEMS.index((kind, k))
        if n == 11 and hasattr(self, "dma_split"):
            dl = self.dma_split(e)
            flush([(fn, 1) for fn in dl[:self.a.n11]])
            self.rest11 = dl[self.a.n11:]
            return
        for j, fn in enumerate(self.dma_list(e, kind, k)):
            if self.a.gate and self.a.g0 <= n <= self.a.g1 and bar:
                if not self.a.gate_all:
                    self.is_pv(e)
                    e("s_cbranch_scc1 L_gate%d_%d" % (n, j))
                e("s_waitcnt vmcnt(%d)" % (self.a.gate - 1))
                e("L_gate%d_%d:" % (n, j))
            if n == 11 and j == 0:
                self.stamp(e, 1, "l")
            fn()
            if n == 11 and j % 4 == 3:
                self.stamp(e, 2 + j // 4, "l")
            if n == 11 and j == 11 and self.a.focus == "l":
                for x in range(5):
                    e("s_waitcnt vmcnt(%d)" % (12 - 3 * x))
                    self.stamp(e, 5 + x, "l")
            if extra:
                self.xacc += self.xrate
                if self.xacc >= 1:
                    self.xacc -= 1
                    extra.pop(0)()

    def push(self, e, n, where, extra):
        pol = self.a.push
        if pol == "mid3":
            tgt = n + 3 if where == "mid" else None
        elif n < 7:
            tgt = n + 3 if where == "mid" else None
        else:
            tgt = {7: 10, 9: 11}.get(n) if where == "end" else None
        if tgt is not None and tgt < 12:
            self.issue(e, *self.ITEMS[tgt], extra if tgt >= self.a.first else [])
            if tgt == 11:
                self.bg, self.bg_n, self.bg_every = self.rest11 + self.late[:self.a.l10], 0, self.a.e10

    def phase_stamp(self, e, n):
        if n == self.a.first - 3:
            e.wait_vm("fl")
            self.flag_check(e)
            e("s_cbranch_vccnz L_fl_retry")
            e("L_fl_ok:")
        Gen.phase_stamp(self, e, n)

    def phase_f0(self, e):
        e.wait_vm(("F", 0))
        self.stamp(e, 2, "j")
        for st in range(6):
            e.lds(("fa", st), "ds_read_b128 %s, %s offset:%d" % (acc(A_FA + 4 * st, 4), v(V_FA + (st & 1)), (st >> 1) * 128))
        tr = []
        for n in range(12):
            tr.append((lambda n=n: e.lds("ft", "ds_read_b64_tr_b16 %s, %s offset:%d" % (
                acc(A_FT + 2 * n, 2), v(V_FT + (n & 3)), (n >> 2) * 128)), 1))
        ms = []
        for st in range(6):
            fa = acc(A_FA + 4 * st, 4)

            def g(st=st, fa=fa):
                e.wait_ds(("fa", st))
                self.mfma(e, v(V_G1, 4), fa, fa, v(V_G1, 4) if st else "0")
            ms.append(g)
            ms.append(lambda st=st, fa=fa: self.mfma(e, v(V_M1, 4), fa, v(V_ONES, 4), v(V_M1, 4) if st else "0"))
        flush(weave(e, ms, tr, 0, 2))
        e.wait_ds_all()
        self.nonce(e)
        if self.a.start == "old":
            self.push(e, 0, "mid", [])
        self.stamp(e, 3, "j")
        e.wait_vm(("R0", 0))
        self.stamp(e, 4, "j")

    def epilogue_addrs(self, e):
        XW, RD, AR = V_E, V_E + 1, V_E + 2
        self.xch_write_addr(e, XW, L_XA)
        e("s_mul_i32 %s, %s, 3072" % (s(S_T0), s(S_WAVE)))
        e("s_add_u32 %s, %s, %d" % (s(S_T0), s(S_T0), L_R0))
        e("v_add_u32 %s, %s, %s" % (v(RD), s(S_T0), v(V_LANE16)))
        e("v_add_u32 %s, %s, %s" % (v(AR), s(S_LR0), v(V_LANE16)))
        e("s_lshl_b32 %s, %s, 10" % (s(S_T0), s(S_WAVE)))
        e("v_add_u32 %s, %d, %s" % (v(AR + 2), L_ST, v(V_LANE16)))
        e("v_add_u32 %s, %s, %s" % (v(AR + 1), s(S_T0), v(AR + 2)))
        e("v_add_u32 %s, %d, %s" % (v(AR + 3), L_XA, v(V_LANE16)))
        e("v_bfe_u32 %s, v0, 2, 2" % v(T))
        e("v_lshrrev_b32 %s, 4, v0" % v(T + 1))
        e("v_lshl_or_b32 %s, %s, 4, %s" % (v(T), v(T), v(T + 1)))
        e("v_mul_u32_u24 %s, %d, %s" % (v(T), self.a.istride, v(T)))
        e("v_and_b32 %s, 3, v0" % v(T + 1))
        e("v_lshl_or_b32 %s, %s, 4, %s" % (v(AR + 4), v(T + 1), v(T)))
        e("v_xor_b32 %s, 0x70, %s" % (v(AR + 5), v(AR + 4)))
        e("s_mul_i32 %s, %s, 3" % (s(S_T0), s(S_WAVE)))
        e("v_min_u32 %s, 2, v0" % v(T))
        e("v_add_u32 %s, %s, %s" % (v(T), s(S_T0), v(T)))
        e("v_lshlrev_b32 %s, 7, %s" % (v(V_FLA), v(T)))

    def touch_part(self, e):
        self.part_base(e)
        for j in range(self.a.tpn):
            e.vmem("pf", "buffer_load_dword %s, %s, %s, %s offen %s" % (v(V_FL + j), v(V_E + 6 + j), s(R_WS, 4), s(S_T0), self.a.tppol))

    def touch_start(self, e):
        e("s_and_b32 %s, s2, 6" % s(S_T0))
        e("s_cbranch_scc1 L_notouch")
        e("s_lshr_b32 %s, s2, 2" % s(S_T0))
        e("s_and_b32 %s, s2, 1" % s(S_T1))
        e("s_add_u32 %s, %s, %s" % (s(S_T0), s(S_T0), s(S_T1)))
        e("s_mul_i32 %s, %s, %d" % (s(S_T0), s(S_T0), self.a.istride))
        e("s_lshl_b32 %s, %s, 13" % (s(S_T1), s(S_WAVE)))
        e("s_add_u32 %s, %s, %s" % (s(S_T0), s(S_T0), s(S_T1)))
        e("s_add_u32 %s, %s, %d" % (s(S_T0), s(S_T0), WS_PART))
        e("v_lshlrev_b32 %s, 7, v0" % v(T))
        e.vmem("pf", "buffer_load_dword %s, %s, %s, %s offen %s" % (v(V_FL), v(T), s(R_WS, 4), s(S_T0), self.a.tppol), "ts")
        e("L_notouch:")

    def part_base(self, e):
        e("s_mul_i32 %s, %s, %d" % (s(S_T0), s(S_WAVE), 4 * self.a.istride))
        e("s_lshl_b32 %s, s2, 7" % s(S_T1))
        e("s_add_u32 %s, %s, %s" % (s(S_T0), s(S_T0), s(S_T1)))
        e("s_add_u32 %s, %s, %d" % (s(S_T0), s(S_T0), WS_PART))

    def publish(self, e, D, LAM):
        AR, O_ = V_E + 2, 32
        e("v_mov_b32 %s, %s" % (v(O_ + 3), v(LAM)))
        e("v_add_u32 %s, %s, %s" % (v(O_ + 7), s(S_N), v(LAM)))
        for j in range(6):
            e("v_cvt_pk_bf16_f32 %s, %s, %s" % (v(O_ + j + j // 3), v(D + 2 * j), v(D + 2 * j + 1)))
            if j % 3 == 2:
                e.vmem("out", "buffer_store_dwordx4 %s, %s, %s, %s offen sc1" % (
                    v(O_ + 4 * (j // 3), 4), v(AR + 4 + j // 3), s(R_WS, 4), s(S_T0)))

    def consumer_setup(self, e):
        SC, X, OA = S_T3, T, V_OA
        e("s_sub_u32 %s, s2, %d" % (s(SC), C0))
        e("s_cmp_ge_u32 %s, %d" % (s(SC), NC))
        e("s_cbranch_scc1 L_nocs")
        srd(e, R_A, S_Q, 6144)
        srd(e, R_B, S_OUT, 6144)
        e("v_bfe_u32 %s, v0, 2, 1" % v(X))
        e("v_mul_u32_u24 %s, 7, %s" % (v(X + 1), v(X)))
        e("v_xor_b32 %s, v0, %s" % (v(X + 1), v(X + 1)))
        e("v_and_b32 %s, 3, %s" % (v(X + 1), v(X + 1)))
        e("s_lshr_b32 %s, %s, 4" % (s(S_T0), s(SC)))
        e("s_lshl_b32 %s, %s, 2" % (s(S_T0), s(S_T0)))
        e("v_add_u32 %s, %s, %s" % (v(X + 1), s(S_T0), v(X + 1)))
        e("v_lshlrev_b32 %s, 2, %s" % (v(V_QI), v(X + 1)))
        e("v_lshrrev_b32 %s, 4, v0" % v(X + 2))
        e("v_mad_u32_u24 %s, %s, 3, %s" % (v(X + 2), v(X), v(X + 2)))
        e("v_lshrrev_b32 %s, 1, %s" % (v(X + 3), v(X + 2)))
        e("v_and_b32 %s, 1, %s" % (v(X + 2), v(X + 2)))
        e("v_lshlrev_b32 %s, 2, %s" % (v(X + 2), v(X + 2)))
        e("v_lshl_add_u32 %s, %s, 5, %s" % (v(X + 2), v(X + 3), v(X + 2)))
        e("v_bfe_u32 %s, v0, 3, 1" % v(X + 3))
        e("v_lshl_add_u32 %s, %s, 1, %s" % (v(X + 2), v(X + 3), v(X + 2)))
        e("v_mul_u32_u24 %s, 384, %s" % (v(X + 1), v(X + 1)))
        e("s_bfe_u32 %s, %s, 0x20002" % (s(S_T0), s(SC)))
        e("s_mul_i32 %s, %s, 96" % (s(S_T0), s(S_T0)))
        e("s_and_b32 %s, %s, 3" % (s(S_T1), s(SC)))
        e("s_lshl_b32 %s, %s, 3" % (s(S_T1), s(S_T1)))
        e("s_add_u32 %s, %s, %s" % (s(S_T0), s(S_T0), s(S_T1)))
        e("v_add3_u32 %s, %s, %s, %s" % (v(OA), s(S_T0), v(X + 1), v(X + 2)))
        e("v_cmp_gt_u32 vcc, 48, v0")
        e("v_mov_b32 %s, 0x10000" % v(X + 3))
        e("s_lshl_b32 %s, %s, 2" % (s(S_T0), s(S_WAVE)))
        e("v_cndmask_b32 %s, %s, %s, vcc" % (v(OA), v(X + 3), v(OA)))
        e.vmem("cq", "buffer_load_ushort %s, %s, %s, 0 offen" % (v(V_QV), v(OA), s(R_A, 4)), "c")
        if self.a.touch_out:
            e.vmem("cq", "buffer_load_ushort %s, %s, %s, 0 offen" % (v(V_EXP), v(OA), s(R_B, 4)), "c")
        e("v_add_u32 %s, %s, %s" % (v(V_C1), s(S_T0), v(V_LANE16)))
        e("v_and_b32 %s, 0x70, %s" % (v(V_C2), v(V_LANE16)))
        e("L_nocs:")

    def consumer(self, e):
        DT, AC, LAM = 76, 16, T + 3
        EXP, NH, OA, QV, C1, C2, REF, X = V_EXP, V_NH, V_OA, V_QV, V_C1, V_C2, 42, 48
        SC, SI = S_T2, 60
        e("s_sub_u32 %s, s2, %d" % (s(SC), C0))
        e("s_cmp_ge_u32 %s, %d" % (s(SC), NC))
        e("s_cbranch_scc1 L_fin")
        e("s_mul_i32 %s, %s, %d" % (s(SI), s(SC), self.a.istride))
        e("s_lshl_b32 %s, %s, 13" % (s(S_T1), s(S_WAVE)))
        e("s_add_u32 %s, %s, %s" % (s(SI), s(SI), s(S_T1)))
        e("s_add_u32 %s, %s, %d" % (s(SI), s(SI), WS_PART))
        e("s_add_u32 %s, %s, 4096" % (s(SI + 1), s(SI)))

        def load(t, note=""):
            e.vmem("d", "buffer_load_dwordx4 %s, %s, %s, %s offen offset:%d sc1%s" % (
                v(DT + 4 * t, 4), v(V_LANE16), s(R_WS, 4), s(SI + t // 4), (t % 4) * 1024, note))
        for t in range(8):
            load(t)
        self.stamp(e, 3, "c")
        srd(e, R_B, S_OUT, 6144)
        e.lds("ref", "ds_bpermute_b32 %s, %s, %s" % (v(REF), v(V_QI), v(LAM)))
        e("v_bfe_u32 %s, v0, 2, 1" % v(X))
        e("v_cmp_eq_u32 vcc, 1, %s" % v(X))
        e("v_mov_b32 %s, %s" % (v(EXP), s(S_N)))
        e("v_cndmask_b32 %s, 0, %s, vcc" % (v(NH), v(EXP)))
        e("v_sub_u32 %s, %s, %s" % (v(EXP), v(EXP), v(NH)))
        e("v_sub_u32 %s, %s, %s" % (v(EXP), v(EXP), v(NH)))
        for j in range(7):
            e("v_mov_b32 %s, 0" % v(AC + j))
        e("s_mov_b32 %s, 0" % s(S_CNT))
        e.wait_ds_all()

        def check(t):
            e("v_sub_u32_dpp %s, %s, %s row_half_mirror row_mask:0xf bank_mask:0xf" % (v(X), v(DT + 4 * t + 3), v(DT + 4 * t + 3)))
            e("v_cmp_eq_u32 vcc, %s, %s" % (v(X), v(EXP)))

        def accum(t, nl=""):
            e("v_sub_u32 %s, %s, %s%s" % (v(X + 1), v(DT + 4 * t + 3), v(NH), nl))
            e("v_sub_f32 %s, %s, %s" % (v(X + 1), v(X + 1), v(REF)))
            e("v_exp_f32 %s, %s" % (v(X + 1), v(X + 1)))
            e("v_cvt_pk_bf16_f32 %s, %s, 0" % (v(X + 1), v(X + 1)))
            e("v_lshlrev_b32 %s, 16, %s" % (v(X + 2), v(X + 1)))
            for j in range(3):
                e("v_dot2_f32_bf16 %s, %s, %s, %s%s" % (v(AC + 2 * j), v(DT + 4 * t + j), v(X + 1), v(AC + 2 * j), nl))
            e("v_add_f32 %s, %s, %s" % (v(AC + 6), v(AC + 6), v(X + 2)))
            for j in range(3):
                e("v_dot2_f32_bf16 %s, %s, %s, %s%s" % (v(AC + 2 * j + 1), v(DT + 4 * t + j), v(X + 2), v(AC + 2 * j + 1), nl))
        NL = " ; nolint"
        self.stamp(e, 4, "c")
        if self.a.focus == "c":
            e("s_waitcnt vmcnt(8)")
            self.stamp(e, 5, "c")
        e.wait_vm_all()
        self.stamp(e, 6, "c")
        self.stamp(e, 9)
        for t in range(8):
            check(t)
            e("s_mov_b64 %s, vcc" % s(OKM[t], 2))
            e("s_not_b64 %s, vcc" % s(PEND[t], 2))
            e("s_cbranch_scc0 L_c_a%d" % t)
            e("s_mov_b64 exec, %s" % s(PEND[t], 2))
            load(t)
            e("s_mov_b64 exec, -1")
            e("L_c_a%d:" % t)
        self.stamp(e, 7, "c")
        e("L_c_acc:")
        for t in range(8):
            e("s_mov_b64 exec, %s" % s(OKM[t], 2))
            accum(t, NL)
        e("s_mov_b64 exec, -1")
        self.stamp(e, 8, "c")
        e("L_c_loop:")
        e("s_or_b64 vcc, %s, %s" % (s(PEND[0], 2), s(PEND[1], 2)))
        for t in range(2, 8):
            e("s_or_b64 vcc, vcc, %s" % s(PEND[t], 2))
        e("s_cbranch_scc0 L_c_red")
        e("s_add_u32 %s, %s, 1" % (s(S_CNT), s(S_CNT)))
        e("s_cmp_gt_u32 %s, %d" % (s(S_CNT), SPIN))
        e("s_cbranch_scc1 L_c_red")
        e.wait_vm_all()
        for t in range(8):
            e("s_cmp_eq_u64 %s, 0" % s(PEND[t], 2))
            e("s_cbranch_scc1 L_c_b%d" % t)
            check(t)
            e("s_and_b64 %s, vcc, %s" % (s(OKM[0], 2), s(PEND[t], 2)))
            e("s_andn2_b64 %s, %s, vcc" % (s(PEND[t], 2), s(PEND[t], 2)))
            e("s_cbranch_scc0 L_c_n%d" % t)
            e("s_mov_b64 exec, %s" % s(PEND[t], 2))
            load(t)
            e("L_c_n%d:" % t)
            e("s_mov_b64 exec, %s" % s(OKM[0], 2))
            e("s_cbranch_execz L_c_e%d" % t)
            accum(t, NL)
            e("L_c_e%d:" % t)
            e("s_mov_b64 exec, -1")
            e("L_c_b%d:" % t)
        e("s_branch L_c_loop")
        e("L_c_red:")
        e.wait_vm_all()
        self.stamp(e, 10)
        self.stamp(e, 9, "c")
        e("v_mov_b32 %s, %s" % (v(AC + 7), v(AC + 6)))
        for j in range(4):
            e("v_permlane32_swap_b32 %s, %s" % (v(AC + j), v(AC + 4 + j)))
        for j in range(4):
            e("v_add_f32 %s, %s, %s" % (v(AC + j), v(AC + j), v(AC + 4 + j)))
        for j in range(2):
            e("v_permlane16_swap_b32 %s, %s" % (v(AC + j), v(AC + 2 + j)))
        for j in range(2):
            e("v_add_f32 %s, %s, %s" % (v(AC + j), v(AC + j), v(AC + 2 + j)))
        e("v_add_f32_dpp %s, %s, %s row_ror:8 row_mask:0xf bank_mask:0x3" % (v(X), v(AC), v(AC)))
        e("v_add_f32_dpp %s, %s, %s row_ror:8 row_mask:0xf bank_mask:0xc" % (v(X), v(AC + 1), v(AC + 1)))
        e.lds("w", "ds_write_b32 %s, %s" % (v(C1), v(X)))
        e.wait_ds_all()
        e("s_barrier")
        e.lds("r", "ds_read_b128 %s, %s offset:768" % (v(X, 4), v(C2)))
        e.lds("r2", "ds_read_b128 %s, %s" % (v(X + 4, 4), v(V_LANE16)))
        e("v_lshlrev_b32 %s, 16, %s" % (v(AC + 2), v(QV)))
        e.wait_ds("r")
        e("v_add_f32 %s, %s, %s" % (v(X), v(X), v(X + 1)))
        e("v_add_f32 %s, %s, %s" % (v(X + 2), v(X + 2), v(X + 3)))
        e("v_add_f32 %s, %s, %s" % (v(X), v(X), v(X + 2)))
        e("v_cmp_nlt_f32 vcc, %s, %s" % (v(X), v(V_JUNK)))
        e("v_rcp_f32 %s, %s" % (v(X), v(X)))
        e.wait_ds("r2")
        self.stamp(e, 10, "c")
        e("s_cbranch_vccnz L_c_slow")
        e("L_c_out:")
        e("s_cmp_lg_u32 %s, 0" % s(S_WAVE))
        e("s_cbranch_scc1 L_fin")
        e("v_add_f32 %s, %s, %s" % (v(X + 4), v(X + 4), v(X + 5)))
        e("v_add_f32 %s, %s, %s" % (v(X + 6), v(X + 6), v(X + 7)))
        e("v_add_f32 %s, %s, %s" % (v(X + 4), v(X + 4), v(X + 6)))
        e("v_fmac_f32 %s, %s, %s" % (v(AC + 2), v(X + 4), v(X)))
        e("v_cvt_pk_bf16_f32 %s, %s, %s" % (v(AC + 2), v(AC + 2), v(AC + 2)))
        e.vmem("o", "buffer_store_short %s, %s, %s, 0 offen" % (v(AC + 2), v(OA), s(R_B, 4)))
        e("s_cmp_lg_u32 %s, 0" % s(SC))
        e("s_cbranch_scc1 L_fin")
        e("v_mov_b32 %s, %s" % (v(X), s(S_N)))
        e("v_mov_b32 %s, 0" % v(X + 1))
        e("s_mov_b64 exec, 1")
        e.vmem("o", "buffer_store_dword %s, %s, %s, 0 offen offset:%d sc1" % (v(X), v(X + 1), s(R_WS, 4), WS_EPOCH))
        e("s_mov_b64 exec, -1")

        r = Emit()
        r("L_c_slow:")
        r("s_cmp_eq_u32 %s, 0" % s(S_JOB))
        r("s_cbranch_scc1 L_c_out")
        r("s_mov_b32 %s, 0" % s(S_JOB))
        for t in range(8):
            r("v_sub_u32 %s, %s, %s" % (v(X + 1), v(DT + 4 * t + 3), v(NH)))
            r("v_max_f32 %s, %s, %s" % (v(REF), v(REF), v(X + 1)))
        r("v_max_f32_dpp %s, %s, %s row_ror:8 row_mask:0xf bank_mask:0xf" % (v(REF), v(REF), v(REF)))
        for sw in ("32", "16"):
            r("v_mov_b32 %s, %s" % (v(X), v(REF)))
            r("v_permlane%s_swap_b32 %s, %s" % (sw, v(REF), v(X)))
            r("v_max_f32 %s, %s, %s" % (v(REF), v(REF), v(X)))
        r("s_lshl_b32 %s, %s, 2" % (s(S_T0), s(S_WAVE)))
        r("v_add_u32 %s, %s, %s" % (v(X), s(S_T0), v(C2)))
        r.lds("w", "ds_write_b32 %s, %s offset:1024" % (v(X), v(REF)))
        r.wait_ds_all()
        r("s_barrier")
        r.lds("r", "ds_read_b128 %s, %s offset:1024" % (v(X, 4), v(C2)))
        for j in range(7):
            r("v_mov_b32 %s, 0" % v(AC + j))
        for t in range(8):
            r("s_mov_b64 %s, -1" % s(OKM[t], 2))
            r("s_mov_b64 %s, 0" % s(PEND[t], 2))
        r.wait_ds_all()
        r("v_max3_f32 %s, %s, %s, %s" % (v(REF), v(X), v(X + 1), v(X + 2)))
        r("v_max_f32 %s, %s, %s" % (v(REF), v(REF), v(X + 3)))
        r("s_branch L_c_acc")
        return fix_hazards(r.lines, "slow")

    def k_all(self):
        e = Emit()
        self.sites = []
        self.nstamp = 0
        e("s_cmp_ge_u32 s2, 256")
        e("s_cbranch_scc1 L_end")
        if self.a.rot:
            e("s_add_u32 s2, s2, %d" % self.a.rot)
            e("s_and_b32 s2, s2, 255")
        e("s_load_dwordx16 s[4:19], s[0:1], 0")
        e("s_load_dwordx4 s[20:23], s[0:1], 64")
        self.stamp(e, 0)
        if self.a.stamps:
            e("s_mov_b64 s[62:63], 0")
            e("s_mov_b32 s53, 0")
        self.code_prefetch(e, "main", "L_codeend")
        e("s_mov_b64 %s, %s" % (s(S_PC, 2), s(S_RET, 2)))
        self.lane_ids(e)
        self.dma_f_offsets(e)
        self.dma_r_offsets(e)
        e("v_mov_b32 %s, 0x10000" % v(V_OA))
        e("s_mul_i32 %s, %s, 6144" % (s(S_OF), s(S_WAVE)))
        e("s_mul_i32 %s, %s, 12288" % (s(S_OR), s(S_WAVE)))
        e("s_add_u32 %s, %s, %d" % (s(S_LF), s(S_OF), L_F))
        e("s_add_u32 %s, %s, %d" % (s(S_LR0), s(S_OR), L_R0))
        e("s_add_u32 %s, %s, %d" % (s(S_LR1), s(S_OR), L_R1))
        e("s_mul_i32 %s, s2, 393216" % s(S_T0))
        e("s_mul_i32 %s, s2, 98304" % s(S_T1))
        e("s_waitcnt lgkmcnt(0)")
        e.smem = False
        srd(e, R_F1, S_F1, 98304, s(S_T1))
        srd(e, R_F0, S_F0, 393216, s(S_T0))
        srd(e, R_WS, S_WS, WS_SIZE)
        self.weight_prefetch(e)
        head = list(e.lines)
        e("L_nopf:")

        p = Emit()
        p("L_prod:")
        self.producer(p)
        plines = fix_hazards(head + p.lines, "prod", self.a.verbose)
        plines = plines[plines.index("L_prod:"):]
        p = Emit()
        p("L_vprod:")
        self.vproducer(p)
        vlines = fix_hazards(head + p.lines, "vprod", self.a.verbose)
        plines += vlines[vlines.index("L_vprod:"):]

        self.load_epoch(e)
        if self.a.tpk == 6:
            self.touch_start(e)
        self.issue(e, "F", 0, [], bar=False)
        if self.a.tpk == 7:
            self.touch_start(e)
        e("s_mov_b32 %s, -1" % s(S_JOB))
        self.consumer_setup(e)
        self.issue(e, "R0", 0, [], bar=False)
        self.issue(e, "R1", 0, [], bar=False)
        self.setup2(e)
        self.stamp(e, 1)
        self.stamp(e, 2)
        e("L_join:")
        self.stamp(e, 1, "j")
        if self.a.start != "old":
            self.qk_loads(e)
        e("s_mul_i32 %s, %s, 18432" % (s(60), s(S_WAVE)))
        nmid = self.a.nmid

        def wloads(rs, js, role=None):
            out = []
            so = S_T0 if role else 61
            for j in js:
                def ld(j=j):
                    if j % 4 == 0 or j == js[0]:
                        e("s_add_u32 %s, %s, %d" % (s(so), s(60), WS_WVO + (j - j % 4) * 1024))
                    e.vmem("wvo", "buffer_load_dwordx4 %s, %s, %s, %s offen offset:%d sc1%s" % (
                        v(V_W + 4 * j, 4), v(V_LANE16), s(rs, 4), s(so), (j % 4) * 1024, " ; nolint" if role else ""), role)
                out.append(ld)
            return out
        srd(e, R_C, S_WS, WS_SIZE)
        self.is_pv(e)
        e("s_cselect_b32 %s, 0, %s" % (s(R_C + 2), s(R_C + 2)))
        extra = wloads(R_C, list(range(nmid)))
        self.late = wloads(R_WS, list(range(nmid, 18)))
        slots = sum(6 if n % 3 == 0 else 12 for n in range(self.a.first, 11))
        self.xacc, self.xrate = 0.5, nmid / slots + 1e-6
        plines += self.body(e, extra, wloads)
        self.stamp(e, 8)
        self.stamp(e, 10, "l")
        self.tstamp(e, 10)
        self.stamp(e, 2, "c")
        if self.a.stamps == "rt" and not self.a.focus:
            for j in (9, 10):
                e("s_mov_b64 %s, 0" % s(S_STAMP + 2 * j, 2))
        slow = self.consumer(e)
        e("L_fin:")
        if self.a.stamps:
            e("s_waitcnt vmcnt(0)")
            self.stamp(e, 11)
        self.write_stamps(e)
        e("L_end:")
        e("s_endpgm")
        e.lines = fix_hazards(e.lines, "main", self.a.verbose)
        e.lines += plines + slow
        e.lines += self.retry("qk", lambda r: self.qk_loads(r), self.qk_check, 62)
        e.lines += self.retry("fl", self.flag_load, self.flag_check, 63)
        self.rare(e)
        e("L_codeend:")
        return e.lines

    def retouch(self, e):
        e("s_lshl_b32 %s, %s, 13" % (s(S_T0), s(S_WAVE)))
        e("v_lshl_add_u32 %s, v0, 7, %s" % (v(V_JUNK + 1), s(S_T0)))
        e("v_min_u32 %s, L_end - L_tail, %s" % (v(V_JUNK + 1), v(V_JUNK + 1)))
        e("v_add_u32 %s, L_tail - L_pc_main, %s" % (v(V_JUNK + 1), v(V_JUNK + 1)))
        e.vmem("pf", "global_load_dword %s, %s, %s" % (v(V_JUNK + 2), v(V_JUNK + 1), s(S_PC, 2)))

    def body(self, e, extra, wloads):
        nmid = self.a.nmid
        for k in range(4):
            if k == 0:
                self.phase_f0(e)
            else:
                if k == 3 and self.a.retouch:
                    self.retouch(e)
                if k == self.a.tpk:
                    self.touch_part(e)
                self.phase_f(e, k, extra)
                if k == 3 and self.a.tpk == 4:
                    self.touch_part(e)
            self.phase_r(e, k, 0, extra)
            if k == 0:
                self.stamp(e, 8, "j")
            if k == 1:
                self.stamp(e, 10, "j")
            if k == 3:
                self.bg_flush()
                self.tstamp(e, 5)
                rest = self.late[self.a.l10:]
                flush([(fn, 1) for fn in rest[:self.a.lw]])
                if nmid:
                    self.is_pv(e)
                    e("s_cbranch_scc0 L_nolate")
                    flush([(fn, 1) for fn in wloads(R_WS, list(range(nmid)), "s")])
                    e.wait_vm(("R1", 3), "s")
                    e("s_branch L_landed")
                    e("L_nolate:")
                    e.wait_vm(("R1", 3))
                    e("L_landed:")
                self.bg, self.bg_n, self.bg_every = rest[self.a.lw:], 0, 2
            if k == 3:
                e.wait_vm(("R1", 3))
                if self.a.tpk == 5:
                    self.touch_part(e)
                self.stamp(e, 6)
            self.phase_r(e, k, 1, extra)
            if k in (0, 2):
                self.stamp(e, 4 + k // 2)
            if k == 0:
                self.stamp(e, 9, "j")
        assert not extra and not self.bg
        self.stamp(e, 7)
        self.tstamp(e, 7)
        self.stamp(e, 1, "c")
        e("L_tail:")
        self.part_base(e)
        e("v_mov_b32 %s, %s" % (v(V_JUNK), fl(DEN_MAX)))
        e("s_mov_b32 %s, 1" % s(S_JOB))
        self.epilogue(e)
        return []

    def build(self):
        n = NAME + "_kernel"
        o = [HDR, "; @launch grid=(256,1,1) block=(256,1,1) lds=%d" % L_END,
             '.amdgcn_target "amdgcn-amd-amdhsa--gfx950"', ".text", ".globl " + n, ".p2align 8",
             ".type %s,@function" % n, n + ":"]
        o += [("    " + x.replace(" ; nolint", "") if not x.endswith(":") else x) for x in self.k_all()]
        o += ['.section .rodata,"a"', ".p2align 6", ".amdhsa_kernel " + n, "  .amdhsa_next_free_vgpr %d" % self.nvgpr,
              "  .amdhsa_next_free_sgpr 102", "  .amdhsa_accum_offset 256", "  .amdhsa_group_segment_fixed_size 0",
              "  .amdhsa_kernarg_size 80", "  .amdhsa_user_sgpr_count 2", "  .amdhsa_user_sgpr_kernarg_segment_ptr 1",
              "  .amdhsa_system_sgpr_workgroup_id_x 1", "  .amdhsa_float_denorm_mode_32 3", ".end_amdhsa_kernel"]
        return "\n".join(o) + "\n"


def options():
    ap = argparse.ArgumentParser()
    ap.add_argument("-o", default="v2.s")
    ap.add_argument("--pol", default="nt")
    ap.add_argument("--stamps", default=None)
    ap.add_argument("--verbose", action="store_true")
    ap.add_argument("--push", default="mid3l")
    ap.add_argument("--focus", default=None)
    ap.add_argument("--start", default="old")
    ap.add_argument("--n0", type=int, default=0)
    ap.add_argument("--every", type=int, default=5)
    ap.add_argument("--nmid", type=int, default=8)
    ap.add_argument("--first", type=int, default=8)
    ap.add_argument("--l10", type=int, default=5)
    ap.add_argument("--e10", type=int, default=10)
    ap.add_argument("--lw", type=int, default=2)
    ap.add_argument("--gate", type=int, default=0)
    ap.add_argument("--g0", type=int, default=3)
    ap.add_argument("--g1", type=int, default=11)
    ap.add_argument("--gate_all", type=int, default=0)
    ap.add_argument("--rot", type=int, default=0)
    ap.add_argument("--xv", type=int, default=6)
    ap.add_argument("--istride", type=int, default=37120)
    ap.add_argument("--tpk", type=int, default=5)
    ap.add_argument("--tpn", type=int, default=1)
    ap.add_argument("--tppol", default="")
    ap.add_argument("--n11", type=int, default=8)
    ap.add_argument("--pre0", type=int, default=0)
    ap.add_argument("--post0", type=int, default=8)
    ap.add_argument("--pr", type=int, default=3)
    ap.add_argument("--touch_out", type=int, default=1)
    ap.add_argument("--retouch", type=int, default=1)
    return ap


if __name__ == "__main__":
    args = options().parse_args()
    open(args.o, "w").write(Gen2(args).build())
```

```python
import sys
sys.path.insert(0, "tools")
from gen2 import *
from asmlib import TRANS

V_PW, V_QW, V_PR, V_QR, V_OREF = 237, 238, 253, 254, 255
V_O12, V_XA2 = 16, 40
V_PX, V_PB, V_LP = [92, 96, 100, 116], 120, 136
A_XT2 = [A_XT, A_XT]
V_DT, S_SI = [76, 80, 84, 108, 112, 128, 132, 52], 60
X_FLAG = 4096


class Clock:
    def __init__(self, a):
        self.a, self.k, self.t, self.free = a, 0, 0.0, 0.0
        self.land, self.ds = [], []

    def room(self):
        i = len(self.land) - self.a.win
        return self.land[i] if i >= 0 else 0.0

    def sync(self, e):
        for ln in e.lines[self.k:]:
            op = ln.split()[0]
            if op.endswith(":"):
                continue
            if op.startswith("v_mfma"):
                self.t = max(self.t, self.free)
                self.free = self.t + (32 if op.endswith("x4_f32") else 16)
                self.t += 8
            elif op.startswith(("buffer_", "global_")):
                dma = ln.split(";")[0].rstrip().endswith(" lds")
                self.t = max(self.t + self.a.ldc, self.room() + 16)
                prev = self.land[-1] if self.land else 0.0
                self.land.append(max(self.t + (self.a.lat if dma else 600), prev + (self.a.tau if dma else 60)))
            elif op.startswith("ds_"):
                self.t += 26 if op == "ds_write_b128" else 6
                prev = self.ds[-1] if self.ds else 0.0
                self.ds.append(max(self.t + 90, prev + (16 if "b128" in op else 8)))
            elif op == "s_waitcnt":
                for nm, q in (("vmcnt", self.land), ("lgkmcnt", self.ds)):
                    if nm in ln:
                        n = int(ln.split(nm + "(")[1].split(")")[0])
                        if len(q) > n:
                            self.t = max(self.t, q[len(q) - 1 - n])
                self.t += 4
            elif op == "s_barrier":
                self.t += 40
            elif op == "s_nop":
                self.t += 4 * (int(ln.split()[1]) + 1)
            else:
                self.t += 9 if op in TRANS else 4.5
        self.k = len(e.lines)


class Gen3(Gen2):
    pend = None

    def can(self):
        return self.q and self.q[0][1] in self.ready

    def pop(self, e):
        fn, key, name = self.q.pop(0)
        if self.a.evgate and name[0] in ("F", "R0", "R1"):
            self.ng = getattr(self, "ng", 0) + 1
            self.clk.sync(e)
            e("s_cmp_eq_u32 s1, 0")
            e("s_cbranch_scc0 L_g%d" % self.ng)
            e("s_waitcnt vmcnt(%d)" % (self.a.evgate - 1))
            e("L_g%d:" % self.ng)
            self.clk.k = len(e.lines)
        fn()
        self.clk.sync(e)
        self.log.append("%s@%.2f" % (name, self.clk.t / 2140))

    def slot(self, e):
        self.clk.sync(e)
        if self.can() and self.clk.room() <= self.clk.t + self.a.ahead:
            self.pop(e)

    def mfma(self, e, d, a, b, c):
        Gen.mfma(self, e, d, a, b, c)
        if e is getattr(self, "main", None):
            self.slot(e)

    def land(self, e, tag):
        ws = {("R0", 2): 1, ("R1", 2): 3, ("F", 3): 5, ("R0", 3): 7, ("R1", 3, 1): 9}.get(tag)
        wx = {("R0", 0): 1, "qk": 3, ("R1", 0): 5, ("F", 1): 7, ("R0", 1): 9}.get(tag)
        self.stamp(e, ws, "w" if ws else "-")
        self.stamp(e, wx, "x" if wx else "-")
        while any(n == tag for _, _, n in self.q):
            assert self.can(), tag
            self.pop(e)
        self.clk.sync(e)
        tgt = self.clk.land[max(i for i, x in enumerate(e.vm) if x == tag)]
        while self.can() and self.clk.room() <= max(tgt, self.clk.t) + self.a.over:
            self.pop(e)
        e.wait_vm(tag)
        self.stamp(e, (ws or 0) + 1, "w" if ws else "-")
        self.stamp(e, (wx or 0) + 1, "x" if wx else "-")
        self.clk.sync(e)
        self.log.append("\n[%s landed %.2f, at %.2f]" % (tag, tgt / 2140, self.clk.t / 2140))

    def make_queue(self, e, mid, late):
        q = []
        nth = 0.5
        slots = sum(6 if n % 3 == 0 else 12 for n in range(self.a.first, 11))
        for n in range(3, 12):
            kind, k = self.ITEMS[n]
            if n == self.a.chk + 1:
                q.append((lambda: self.flag_load(e), ("it", n), "fl"))
            dl = self.dma_split(e) if n == 11 else self.dma_list(e, kind, k)
            for j, fn in enumerate(dl):
                q.append((fn, ("it", n), (kind, k, j // 6) if n == 11 else (kind, k)))
                if self.a.first <= n < 11:
                    nth += len(mid) / slots + 1e-6
                    if nth >= 1 and self.nm < len(mid):
                        nth -= 1
                        q.append((mid[self.nm], "wvo", "wvo"))
                        self.nm += 1
        assert self.nm == len(mid)
        q += [(fn, "wvo", "wvo") for fn in late]
        self.q = q

    def tstamp(self, e, idx):
        pass

    def lds_read_addrs(self, e):
        i_, pg, rho, lo, t0, t1, hf = T, T + 2, T + 3, T + 4, T + 5, T + 6, T + 1
        e("v_and_b32 %s, 15, v0" % v(i_))
        e("v_lshrrev_b32 %s, 5, v0" % v(t0))
        e("v_bfe_u32 %s, v0, 4, 1" % v(pg))
        e("v_lshl_or_b32 %s, %s, 1, %s" % (v(pg), v(pg), v(t0)))
        e("v_lshrrev_b32 %s, 2, v0" % v(rho))
        e("v_bfe_u32 %s, v0, 1, 1" % v(lo))
        e("v_lshrrev_b32 %s, 3, %s" % (v(t0), v(i_)))
        e("v_and_or_b32 %s, %s, 6, %s" % (v(t0), v(i_), v(t0)))
        e("v_xor_b32 %s, %s, %s" % (v(t0), v(t0), v(pg)))
        e("v_mul_u32_u24 %s, 384, %s" % (v(t1), v(i_)))
        e("v_lshl_add_u32 %s, %s, 4, %s" % (v(t0), v(t0), v(t1)))
        e("v_add_u32 %s, %s, %s" % (v(V_FA), s(S_LF), v(t0)))
        e("v_xor_b32 %s, 64, %s" % (v(V_FA + 1), v(V_FA)))
        e("v_lshrrev_b32 %s, 3, %s" % (v(t0), v(i_)))
        e("v_and_b32 %s, 7, %s" % (v(t1), v(i_)))
        e("v_lshl_or_b32 %s, %s, 1, %s" % (v(t0), v(t1), v(t0)))
        e("v_xor_b32 %s, %s, %s" % (v(t0), v(t0), v(pg)))
        e("v_mul_u32_u24 %s, 768, %s" % (v(t1), v(i_)))
        e("v_lshl_add_u32 %s, %s, 4, %s" % (v(t0), v(t0), v(t1)))
        e("v_add_u32 %s, %s, %s" % (v(V_XA), s(S_LR0), v(t0)))
        for x in range(1, 4):
            e("v_xor_b32 %s, 0x%x, %s" % (v(V_XA + x), x * 64, v(V_XA)))
        e("v_and_b32 %s, 1, v0" % v(hf))
        e("v_lshlrev_b32 %s, 3, %s" % (v(hf), v(hf)))
        e("s_mul_i32 %s, %s, 96" % (s(S_T0), s(S_WAVE)))
        e("v_lshrrev_b32 %s, 3, %s" % (v(t0), v(rho)))
        e("v_and_or_b32 %s, %s, 6, %s" % (v(t0), v(rho), v(t0)))
        e("v_xor_b32 %s, %s, %s" % (v(t0), v(t0), v(lo)))
        e("v_lshl_add_u32 %s, %s, 4, %s" % (v(t0), v(t0), v(hf)))
        e("v_mul_u32_u24 %s, 384, %s" % (v(t1), v(rho)))
        assert L_F == 0
        for j in range(3):
            e("s_add_u32 %s, %s, %d" % (s(S_T1), s(S_T0), 32 * j))
            e("v_xad_u32 %s, %s, %s, %s" % (v(V_FT + j), v(t0), s(S_T1), v(t1)))
        e("v_lshrrev_b32 %s, 3, %s" % (v(t0), v(rho)))
        e("v_and_b32 %s, 7, %s" % (v(pg), v(rho)))
        e("v_lshl_or_b32 %s, %s, 1, %s" % (v(t0), v(pg), v(t0)))
        e("v_xor_b32 %s, %s, %s" % (v(t0), v(t0), v(lo)))
        e("v_lshl_add_u32 %s, %s, 4, %s" % (v(t0), v(t0), v(hf)))
        e("v_lshlrev_b32 %s, 1, %s" % (v(t1), v(t1)))
        e("v_add_u32 %s, %d, %s" % (v(t1), L_R0, v(t1)))
        for j in range(3):
            for t in range(2):
                e("s_add_u32 %s, %s, %d" % (s(S_T1), s(S_T0), 32 * j + 384 * t))
                e("v_xad_u32 %s, %s, %s, %s" % (v(V_XT + 2 * j + t), v(t0), s(S_T1), v(t1)))

    def epilogue_addrs(self, e):
        Gen2.epilogue_addrs(self, e)
        e("v_lshlrev_b32 %s, 3, v0" % v(T))
        e("v_add_u32 %s, %d, %s" % (v(V_QR), L_SP + 4096, v(T)))
        e("s_lshl_b32 %s, %s, 9" % (s(S_T0), s(S_WAVE)))
        e("v_add_u32 %s, %s, %s" % (v(V_QW), s(S_T0), v(V_QR)))
        e("v_add_u32 %s, %d, %s" % (v(V_PR), L_SP, v(V_LANE16)))
        e("s_lshl_b32 %s, %s, 10" % (s(S_T0), s(S_WAVE)))
        e("v_add_u32 %s, %s, %s" % (v(V_PW), s(S_T0), v(V_PR)))

    def split_offsets(self, e):
        e("s_movk_i32 %s, 384" % s(S_T0))
        for ee in range(6):
            e("v_add_u32 %s, %d, v0" % (v(T), 64 * ee))
            e("v_mul_u32_u24 %s, 2731, %s" % (v(T), v(T)))
            e("v_lshrrev_b32 %s, 16, %s" % (v(T), v(T)))
            e("v_mad_u32_u24 %s, %s, %s, %s" % (v(V_DF + ee), v(T), s(S_T0), v(V_DF + ee)))

    def dma_split(self, e):
        out = []
        for t in range(2):
            for ee in range(6):
                def fn(t=t, ee=ee):
                    if ee % 4 == 0:
                        e("s_add_u32 m0, %s, %d" % (s(S_LR1), t * 6144 + ee * 1024))
                    if ee == 0:
                        e("s_add_u32 %s, %s, %d" % (s(S_T3), s(S_OR), 3 * 49152 + 196608 + t * 384))
                    e.vmem(("R1", 3, t), "buffer_load_dwordx4 %s, %s, %s offen offset:%d %s lds" % (
                        v(V_DF + ee), s(R_F0, 4), s(S_T3), (ee % 4) * 1024, self.pol))
                out.append(fn)
        return out

    def rare_mark(self, r):
        r("v_mov_b32 %s, 1" % v(T + 1))
        r("ds_write_b32 %s, %s offset:%d" % (v(V_QR), v(T + 1), X_FLAG))
        r("s_waitcnt lgkmcnt(0)")

    def xch_out(self, e, inline, pf, lp):
        LP = T + 9
        S0, S1, M1, P1 = V_TILE[0], V_TILE[1], V_TILE[1] + 4, V_TILE[1] + 8
        cv = [I(e, "v_cvt_pk_bf16_f32 %s, %s, %s" % (v(V_P + x), v((S0, S1)[x >> 1] + 2 * (x & 1)), v((S0, S1)[x >> 1] + 2 * (x & 1) + 1)))
              for x in range(4)]
        if inline:
            for r in range(4):
                e("v_exp_f32 %s, %s" % (v(P1 + r), v(S1 + r)))
            flush(cv[:2])
            for r in range(4):
                e("v_mul_f32 %s, %s, %s" % (v(S1 + r), v(P1 + r), v(V_RS[1] + r)))
            flush(cv[2:])
        else:
            flush(cv)
        e.lds("x", "ds_write_b128 %s, %s" % (v(V_PW), v(V_P, 4)))
        pa = [I(e, "v_add_f32 %s, %s, %s" % (v(V_PF + r), v(V_PF + r), v(S1 + r))) for r in range(4 if inline else 0)]
        if pf:
            flush(pa)
            pa = []
            for x in range(2):
                e("v_cvt_pk_bf16_f32 %s, %s, %s" % (v(V_PFB + x), v(V_PF + 2 * x), v(V_PF + 2 * x + 1)))
            e.lds("x", "ds_write_b64 %s, %s" % (v(V_QW), v(V_PFB, 2)))
        la = []
        for r in range(4 if inline else 0):
            end = lp and r == 3
            la.append(I(e, "v_add_f32 %s, %s, %s" % (v(LP if end else V_L), v(V_L), v(P1 + r))))
            la.append(I(e, "v_fma_f32 %s, %s, %s, %s" % (v(LP + 1 if end else V_PM), v(S1 + r), v(M1 + r), v(V_PM))))
        if lp:
            flush(la)
            la = []
            e.lds("x", "ds_write_b64 %s, %s offset:2048" % (v(V_QW), v(LP, 2)))
        return pa + la

    def rp(self, e, w):
        return (lambda: e.lds(("p", w), "ds_read_b128 %s, %s offset:%d" % (v(V_PX[w], 4), v(V_PR), w * 1024)), 1)

    def rb(self, e, w):
        return (lambda: e.lds(("pb", w >> 1), "ds_read_b64 %s, %s offset:%d" % (v(V_PB + 2 * w, 2), v(V_QR), w * 512)), 1)

    def flag_read(self, e):
        e.lds("fg", "ds_read_b32 %s, %s offset:%d" % (v(T + 8), v(V_QR), X_FLAG))

    def flag_test(self, e, target):
        e.wait_ds("fg")
        e("v_cmp_ne_u32 vcc, 0, %s" % v(T + 8))
        e("s_cbranch_vccnz %s" % target)

    def enter(self, e, n, tag, reads, more, opens=(), gap=2):
        if tag:
            self.land(e, tag)
            self.phase_stamp(e, n)
        e.wait_ds_all()
        e("s_barrier")
        self.ready |= set(opens)
        if self.pend is None:
            flush(reads)
            return more, []
        rho, first, late = self.pend
        self.pend = None
        if not first:
            e("L_post%d:" % n)
            self.flag_read(e)
        flush([self.rb(e, w) for w in range(4 * rho)] + [self.rp(e, w) for w in range(4)] + reads)
        if not first:
            self.flag_test(e, "L_xt%d" % n)
            self.tramp += ["L_xt%d:" % n, "s_call_b64 %s, L_xslow" % s(S_RET, 2), "s_branch L_post%d" % n]
        ms = []
        for p_ in range(2 * rho):
            for j in range(3):
                def m(j=j, p_=p_):
                    e.wait_ds(("pb", p_))
                    o = acc(A_O + 4 * j, 4)
                    self.mfma(e, o, acc(A_FT + (2 * j + p_) * 4, 4), v(V_PB + 4 * p_, 4), o)
                ms.append(m)
        for w in range(4):
            for j in range(3):
                def m(j=j, w=w):
                    e.wait_ds(("p", w))
                    o = acc(A_O + 4 * j, 4)
                    self.mfma(e, o, acc(A_XT2[rho] + (4 * j + w) * 4, 4), v(V_PX[w], 4), "0" if first and w == 0 else o)
                ms.append(m)
        if rho:
            late = weave(e, ms[:6], late, 0, 2)
            ms = ms[6:]
        x = len(late)
        left = weave(e, ms, more + late, 0, gap)
        return left[:max(0, len(left) - x)], left[max(0, len(left) - x):]

    def xslow(self, last):
        AR, FV, NM, FO, LP = V_E + 2, T + 11, T, T + 1, T + 9
        r = Emit()
        r("L_xlast:" if last else "L_xslow:")
        r("s_waitcnt lgkmcnt(0)")
        r.lds("a", "ds_write_b32 %s, %s" % (v(AR + 1), v(V_NEGM)))
        r.wait_ds_all()
        r("s_barrier")
        for w in range(4):
            r.lds("b", "ds_read_b32 %s, %s offset:%d" % (v(FV + w), v(AR + 2), w * 1024))
        r("v_mov_b32 %s, 0" % v(T + 8))
        r.lds("b", "ds_write_b32 %s, %s offset:%d" % (v(V_QR), v(T + 8), X_FLAG))
        r.wait_ds_all()
        r("v_min3_f32 %s, %s, %s, %s" % (v(NM), v(FV), v(FV + 1), v(FV + 2)))
        r("v_min_f32 %s, %s, %s" % (v(NM), v(NM), v(FV + 3)))
        r("v_sub_f32 %s, %s, %s" % (v(FO), v(NM), v(V_OREF)))
        r("v_sub_f32 %s, %s, %s" % (v(FV), v(NM), v(V_NEGM)))
        r("v_exp_f32 %s, %s" % (v(FO), v(FO)))
        r("v_exp_f32 %s, %s" % (v(FV), v(FV)))
        r("v_mov_b32 %s, %s" % (v(V_NEGM), v(NM)))
        r("v_mov_b32 %s, %s" % (v(V_OREF), v(NM)))
        tg = [V_TILE[0] + i for i in range(4)] + [V_TILE[1] + i for i in range(4)] + [V_PF + i for i in range(4)]
        tg += [LP, LP + 1] if last else [V_TILE[1] + 8 + i for i in range(4)] + [V_L, V_PM]
        for x in tg:
            r("v_mul_f32 %s, %s, %s" % (v(x), v(x), v(FV)))
        for x in range(12):
            if last:
                r("v_mul_f32 %s, %s, %s" % (v(V_O12 + x), v(V_O12 + x), v(FO)))
            else:
                r("v_accvgpr_read_b32 %s, %s" % (v(NM), acc(A_O + x)))
                r("v_mul_f32 %s, %s, %s" % (v(NM), v(NM), v(FO)))
                r("v_accvgpr_write_b32 %s, %s" % (acc(A_O + x), v(NM)))
        self.xch_out(r, False, True, last)
        r.wait_ds_all()
        r("s_barrier")
        r("s_branch L_postx" if last else "s_setpc_b64 %s" % s(S_RET, 2))
        return fix_hazards(r.lines, "xslow")

    def toggle(self, e, up):
        return [I(e, "v_add_u32 %s, %d, %s" % (v(V_XT + x), (L_R1 - L_R0) * (1 if up else -1), v(V_XT + x))) for x in range(6)]

    def f_core(self, e, k, extra):
        fa = [(lambda st=st: e.lds(("fa", st), "ds_read_b128 %s, %s offset:%d" % (
            acc(A_FA + 4 * st, 4), v(V_FA + (st & 1)), (st >> 1) * 128)), 1) for st in range(6)]
        tr = []
        for j in range(3):
            for w in range(4):
                tr.append((lambda j=j, w=w: e.lds("ft", "ds_read_b64_tr_b16 %s, %s offset:%d" % (
                    acc(A_FT + (2 * j + (w >> 1)) * 4 + 2 * (w & 1), 2), v(V_FT + j), w * 6144)), 1))
        tr, late = self.enter(e, 3 * k, ("F", k), fa, tr, [("it", 3 * k + 2)])
        assert not late
        ms = []
        for st in range(6):
            a_ = acc(A_FA + 4 * st, 4)

            def g(st=st, a_=a_):
                e.wait_ds(("fa", st))
                self.mfma(e, v(V_G1, 4), a_, a_, v(V_G1, 4) if st else "0")
            ms.append(g)
            ms.append(lambda st=st, a_=a_: self.mfma(e, v(V_M1, 4), a_, v(V_ONES, 4), v(V_M1, 4) if st else "0"))
        flush(weave(e, ms, tr, 0, 2))
        e.wait_ds_all()

    def phase_f0(self, e):
        self.f_core(e, 0, [])
        self.nonce(e)
        self.qk_loads(e)

    def phase_f(self, e, k, extra):
        self.f_core(e, k, extra)
        for st in range(6):
            self.mfma(e, v(V_S1, 4), acc(A_FA + 4 * st, 4), v(V_QK + 4 * st, 4), v(V_S1, 4) if st else "0")

    def tile1(self, e, q0, l0, pre=()):
        left = weave(e, self.gh(e, 1), list(pre) + q0, 3 if not pre else 0, 2)
        nl = sum(c for _, c in left)
        pad = l0[:max(0, 8 - nl)]
        rest = l0[len(pad):]
        flush(weave(e, self.msq(e, 1), left + pad + self.dg(e, 1) + rest[:2] + [self.ssm(e, 1)] + rest[2:], 0, 2))
        flush(self.soft_a(e, 1))
        self.slot(e)
        flush(self.soft_b(e, 1, False))
        self.slot(e)

    def phase_r(self, e, k, rho, extra):
        n = 3 * k + 1 + rho
        base = rho * (L_R1 - L_R0)
        first = n == 1

        def xa(t):
            return [(lambda st=st: e.lds(("xa", t, st), "ds_read_b128 %s, %s offset:%d" % (
                acc(A_XA + 24 * t + 4 * st, 4), v(V_XA + (((24 * t + 4 * st) & 12) >> 2)), ((24 * t + 4 * st) & ~15) * 16 + base)), 1)
                for st in range(6)]
        tr = []
        for j in range(3):
            for w in range(4):
                for t in range(2):
                    tr.append((lambda j=j, w=w, t=t: e.lds("xt", "ds_read_b64_tr_b16 %s, %s offset:%d" % (
                        acc(A_XT2[rho] + (4 * j + w) * 4 + 2 * t, 2), v(V_XT + 2 * j + t), w * 12288)), 1))
        tr, late = self.enter(e, n, ("R%d" % rho, k), xa(0) + xa(1), tr, [] if rho else [("it", n + 2)])
        if n == 10:
            self.stamp(e, 1, "t")

        def drained():
            e.wait_ds_all()
            e("s_barrier")
            self.ready.add(("it", n + 3))
        if first:
            flush(tr)
            drained()
            self.job_compute(e)
            self.first_item(e)
            return
        left = weave(e, self.gh(e, 0), tr + late, 0, 2)
        flush(weave(e, self.msq(e, 0), left + self.dg(e, 0) + [I(e, "s_nop 0"), I(e, "s_nop 0"), self.ssm(e, 0)], 3 if not left else 0, 2))
        if n in self.a.midbar:
            drained()
        c0, l0 = self.soft_c(e, 0, False, rho)
        self.tile1(e, self.soft_a(e, 0) + self.soft_b(e, 0, False) + c0, l0 + (self.toggle(e, not rho) if n < 10 else []))
        self.pend = (rho, False, self.xch_out(e, True, rho == 1, False))
        if not rho:
            self.stamp(e, 2, "t" if n == 10 else "-")
            _, late = self.enter(e, n + 20, None, [], [], [("it", n + 3)])
            flush(late)

    def first_item(self, e):
        AR, FV = V_E + 2, T + 11
        nop2 = [I(e, "s_nop 0"), I(e, "s_nop 0")]
        flush(weave(e, self.gh(e, 0), self.toggle(e, True), 0, 2))
        left = weave(e, self.msq(e, 0)[:6], self.dg(e, 0) + nop2 + [self.ssm(e, 0)], 3, 2)
        left = weave(e, self.gh(e, 1), left + [(lambda: None, 2)] * 3 + self.soft_a(e, 0), 0, 2)
        flush(weave(e, self.msq(e, 1)[:6], left + [(lambda: None, 2)] * 2 + self.dg(e, 1) + nop2 + [self.ssm(e, 1)], 0, 2))
        flush(self.soft_a(e, 1))
        self.qk_get(e)
        self.stamp(e, 3)
        lg = [[], []]
        for t in range(2):
            S_, M_ = V_TILE[t], V_TILE[t] + 4
            lg[t] += [I(e, "v_fma_f32 %s, -%s, %s, %s" % (v(S_ + r), v(M_ + r), v(V_CQ), v(S_ + r))) for r in range(4)]
            lg[t] += [I(e, "v_mul_f32 %s, %s, %s" % (v(S_ + r), v(S_ + r), v(V_RS[t] + r))) for r in range(4)]
        S0, S1 = V_TILE
        lg[0] += [I(e, "v_max3_f32 %s, %s, %s, %s" % (v(T), v(S0), v(S0 + 1), v(S0 + 2))),
                  I(e, "v_max_f32 %s, %s, %s" % (v(T), v(T), v(S0 + 3)))]
        flush(weave(e, self.msq(e, 0)[6:], [I(e, "v_mov_b32 %s, 0" % v(T + 8))], 0, 2))
        e.lds("x", "ds_write_b32 %s, %s offset:%d" % (v(V_QR), v(T + 8), X_FLAG))
        flush(weave(e, self.msq(e, 1)[6:], lg[0], 3, 2))
        flush(lg[1])
        e("v_max3_f32 %s, %s, %s, %s" % (v(T), v(T), v(S1), v(S1 + 1)))
        e("v_max3_f32 %s, %s, %s, %s" % (v(T), v(T), v(S1 + 2), v(S1 + 3)))
        for sw in ("32", "16"):
            e("v_mov_b32 %s, %s" % (v(T + 1), v(T)))
            e("v_permlane%s_swap_b32 %s, %s" % (sw, v(T), v(T + 1)))
            e("v_max_f32 %s, %s, %s" % (v(T), v(T), v(T + 1)))
        e.lds("x", "ds_write_b32 %s, %s" % (v(AR + 1), v(T)))
        self.slot(e)
        e.wait_ds_all()
        e("s_barrier")
        for w in range(4):
            e.lds("m", "ds_read_b32 %s, %s offset:%d" % (v(FV + w), v(AR + 2), w * 1024))
        self.slot(e)
        e.wait_ds_all()
        e("v_max3_f32 %s, %s, %s, %s" % (v(T), v(FV), v(FV + 1), v(FV + 2)))
        e("v_max_f32 %s, %s, %s" % (v(T), v(T), v(FV + 3)))
        for x in [S0 + r for r in range(4)] + [S1 + r for r in range(4)]:
            e("v_sub_f32 %s, %s, %s" % (v(x), v(x), v(T)))
        e("v_sub_f32 %s, 0, %s" % (v(V_NEGM), v(T)))
        e("v_sub_f32 %s, 0, %s" % (v(V_OREF), v(T)))
        c0, l0 = self.soft_c(e, 0, True, 0)
        flush(c0)
        self.slot(e)
        late = self.xch_out(e, True, False, False)
        flush(l0)
        self.pend = (0, True, late)
        flush(self.enter(e, 21, None, [], [])[1])

    def rx2(self, e, j, w, t):
        return (lambda: e.lds(("xt", j, w), "ds_read_b64_tr_b16 %s, %s offset:%d" % (
            acc(A_XT2[1] + (4 * j + w) * 4 + 2 * t, 2), v(V_XT + j), w * 12288 + t * 6144)), 1)

    def phase_last(self, e, landed):
        e("s_sub_u32 %s, %s, %s" % (s(S_T0), s(S_LR1), s(S_LF)))
        for x in range(2):
            e("v_add_u32 %s, %s, %s" % (v(V_XA2 + x), s(S_T0), v(V_FA + x)))

        def xa(t):
            return [(lambda st=st: e.lds(("xa", t, st), "ds_read_b128 %s, %s offset:%d" % (
                acc(A_XA + 24 * t + 4 * st, 4), v(V_XA2 + (st & 1)), (st >> 1) * 128 + t * 6144)), 1) for st in range(6)]
        for j in range(3):
            e("v_add_u32 %s, %d, %s" % (v(V_XT + j), L_R1 - L_F, v(V_FT + j)))
        assert all(n == "wvo" for _, _, n in self.q)
        for x in range(12):
            e("v_accvgpr_read_b32 %s, %s" % (v(V_O12 + x), acc(A_O + x)))
        self.stamp(e, 3, "t")
        tr = [self.rx2(e, j, w, 0) for j in range(3) for w in range(4)]
        self.enter(e, 11, ("R1", 3, 0), xa(0), [])
        self.stamp(e, 4, "t")
        flush(weave(e, self.gh(e, 0), tr, 0, 2))
        flush(weave(e, self.msq(e, 0), self.dg(e, 0) + [I(e, "s_nop 0"), I(e, "s_nop 0"), self.ssm(e, 0)], 3, 2))
        c0, l0 = self.soft_c(e, 0, False, 1)
        q0 = self.soft_a(e, 0) + self.soft_b(e, 0, False) + c0
        flush(q0[:self.a.pre0])
        q0 = q0[self.a.pre0:]
        self.stamp(e, 5, "t")
        self.land(e, ("R1", 3, 1))
        self.stamp(e, 6)
        self.stamp(e, 6, "t")
        flush(xa(1))
        if self.a.xb:
            e("s_barrier")
        landed()
        flush(q0[:self.a.post0])
        tr = [self.rx2(e, j, w, 1) for j in range(3) for w in range(4)] if self.a.xb else [(lambda: None, 0)]
        self.tile1(e, q0[self.a.post0:], l0, tr)
        self.xch_out(e, True, True, True)
        while self.q:
            self.pop(e)

    def final(self, e):
        XW, AR = V_E, V_E + 2
        A_, B_, LAM, SC_, SH, CV = T, T + 1, T + 3, T + 4, T + 5, 66
        self.bulk(e, "x1")
        e.wait_ds_all()
        e("s_barrier")
        self.stamp(e, 8, "t")
        e("L_postx:")

        def rx(j, w):
            return [] if self.a.xb else [self.rx2(e, j, w, 1)]
        self.flag_read(e)
        flush([self.rp(e, 0)] + rx(0, 0))
        for w in range(4):
            e.lds("lp", "ds_read_b64 %s, %s offset:%d" % (v(V_LP + 2 * w, 2), v(V_QR), 2048 + w * 512))
        for w in range(1, 4):
            flush([self.rp(e, w)] + rx(0, w))
        self.flag_test(e, "L_xlast")
        rd = [self.rb(e, w) for w in range(4)]
        for j in (1, 2):
            for w in range(4):
                rd += rx(j, w)
        st = [(lambda: e.wait_ds("lp"), 0)]
        for x in range(2):
            st.append(I(e, "v_add_f32 %s, %s, %s" % (v(A_ + x), v(V_LP + x), v(V_LP + 2 + x))))
        for x in range(2):
            st.append(I(e, "v_add_f32 %s, %s, %s" % (v(V_LP + 4 + x), v(V_LP + 4 + x), v(V_LP + 6 + x))))
        for x in range(2):
            st.append(I(e, "v_add_f32 %s, %s, %s" % (v(A_ + x), v(A_ + x), v(V_LP + 4 + x))))
        st += [I(e, "v_permlane32_swap_b32 %s, %s" % (v(A_), v(B_))),
               I(e, "v_add_f32 %s, %s, %s" % (v(A_), v(A_), v(B_))),
               I(e, "v_mov_b32 %s, %s" % (v(B_), v(A_))),
               I(e, "v_permlane16_swap_b32 %s, %s" % (v(A_), v(B_))),
               I(e, "v_add_f32 %s, %s, %s" % (v(A_), v(A_), v(B_))),
               I(e, "v_mov_b32 %s, %s" % (v(B_), v(A_))),
               I(e, "v_permlane32_swap_b32 %s, %s" % (v(A_), v(B_))),
               I(e, "v_rcp_f32 %s, %s" % (v(T + 2), v(A_)), 2),
               I(e, "v_log_f32 %s, %s" % (v(LAM), v(A_)), 2),
               I(e, "v_mul_f32 %s, %s, %s" % (v(SC_), v(V_C192), v(T + 2))),
               I(e, "v_mul_f32 %s, %s, %s" % (v(SH), v(B_), v(T + 2))),
               I(e, "v_sub_f32 %s, %s, %s" % (v(LAM), v(LAM), v(V_OREF)))]

        def norm(j):
            f = [I(e, "v_fma_f32 %s, %s, %s, -%s" % (v(V_O12 + 4 * j + r), v(V_O12 + 4 * j + r), v(SC_), v(SH))) for r in range(4)]
            f += [I(e, "v_cvt_pk_bf16_f32 %s, %s, %s" % (v(CV + 2 * j + x), v(V_O12 + 4 * j + 2 * x), v(V_O12 + 4 * j + 2 * x + 1)))
                  for x in range(2)]
            f.append((lambda: e.lds("x2", "ds_write_b64 %s, %s offset:%d" % (v(XW), v(CV + 2 * j, 2), j * 512)), 1))
            return f
        ms = []
        for j in range(3):
            o = v(V_O12 + 4 * j, 4)
            for w in range(4):
                def m(j=j, w=w, o=o):
                    e.wait_ds([("p", w), ("xt", j, w)])
                    self.mfma(e, o, acc(A_XT2[1] + (4 * j + w) * 4, 4), v(V_PX[w], 4), o)
                ms.append(m)
            for p_ in range(2):
                def m(j=j, p_=p_, o=o):
                    e.wait_ds(("pb", p_))
                    self.mfma(e, o, acc(A_FT + (2 * j + p_) * 4, 4), v(V_PB + 4 * p_, 4), o)
                ms.append(m)
        mix = []
        while rd or st:
            mix += rd[:1] + st[:1]
            rd, st = rd[1:], st[1:]
        g = self.a.fgap
        left = weave(e, ms[:12], mix, 0, g)
        flush(weave(e, ms[12:], left + norm(0) + norm(1), 0, g))
        flush(norm(2))
        self.bulk(e, "x2")
        e.wait_ds_all()
        e("s_barrier")
        self.stamp(e, 9, "t")
        B, D = V_QK, 16
        for st_ in range(6):
            e.lds(("b", st_), "ds_read_b128 %s, %s offset:%d" % (v(B + 4 * st_, 4), v(AR + 3), st_ * 1024))
        for st_ in range(6):
            e.wait_ds(("b", st_))
            for t in range(3):
                self.mfma(e, v(D + 4 * t, 4), v(V_W + (t * 6 + st_) * 4, 4), v(B + 4 * st_, 4), v(D + 4 * t, 4) if st_ else "0")
        self.publish(e, D, LAM)
        self.stamp(e, 10, "t")

    def part_base(self, e):
        e("s_mul_i32 %s, %s, %d" % (s(S_T0), s(S_WAVE), 4 * self.a.istride))
        e("s_and_b32 %s, s2, 7" % s(S_T1))
        e("s_lshl_b32 %s, %s, 10" % (s(S_T1), s(S_T1)))
        e("s_add_u32 %s, %s, %s" % (s(S_T0), s(S_T0), s(S_T1)))
        e("s_bfe_u32 %s, s2, 0x30003" % s(S_T1))
        e("s_lshl_b32 %s, %s, 7" % (s(S_T1), s(S_T1)))
        e("s_add_u32 %s, %s, %s" % (s(S_T0), s(S_T0), s(S_T1)))
        e("s_lshr_b32 %s, s2, 6" % s(S_T1))
        e("s_lshl_b32 %s, %s, 13" % (s(S_T1), s(S_T1)))
        e("s_add_u32 %s, %s, %s" % (s(S_T0), s(S_T0), s(S_T1)))
        e("s_add_u32 %s, %s, %d" % (s(S_T0), s(S_T0), WS_PART))

    def rows(self, e, role=None):
        for t in range(8):
            e.vmem("d", "buffer_load_dwordx4 %s, %s, %s, %s offen offset:%d sc1" % (
                v(V_DT[t], 4), v(V_LANE16), s(R_WS, 4), s(S_SI + t // 4), (t % 4) * 1024), role)

    def is_con(self, e):
        e("s_cmp_lt_u32 %s, %d" % (s(S_T2), NC))

    def bulk(self, e, where):
        if where == "x1":
            e("s_sub_u32 %s, s2, %d" % (s(S_T2), C0))
            e("s_mul_i32 %s, %s, %d" % (s(S_SI), s(S_T2), self.a.istride))
            e("s_lshl_b32 %s, %s, 13" % (s(S_T1), s(S_WAVE)))
            e("s_add_u32 %s, %s, %s" % (s(S_SI), s(S_SI), s(S_T1)))
            e("s_add_u32 %s, %s, %d" % (s(S_SI), s(S_SI), WS_PART))
            e("s_add_u32 %s, %s, 4096" % (s(S_SI + 1), s(S_SI)))
        if where == "x2" and self.a.bulk == "x1":
            self.is_con(e)
            e("s_cbranch_scc1 L_wcon")
            e("s_waitcnt vmcnt(0)")
            e("L_wcon:")
            e("s_waitcnt vmcnt(8)")
        elif where == "x2":
            e.wait_vm_all()
        if where == self.a.bulk:
            self.is_con(e)
            e("s_cbranch_scc0 L_nobulk")
            self.rows(e)
            e("L_nobulk:")

    def consumer(self, e):
        AC, LAM, NB = 16, T + 3, self.a.nb
        EXP, NH, OA, QV, C1, C2, REF, X = V_EXP, V_NH, V_OA, V_QV, V_C1, V_C2, 42, 48
        RB, PD, CUR, RT, SC, ANY, S101 = 88, 96, 97, 136, S_T2, 24, 26
        self.is_con(e)
        e("s_cbranch_scc0 L_fin")
        if self.a.bulk == "post":
            self.rows(e)
        self.stamp(e, 3, "c")
        srd(e, R_B, S_OUT, 6144)
        e.lds("ref", "ds_bpermute_b32 %s, %s, %s" % (v(REF), v(V_QI), v(LAM)))
        e("v_bfe_u32 %s, v0, 2, 1" % v(X))
        e("v_cmp_eq_u32 vcc, 1, %s" % v(X))
        e("v_mov_b32 %s, %s" % (v(EXP), s(S_N)))
        e("s_movk_i32 %s, 0x101" % s(S101))
        e("v_cndmask_b32 %s, 0, %s, vcc" % (v(NH), v(EXP)))
        e("v_sub_u32 %s, %s, %s" % (v(EXP), v(EXP), v(NH)))
        e("v_sub_u32 %s, %s, %s" % (v(EXP), v(EXP), v(NH)))
        for j in range(7):
            e("v_mov_b32 %s, 0" % v(AC + j))
        e("v_mov_b32 %s, 0" % v(CUR))
        e("s_mov_b32 %s, 0" % s(S_CNT))

        def accum(e, d):
            e("v_sub_u32 %s, %s, %s" % (v(X + 1), v(d + 3), v(NH)))
            e("v_sub_f32 %s, %s, %s" % (v(X + 1), v(X + 1), v(REF)))
            e("v_exp_f32 %s, %s" % (v(X + 1), v(X + 1)))
            e("v_cvt_pk_bf16_f32 %s, %s, 0" % (v(X + 1), v(X + 1)))
            e("v_lshlrev_b32 %s, 16, %s" % (v(X + 2), v(X + 1)))
            for j in range(3):
                e("v_dot2_f32_bf16 %s, %s, %s, %s" % (v(AC + 2 * j), v(d + j), v(X + 1), v(AC + 2 * j)))
            e("v_add_f32 %s, %s, %s" % (v(AC + 6), v(AC + 6), v(X + 2)))
            for j in range(3):
                e("v_dot2_f32_bf16 %s, %s, %s, %s" % (v(AC + 2 * j + 1), v(d + j), v(X + 2), v(AC + 2 * j + 1)))

        def poll(j, mask):
            e("v_add_u32 %s, %s, %s" % (v(X), v(X), v(CUR)))
            e("v_and_b32 %s, 7, %s" % (v(X), v(X)))
            e("v_lshl_add_u32 %s, %s, 10, %s" % (v(X + 3), v(X), v(V_LANE16)))
            e("v_lshlrev_b32 %s, %s, %s" % (v(RB + j), v(X), s(S101)))
            e("v_add_u32 %s, 1, %s" % (v(CUR), v(X)))
            e("s_mov_b64 exec, %s" % mask)
            e.vmem("r", "buffer_load_dwordx4 %s, %s, %s, %s offen sc1" % (v(RT + 4 * j, 4), v(X + 3), s(R_WS, 4), s(S_SI)))
            e("s_mov_b64 exec, -1")
        self.stamp(e, 4, "c")
        e.wait_vm("d")
        self.stamp(e, 6, "c")
        self.stamp(e, 9)
        for t in range(8):
            e("v_sub_u32_dpp %s, %s, %s row_half_mirror row_mask:0xf bank_mask:0xf" % (v(RT + t), v(V_DT[t] + 3), v(V_DT[t] + 3)))
        for t in range(8):
            e("v_cmp_eq_u32 %s, %s, %s" % (s(OKM[t], 2), v(RT + t), v(EXP)))
            e("v_mov_b32 %s, 0x%x" % (v(RT + t), 0x101 << t))
        for t in range(8):
            e("v_cndmask_b32 %s, %s, 0, %s" % (v(RT + t), v(RT + t), s(OKM[t], 2)))
        e("v_or3_b32 %s, %s, %s, %s" % (v(PD), v(RT), v(RT + 1), v(RT + 2)))
        e("v_or3_b32 %s, %s, %s, %s" % (v(RT + 3), v(RT + 3), v(RT + 4), v(RT + 5)))
        e("v_or3_b32 %s, %s, %s, %s" % (v(PD), v(PD), v(RT + 6), v(RT + 7)))
        e("v_or_b32 %s, %s, %s" % (v(PD), v(PD), v(RT + 3)))
        e("v_cmp_ne_u32 %s, 0, %s" % (s(ANY, 2), v(PD)))
        e.wait_ds_all()
        self.stamp(e, 7, "c")
        for t in range(8):
            if t * NB // 8 != (t - 1) * NB // 8:
                e("v_lshrrev_b32 %s, %s, %s" % (v(X), v(CUR), v(PD)))
                e("v_ffbl_b32 %s, %s" % (v(X), v(X)))
                poll(t * NB // 8, s(ANY, 2))
            e("s_mov_b64 exec, %s" % s(OKM[t], 2))
            accum(e, V_DT[t])
            e("s_mov_b64 exec, -1")
        self.stamp(e, 8, "c")
        e("s_cmp_eq_u64 %s, 0" % s(ANY, 2))
        e("s_cbranch_scc1 L_c_red")
        e("L_c_loop:")
        for j in range(NB):
            d = RT + 4 * j
            e("s_waitcnt vmcnt(%d)" % (NB - 1))
            e("v_sub_u32_dpp %s, %s, %s row_half_mirror row_mask:0xf bank_mask:0xf" % (v(X), v(d + 3), v(d + 3)))
            e("v_and_b32 %s, %s, %s" % (v(X + 1), v(RB + j), v(PD)))
            e("v_cmp_eq_u32 vcc, %s, %s" % (v(X), v(EXP)))
            e("v_cmp_ne_u32 %s, 0, %s" % (s(ANY, 2), v(X + 1)))
            e("s_and_b64 exec, vcc, %s" % s(ANY, 2))
            e("s_cbranch_scc0 L_c_s%d" % j)
            e("v_xor_b32 %s, %s, %s" % (v(PD), v(PD), v(RB + j)))
            accum(e, d)
            e("L_c_s%d:" % j)
            e("s_mov_b64 exec, -1")
            e("v_cmp_ne_u32 vcc, 0, %s" % v(PD))
            e("v_lshrrev_b32 %s, %s, %s" % (v(X), v(CUR), v(PD)))
            e("s_cbranch_vccz L_c_red")
            e("v_ffbl_b32 %s, %s" % (v(X), v(X)))
            poll(j, "vcc")
        e("s_add_u32 %s, %s, 1" % (s(S_CNT), s(S_CNT)))
        e("s_cmp_lt_u32 %s, %d" % (s(S_CNT), SPIN))
        e("s_cbranch_scc1 L_c_loop")
        e("L_c_red:")
        self.stamp(e, 10)
        self.stamp(e, 9, "c")
        e("v_mov_b32 %s, %s" % (v(AC + 7), v(AC + 6)))
        for j in range(4):
            e("v_permlane32_swap_b32 %s, %s" % (v(AC + j), v(AC + 4 + j)))
        for j in range(4):
            e("v_add_f32 %s, %s, %s" % (v(AC + j), v(AC + j), v(AC + 4 + j)))
        for j in range(2):
            e("v_permlane16_swap_b32 %s, %s" % (v(AC + j), v(AC + 2 + j)))
        for j in range(2):
            e("v_add_f32 %s, %s, %s" % (v(AC + j), v(AC + j), v(AC + 2 + j)))
        e("v_add_f32_dpp %s, %s, %s row_ror:8 row_mask:0xf bank_mask:0x3" % (v(X), v(AC), v(AC)))
        e("v_add_f32_dpp %s, %s, %s row_ror:8 row_mask:0xf bank_mask:0xc" % (v(X), v(AC + 1), v(AC + 1)))
        e.lds("w", "ds_write_b32 %s, %s" % (v(C1), v(X)))
        e.wait_ds_all()
        e("s_barrier")
        e.lds("r", "ds_read_b128 %s, %s offset:768" % (v(X, 4), v(C2)))
        e.lds("r2", "ds_read_b128 %s, %s" % (v(X + 4, 4), v(V_LANE16)))
        e("v_lshlrev_b32 %s, 16, %s" % (v(AC + 2), v(QV)))
        e.wait_ds("r")
        e("v_add_f32 %s, %s, %s" % (v(X), v(X), v(X + 1)))
        e("v_add_f32 %s, %s, %s" % (v(X + 2), v(X + 2), v(X + 3)))
        e("v_add_f32 %s, %s, %s" % (v(X), v(X), v(X + 2)))
        e("v_cmp_nlt_f32 vcc, %s, %s" % (v(X), v(V_JUNK)))
        e("v_rcp_f32 %s, %s" % (v(X), v(X)))
        e.wait_ds("r2")
        self.stamp(e, 10, "c")
        e("s_cbranch_vccnz L_c_slow")
        e("L_c_out:")
        e("s_cmp_lg_u32 %s, 0" % s(S_WAVE))
        e("s_cbranch_scc1 L_fin")
        e("v_add_f32 %s, %s, %s" % (v(X + 4), v(X + 4), v(X + 5)))
        e("v_add_f32 %s, %s, %s" % (v(X + 6), v(X + 6), v(X + 7)))
        e("v_add_f32 %s, %s, %s" % (v(X + 4), v(X + 4), v(X + 6)))
        e("v_fmac_f32 %s, %s, %s" % (v(AC + 2), v(X + 4), v(X)))
        e("v_cvt_pk_bf16_f32 %s, %s, %s" % (v(AC + 2), v(AC + 2), v(AC + 2)))
        e.vmem("o", "buffer_store_short %s, %s, %s, 0 offen" % (v(AC + 2), v(OA), s(R_B, 4)))
        e("s_cmp_lg_u32 %s, 0" % s(SC))
        e("s_cbranch_scc1 L_fin")
        e("v_mov_b32 %s, %s" % (v(X), s(S_N)))
        e("v_mov_b32 %s, 0" % v(X + 1))
        e("s_mov_b64 exec, 1")
        e.vmem("o", "buffer_store_dword %s, %s, %s, 0 offen offset:%d sc1" % (v(X), v(X + 1), s(R_WS, 4), WS_EPOCH))
        e("s_mov_b64 exec, -1")

        r = Emit()
        r("L_c_slow:")
        r("s_cmp_eq_u32 %s, 0" % s(S_JOB))
        r("s_cbranch_scc1 L_c_out")
        r("s_mov_b32 %s, 0" % s(S_JOB))
        self.rows(r)
        r.wait_vm_all()
        for t in range(8):
            r("v_sub_u32 %s, %s, %s" % (v(X + 1), v(V_DT[t] + 3), v(NH)))
            r("v_max_f32 %s, %s, %s" % (v(REF), v(REF), v(X + 1)))
        r("v_max_f32_dpp %s, %s, %s row_ror:8 row_mask:0xf bank_mask:0xf" % (v(REF), v(REF), v(REF)))
        for sw in ("32", "16"):
            r("v_mov_b32 %s, %s" % (v(X), v(REF)))
            r("v_permlane%s_swap_b32 %s, %s" % (sw, v(REF), v(X)))
            r("v_max_f32 %s, %s, %s" % (v(REF), v(REF), v(X)))
        r("s_lshl_b32 %s, %s, 2" % (s(S_T0), s(S_WAVE)))
        r("v_add_u32 %s, %s, %s" % (v(X), s(S_T0), v(C2)))
        r.lds("w", "ds_write_b32 %s, %s offset:1024" % (v(X), v(REF)))
        r.wait_ds_all()
        r("s_barrier")
        r.lds("r", "ds_read_b128 %s, %s offset:1024" % (v(X, 4), v(C2)))
        for j in range(7):
            r("v_mov_b32 %s, 0" % v(AC + j))
        r.wait_ds_all()
        r("v_max3_f32 %s, %s, %s, %s" % (v(REF), v(X), v(X + 1), v(X + 2)))
        r("v_max_f32 %s, %s, %s" % (v(REF), v(REF), v(X + 3)))
        for t in range(8):
            accum(r, V_DT[t])
        r("s_nop 2")
        r("s_branch L_c_red")
        return fix_hazards(r.lines, "slow")

    def phase_stamp(self, e, n):
        if n == self.a.chk:
            e.wait_vm("fl")
            self.flag_check(e)
            e("s_cbranch_vccnz L_fl_retry")
            e("L_fl_ok:")
            self.ready.add("wvo")
        Gen.phase_stamp(self, e, n)

    def qk_wait(self, e):
        self.land(e, "qk")

    def body(self, e, extra, wloads):
        nmid = self.a.nmid
        self.shared_ref = True
        self.tramp, self.log, self.ready, self.nm = [], [], set(), 0
        self.clk, self.main = Clock(self.a), e
        self.make_queue(e, extra, self.late)
        if self.a.evgate:
            e("s_getreg_b32 s1, hwreg(HW_REG_XCC_ID)")
            e("s_lshr_b32 s1, %d, s1" % self.a.evmask)
            e("s_and_b32 s1, s1, 1")
            e("s_or_b32 s1, s1, %s" % s(S_PV))
        for k in range(4):
            if k == 0:
                self.phase_f0(e)
            else:
                if k == 3:
                    self.retouch(e)
                self.phase_f(e, k, extra)
            self.phase_r(e, k, 0, extra)
            if k == 2:
                while any(n == ("F", 3) for _, _, n in self.q):
                    self.pop(e)
                self.split_offsets(e)
            if k < 3:
                self.phase_r(e, k, 1, extra)
            if k in (0, 2):
                self.stamp(e, 4 + k // 2)
        e("L_tail:")

        def landed():
            if self.a.tpk == 5:
                self.touch_part(e)
            if nmid:
                self.is_pv(e)
                e("s_cbranch_scc0 L_nolate")
                flush([(fn, 1) for fn in wloads(R_WS, list(range(nmid)), "s")])
                e("L_nolate:")
        self.phase_last(e, landed)
        self.stamp(e, 7)
        self.stamp(e, 7, "t")
        self.stamp(e, 1, "c")
        self.part_base(e)
        e("v_mov_b32 %s, %s" % (v(V_JUNK), fl(DEN_MAX)))
        e("s_mov_b32 %s, 1" % s(S_JOB))
        self.final(e)
        self.clk.sync(e)
        self.main = None
        if self.a.verbose:
            print(" ".join(self.log), "\npublished %.2f" % (self.clk.t / 2140))
        return self.tramp + self.xslow(False) + self.xslow(True)


if __name__ == "__main__":
    ap = options()
    ap.add_argument("--xb", type=int, default=0)
    ap.add_argument("--fgap", type=int, default=2)
    ap.add_argument("--ldc", type=float, default=80)
    ap.add_argument("--evgate", type=int, default=0)
    ap.add_argument("--evmask", type=lambda x: int(x, 0), default=0xaa)
    ap.add_argument("--bulk", default="x1")
    ap.add_argument("--nb", type=int, default=4)
    ap.add_argument("--win", type=int, default=12)
    ap.add_argument("--tau", type=float, default=295)
    ap.add_argument("--lat", type=float, default=2000)
    ap.add_argument("--ahead", type=float, default=0)
    ap.add_argument("--over", type=float, default=0)
    ap.add_argument("--chk", type=int, default=6)
    ap.add_argument("--midbar", type=lambda x: [int(y) for y in x.split(",") if y], default=[2])
    ap.set_defaults(start="old")
    args = ap.parse_args()
    open(args.o, "w").write(Gen3(args).build())
```
